```python
import torch

def _softmax(x, axis=-1):
    return torch.softmax(x, dim=axis)
def _gelu(x):
    return torch.nn.functional.gelu(x, approximate="tanh")
def _silu(x):
    return torch.nn.functional.silu(x)
def _sigmoid(x):
    return torch.sigmoid(x)
def _layernorm(x, axis=-1, eps=1e-5):
    m = x.mean(dim=axis, keepdim=True)
    v = x.var(dim=axis, keepdim=True, unbiased=False)
    return (x - m) / torch.sqrt(v + eps)
def _scatter_add(tgt, idx, src, axis=0):
    return tgt.clone().index_add_(axis, idx, src)
def _segment_sum(src, seg, n):
    out = torch.zeros((n,) + src.shape[1:], dtype=src.dtype)
    return out.index_add_(0, seg, src)
def _pad(x, pw):
    flat = tuple(v for pair in reversed(pw) for v in pair)
    return torch.nn.functional.pad(x, flat)

kernel_name = 'sequential_preLN__linear_attn_block__mixer_channel_mlp__prompt'

def setup_inputs():

    _w = (lambda a: (lambda t: t.to(torch.bfloat16) if t.is_floating_point() else t)(torch.as_tensor(a)))
    def _A_setup():
        B, S, D = 1, 2048, 512
        return {
            "x": _w((lambda *s: torch.randn(*s, dtype=torch.bfloat16) * 0.05)(B, S, D)),
            "wqkv": _w((lambda *s: torch.randn(*s, dtype=torch.bfloat16) * 0.1)(D, 3 * D)),
            "wo": _w((lambda *s: torch.randn(*s, dtype=torch.bfloat16) * 0.05)(D, D)),
        }
    _A_in = _A_setup()

    def _B_setup():
        B, S, D, F = 1, 2048, 512, 1792
        return {
            "x": _w((lambda *s: torch.randn(*s, dtype=torch.bfloat16) * 0.05)(B, S, D)),
            "w1": _w((lambda *s: torch.randn(*s, dtype=torch.bfloat16) * 3.2)(D, F) * (D ** -0.5)),
            "b1": _w((lambda *s: torch.randn(*s, dtype=torch.bfloat16) * 0.8)(F)),
            "w2": _w((lambda *s: torch.randn(*s, dtype=torch.bfloat16) * 0.05)(F, D) * (F ** -0.5)),
            "b2": _w((lambda *s: torch.randn(*s, dtype=torch.bfloat16) * 0.05)(D)),
        }
    _B_in = _B_setup()

    return {
        "A_x": _A_in["x"],
        "A_wqkv": _A_in["wqkv"],
        "A_wo": _A_in["wo"],
        "B_x": _B_in["x"],
        "B_w1": _B_in["w1"],
        "B_b1": _B_in["b1"],
        "B_w2": _B_in["w2"],
        "B_b2": _B_in["b2"],
    }

def reference(A_x, A_wqkv, A_wo, B_x, B_w1, B_b1, B_w2, B_b2):
    def _A_ref(x, wqkv, wo):
        B, S, D = x.shape
        H = 32; Dh = D // H
        qkv = (lambda x, *d: x.permute(*d))((x @ wqkv).reshape(B, S, 3, H, Dh), 2, 0, 3, 1, 4)
        q, k, v = qkv[0], qkv[1], qkv[2]
        phi = lambda t: torch.where(t > 0, t + 1, torch.exp(t)) + 1e-6
        pq, pk = phi(q), phi(k)
        kv = torch.einsum("bhsd,bhse->bhde", pk, v)
        z = torch.einsum("bhsd->bhd", pk)
        num = torch.einsum("bhqd,bhde->bhqe", pq, kv)
        den = torch.einsum("bhqd,bhd->bhq", pq, z)[..., None] + 1e-6
        o = num / den
        return (lambda x, *d: x.permute(*d))(o, 0, 2, 1, 3).reshape(B, S, D) @ wo

    def _B_ref(x, w1, b1, w2, b2):
        y = _layernorm(x, axis=-1)
        h = _gelu(torch.einsum("bsd,df->bsf", y, w1) + b1)
        return torch.einsum("bsf,fd->bsd", h, w2) + b2

    x = A_x
    h = x + _A_ref(_layernorm(x, axis=-1), A_wqkv, A_wo)
    h2 = h + _B_ref(_layernorm(h, axis=-1), B_w1, B_b1, B_w2, B_b2)
    return h2
```

```python
import re


def R(prefix, lo, n=1):
    if n == 1:
        return f"{prefix}{lo}"
    return f"{prefix}[{lo}:{lo + n - 1}]"


def V(lo, n=1):
    return R("v", lo, n)


def A(lo, n=1):
    return R("a", lo, n)


def S(lo, n=1):
    return R("s", lo, n)


_re_rng = re.compile(r"^([vas])\[(\d+):(\d+)\]$")
_re_one = re.compile(r"^([vas])(\d+)$")


def expand(op):
    if op is None:
        return []
    if isinstance(op, (int, float)):
        return []
    op = op.strip()
    if op.startswith("-"):
        op = op[1:]
    if op.startswith("abs(") and op.endswith(")"):
        op = op[4:-1]
    if op.startswith("|") and op.endswith("|"):
        op = op[1:-1]
    m = _re_rng.match(op)
    if m:
        return [f"{m.group(1)}{i}" for i in range(int(m.group(2)), int(m.group(3)) + 1)]
    m = _re_one.match(op)
    if m:
        return [op]
    if op == "vcc":
        return ["vcc"]
    if op in ("m0", "exec", "scc"):
        return [op]
    return []


class Ins:
    __slots__ = ("kind", "wr", "rd", "srcc", "ab", "states", "sub")

    def __init__(self, kind, wr=(), rd=(), srcc=(), ab=(), states=1, sub=None):
        self.kind = kind
        self.wr = set(wr)
        self.rd = set(rd)
        self.srcc = tuple(srcc)
        self.ab = set(ab)
        self.states = states
        self.sub = sub


VALU_KINDS = ("valu", "trans", "dot", "rdlane", "perml")


class Asm:
    def __init__(self):
        self.lines = []
        self.hist = []
        self.vmq = []
        self.lgq = []
        self.nops = 0

    def raw(self, text):
        self.lines.append(text)

    def comment(self, text):
        self.lines.append("    ; " + text)

    def label(self, name):
        self.flush()
        self.lines.append(name + ":")

    def flush(self):
        need = 0
        dist = 0
        for p in reversed(self.hist):
            req = 0
            if p.kind == "mfma":
                req = 8
            elif p.kind in VALU_KINDS:
                req = 5 if any(r[0] == "s" or r == "vcc" for r in p.wr) else 3
            elif p.kind == "wstore":
                req = 2
            elif p.kind == "salu" and "m0" in p.wr:
                req = 1
            need = max(need, req - dist)
            dist += p.states
        self._nop(need)
        self.hist = []

    def _nop(self, n):
        while n > 0:
            k = min(n, 16)
            self.lines.append(f"    s_nop {k - 1}")
            self.hist.append(Ins("nop", states=k))
            self.nops += 1
            n -= k

    def _required(self, p, c):
        req = 0
        pw = p.wr
        if p.kind in ("valu", "trans", "rdlane", "perml"):
            common_rd = pw & c.rd
            if c.kind == "mfma" and common_rd:
                req = max(req, 2)
            if p.kind == "trans" and c.kind in ("valu", "dot", "rdlane", "perml") and common_rd:
                req = max(req, 1)
            sg = {r for r in pw if r[0] == "s" or r == "vcc"}
            if sg & c.rd:
                if c.kind in VALU_KINDS:
                    req = max(req, 4 if c.kind == "rdlane" else 2)
                elif c.kind in ("vmem", "wstore", "dma"):
                    req = max(req, 5)
            if c.kind == "rdlane" and common_rd:
                req = max(req, 1)
            if c.kind == "perml" and common_rd:
                req = max(req, 2)
        if p.kind == "dot":
            touched = pw & (c.rd | c.wr)
            if touched:
                if c.kind == "dot" and c.sub == p.sub and not (pw & c.ab):
                    req = max(req, 0)
                else:
                    req = max(req, 3)
        if p.kind == "mfma":
            if c.kind == "mfma":
                if pw & c.ab:
                    req = max(req, 8)
                ov = pw & set(c.srcc)
                if ov:
                    if tuple(sorted(pw, key=_rk)) == tuple(sorted(c.srcc, key=_rk)):
                        req = max(req, 0)
                    else:
                        req = max(req, 6)
                elif pw & c.wr:
                    req = max(req, 8)
            else:
                if pw & (c.rd | c.wr):
                    req = max(req, 8)
                if c.kind in VALU_KINDS and (set(p.srcc) & c.wr):
                    req = max(req, 3)
        if p.kind == "salu" and "m0" in pw and c.kind == "dma":
            req = max(req, 1)
        if p.kind == "wstore":
            if p.rd & c.wr:
                req = max(req, 2 if c.kind in VALU_KINDS else 1)
        return req

    def ins(self, text, ins):
        need = 0
        dist = 0
        for p in reversed(self.hist):
            r = self._required(p, ins)
            if r - dist > need:
                need = r - dist
            dist += p.states
            if dist > 24:
                break
        self._nop(need)
        self.lines.append("    " + text)
        self.hist.append(ins)
        if len(self.hist) > 40:
            self.hist = self.hist[-40:]

    def valu(self, op, dst, *srcs, kind="valu", extra_wr=(), extra_rd=(), mods=""):
        wr = expand(dst) + [r for e in extra_wr for r in expand(e)]
        rd = [r for s in srcs for r in expand(s)] + [r for e in extra_rd for r in expand(e)]
        txt = f"{op} {dst}, " + ", ".join(str(s) for s in srcs) + mods
        self.ins(txt, Ins(kind, wr, rd))

    def trans(self, op, dst, src):
        self.valu(op, dst, src, kind="trans")

    def salu(self, op, dst, *srcs):
        wr = expand(dst)
        rd = [r for s in srcs for r in expand(s)]
        txt = f"{op} {dst}" + "".join(f", {s}" for s in srcs)
        self.ins(txt, Ins("salu", wr, rd))

    def scmp(self, op, a, b):
        self.ins(f"{op} {a}, {b}", Ins("salu", ["scc"], expand(a) + expand(b)))

    def branch(self, op, label):
        self.flush()
        self.lines.append(f"    {op} {label}")

    def dot2(self, dst, a, b, c):
        self.ins(
            f"v_dot2_f32_bf16 {dst}, {a}, {b}, {c}",
            Ins("dot", expand(dst), expand(a) + expand(b) + expand(c), ab=expand(a) + expand(b), sub="dot2"),
        )

    def mfma(self, d, a, b, c):
        cs = expand(c)
        self.ins(
            f"v_mfma_f32_16x16x32_bf16 {d}, {a}, {b}, {c}",
            Ins("mfma", expand(d), expand(a) + expand(b) + cs, srcc=cs, ab=expand(a) + expand(b)),
        )

    def rfl(self, sdst, vsrc):
        self.ins(f"v_readfirstlane_b32 {sdst}, {vsrc}", Ins("rdlane", expand(sdst), expand(vsrc)))

    def acc_read(self, vdst, asrc):
        self.valu("v_accvgpr_read_b32", vdst, asrc)

    def cmp(self, op, sdst, a, b):
        self.valu(op, sdst, a, b)

    def cndmask(self, dst, f, t, mask):
        self.valu("v_cndmask_b32", dst, f, t, mask)

    def bload(self, n, dst, voff, srd, soff=0, off=0, tag=None, flags=""):
        op = {1: "buffer_load_dword", 2: "buffer_load_dwordx2", 4: "buffer_load_dwordx4"}[n]
        txt = f"{op} {dst}, {voff}, {srd}, {soff} offen" + (f" offset:{off}" if off else "") + (" " + flags if flags else "")
        self.ins(txt, Ins("vmem", expand(dst), expand(voff) + expand(srd) + expand(soff)))
        self.vmq.append(tag)

    def bstore(self, n, src, voff, srd, soff=0, off=0, tag=None, flags=""):
        op = {1: "buffer_store_dword", 2: "buffer_store_dwordx2", 4: "buffer_store_dwordx4"}[n]
        txt = f"{op} {src}, {voff}, {srd}, {soff} offen" + (f" offset:{off}" if off else "") + (" " + flags if flags else "")
        kind = "wstore" if n == 4 else "vmem"
        self.ins(txt, Ins(kind, [], expand(src) + expand(voff) + expand(srd) + expand(soff)))
        self.vmq.append(tag)

    def dma(self, voff, srd, soff, tag=None, flags=""):
        txt = f"buffer_load_dwordx4 {voff}, {srd}, {soff} offen lds" + (" " + flags if flags else "")
        self.ins(txt, Ins("dma", [], expand(voff) + expand(srd) + expand(soff) + ["m0"]))
        self.vmq.append(tag)

    def batomic_add_ret(self, vdata, voff, srd, tag=None):
        txt = f"buffer_atomic_add {vdata}, {voff}, {srd}, 0 offen sc0"
        self.ins(txt, Ins("vmem", expand(vdata), expand(vdata) + expand(voff) + expand(srd)))
        self.vmq.append(tag)

    def ds_read(self, op, dst, addr, off=0, tag=None):
        txt = f"{op} {dst}, {addr}" + (f" offset:{off}" if off else "")
        self.ins(txt, Ins("ds", expand(dst), expand(addr)))
        self.lgq.append(tag)

    def ds_write(self, op, addr, src, off=0, tag=None):
        txt = f"{op} {addr}, {src}" + (f" offset:{off}" if off else "")
        self.ins(txt, Ins("ds", [], expand(addr) + expand(src)))
        self.lgq.append(tag)

    def bperm(self, dst, addr, src, tag=None):
        self.ins(f"ds_bpermute_b32 {dst}, {addr}, {src}", Ins("ds", expand(dst), expand(addr) + expand(src)))
        self.lgq.append(tag)

    def _count_after(self, q, tags):
        if not isinstance(tags, list):
            tags = [tags]
        last = -1
        for i, t in enumerate(q):
            if t in tags:
                last = i
        if last < 0:
            return None
        return len(q) - 1 - last

    def wait_vm(self, tags):
        n = self._count_after(self.vmq, tags)
        if n is None:
            return
        assert n <= 63, n
        self.ins(f"s_waitcnt vmcnt({n})", Ins("wait"))
        self.vmq = self.vmq[len(self.vmq) - n :] if n else []

    def wait_lg(self, tags):
        n = self._count_after(self.lgq, tags)
        if n is None:
            return
        assert n <= 15, n
        self.ins(f"s_waitcnt lgkmcnt({n})", Ins("wait"))
        self.lgq = self.lgq[len(self.lgq) - n :] if n else []

    def wait_vm0(self):
        self.ins("s_waitcnt vmcnt(0)", Ins("wait"))
        self.vmq = []

    def wait_lg0(self):
        self.ins("s_waitcnt lgkmcnt(0)", Ins("wait"))
        self.lgq = []

    def barrier(self):
        self.ins("s_barrier", Ins("wait"))

    def text(self):
        return "\n".join(self.lines) + "\n"


def _rk(r):
    return (r[0], int(r[1:]) if r[1:].isdigit() else 0)
```

```python
import sys, os, math
sys.path.insert(0, os.path.dirname(__file__))
from asmlib import Asm, V, A, S

NAME = "sequential_preLN__linear_attn_block__mixer_channel_mlp__prompt"

PQ_OFF = 0
H_OFF = 2 << 20
H1_OFF = 4 << 20
KVP_OFF = 12 << 20
KVF_OFF = 13 << 20
Z_REL = 16384

LOG2E = 1.4426950408889634


def f32bits(x):
    import struct
    return "0x%08x" % struct.unpack("<I", struct.pack("<f", x))[0]


def make_srd(a, sd, sb, off, nbytes):
    if off:
        a.salu("s_add_u32", S(sd), S(sb), off)
        a.salu("s_addc_u32", S(sd + 1), S(sb + 1), 0)
        a.salu("s_and_b32", S(sd + 1), S(sd + 1), "0xffff")
    else:
        a.salu("s_mov_b32", S(sd), S(sb))
        a.salu("s_and_b32", S(sd + 1), S(sb + 1), "0xffff")
    a.salu("s_mov_b32", S(sd + 2), nbytes)
    a.salu("s_mov_b32", S(sd + 3), "0x20000")


def lane_setup(a):
    a.valu("v_lshrrev_b32", "v4", 6, "v0")
    a.valu("v_and_b32", "v1", 63, "v0")
    a.rfl("s3", "v4")
    a.valu("v_and_b32", "v2", 15, "v1")
    a.valu("v_lshrrev_b32", "v3", 4, "v1")


def bf16_round_pair(a, x0, x1, tmp):
    a.valu("v_cvt_pk_bf16_f32", tmp, x0, x1)
    a.valu("v_lshlrev_b32", x0, 16, tmp)
    a.valu("v_and_b32", x1, "0xffff0000", tmp)


def bf16_round1(a, x, tmp):
    a.valu("v_cvt_pk_bf16_f32", tmp, x, x)
    a.valu("v_lshlrev_b32", x, 16, tmp)


def phi_pack(a, xs, out_pk, tmps, smask):
    e = tmps[:4]
    tp = tmps[4]
    for i in range(4):
        a.valu("v_mul_f32", e[i], f32bits(LOG2E), xs[i])
    for i in range(4):
        a.cmp("v_cmp_lt_f32", smask[i], 0, xs[i])
    for i in range(4):
        a.trans("v_exp_f32", e[i], e[i])
    for i in range(4):
        a.valu("v_add_f32", xs[i], 1.0, xs[i])
    for i in range(4):
        a.cndmask(xs[i], e[i], xs[i], smask[i])
    bf16_round_pair(a, xs[0], xs[1], tp)
    bf16_round_pair(a, xs[2], xs[3], tp)
    for i in range(4):
        a.valu("v_add_f32", xs[i], f32bits(1e-6), xs[i])
    a.valu("v_cvt_pk_bf16_f32", out_pk[0], xs[0], xs[1])
    a.valu("v_cvt_pk_bf16_f32", out_pk[1], xs[2], xs[3])


def ln_scalars(a, s1, s2, tmp, tmp2):
    a.valu("v_mul_f32", tmp, f32bits(1.0 / 512), s1)
    a.valu("v_mul_f32", tmp2, f32bits(1.0 / 512), s2)
    a.valu("v_fma_f32", tmp2, "-" + tmp, tmp, tmp2)
    a.valu("v_max_f32", tmp2, 0, tmp2)
    a.valu("v_cvt_pk_bf16_f32", s1, tmp, tmp2)
    a.valu("v_and_b32", s2, "0xffff0000", s1)
    a.valu("v_lshlrev_b32", s1, 16, s1)
    a.valu("v_add_f32", s2, f32bits(1e-5), s2)
    a.valu("v_cvt_pk_bf16_f32", s2, s2, s2)
    a.valu("v_lshlrev_b32", s2, 16, s2)
    a.trans("v_sqrt_f32", s2, s2)
    a.valu("v_cvt_pk_bf16_f32", s2, s2, s2)
    a.valu("v_lshlrev_b32", s2, 16, s2)


def kernel_header(a, name):
    a.raw(f".globl {name}")
    a.raw(".p2align 8")
    a.raw(f".type {name},@function")
    a.raw(f"{name}:")


def kernel_desc(name, nvgpr, accum_off, nsgpr=102):
    return f""".section .rodata,"a"
.p2align 6
.amdhsa_kernel {name}
  .amdhsa_next_free_vgpr {nvgpr}
  .amdhsa_next_free_sgpr {nsgpr}
  .amdhsa_accum_offset {accum_off}
  .amdhsa_group_segment_fixed_size 0
  .amdhsa_kernarg_size 88
  .amdhsa_user_sgpr_count 2
  .amdhsa_user_sgpr_kernarg_segment_ptr 1
  .amdhsa_system_sgpr_workgroup_id_x 1
.end_amdhsa_kernel
.text
"""


K1_AUX = 98304
K1_LDS_STAT = 0
K1_LDS_CS = K1_LDS_STAT + 1024
K1_LDS_KV = K1_LDS_CS + 512
K1_LDS_FLAG = K1_AUX + K1_LDS_KV + 16384
K1_LDS = K1_LDS_FLAG + 64


def gen_k1():
    a = Asm()
    name = "k1_qkv_kernel"
    kernel_header(a, name)
    a.scmp("s_cmp_ge_u32", "s2", 256)
    a.raw("    s_cbranch_scc1 K1_END")
    a.raw("    s_load_dwordx4 s[16:19], s[0:1], 0")
    a.raw("    s_load_dwordx4 s[20:23], s[0:1], 72")
    lane_setup(a)
    a.salu("s_and_b32", "s4", "s2", 7)
    a.salu("s_lshr_b32", "s5", "s2", 3)
    a.salu("s_lshr_b32", "s6", "s4", 1)
    a.salu("s_lshl_b32", "s6", "s6", 2)
    a.salu("s_and_b32", "s7", "s5", 3)
    a.salu("s_add_u32", "s6", "s6", "s7")
    a.salu("s_and_b32", "s7", "s4", 1)
    a.salu("s_lshl_b32", "s7", "s7", 3)
    a.salu("s_lshr_b32", "s5", "s5", 2)
    a.salu("s_add_u32", "s7", "s7", "s5")
    a.salu("s_lshl_b32", "s8", "s6", 7)
    a.salu("s_lshl_b32", "s9", "s3", 5)
    a.salu("s_add_u32", "s8", "s8", "s9")
    a.valu("v_add_u32", "v4", "s8", "v2")
    a.valu("v_lshlrev_b32", "v4", 10, "v4")
    a.valu("v_lshl_add_u32", "v4", "v3", 4, "v4")
    a.valu("v_add_u32", "v5", 16384, "v4")
    a.valu("v_lshrrev_b32", "v6", 2, "v1")
    a.valu("v_lshrrev_b32", "v7", 4, "v1")
    a.valu("v_and_b32", "v8", 3, "v6")
    a.valu("v_lshl_add_u32", "v8", "v7", 3, "v8")
    a.salu("s_movk_i32", "s10", 3072)
    a.valu("v_mul_lo_u32", "v8", "v8", "s10")
    a.valu("v_bfe_u32", "v9", "v1", 1, 1)
    a.valu("v_and_b32", "v7", 1, "v7")
    a.valu("v_xor_b32", "v9", "v9", "v7")
    a.valu("v_lshl_add_u32", "v8", "v9", 5, "v8")
    a.valu("v_and_b32", "v9", 1, "v1")
    a.valu("v_lshl_add_u32", "v6", "v9", 4, "v8")
    a.valu("v_lshrrev_b32", "v7", 2, "v2")
    a.valu("v_lshl_add_u32", "v7", "v3", 2, "v7")
    a.valu("v_lshlrev_b32", "v7", 6, "v7")
    a.valu("v_and_b32", "v8", 3, "v1")
    a.valu("v_lshl_add_u32", "v7", "v8", 3, "v7")
    a.valu("v_and_b32", "v8", 1, "v3")
    a.valu("v_lshl_add_u32", "v7", "v8", 5, "v7")
    a.valu("v_xor_b32", "v8", 32, "v7")
    a.valu("v_add_u32", "v9", 65536, "v7")
    a.valu("v_add_u32", "v10", 65536, "v8")
    a.salu("s_and_b32", "s10", "s3", 1)
    a.salu("s_lshl_b32", "s10", "s10", 5)
    a.valu("v_xor_b32", "v11", "s10", "v7")
    a.valu("v_add_u32", "v12", 65536, "v11")
    a.salu("s_lshr_b32", "s10", "s3", 1)
    a.salu("s_lshl_b32", "s10", "s10", 15)
    a.valu("v_add_u32", "v11", "s10", "v11")
    ONES = 16
    for i in range(4):
        a.valu("v_mov_b32", V(ONES + i), "0x3f803f80")
    a.raw("    s_waitcnt lgkmcnt(0)")
    make_srd(a, 24, 16, 0, 2048 * 512 * 2)
    make_srd(a, 28, 18, 0, 512 * 1536 * 2)
    make_srd(a, 32, 22, PQ_OFF, 2048 * 512 * 2)
    make_srd(a, 36, 22, KVP_OFF, 1 << 20)
    make_srd(a, 40, 22, KVF_OFF, Z_REL + 1024)
    make_srd(a, 44, 20, 0, 256)
    AF = 20

    def af(mt, ks):
        return AF + (mt * 16 + ks) * 4
    for ks in range(16):
        for mt in range(2):
            a.bload(4, V(af(mt, ks), 4), "v4" if mt == 0 else "v5", S(24, 4), 0, ks * 64, tag="A")
    a.salu("s_lshr_b32", "s10", "s3", 1)
    a.salu("s_lshl_b32", "s10", "s10", 5)
    a.salu("s_and_b32", "s11", "s3", 1)
    a.salu("s_lshl_b32", "s11", "s11", 2)
    a.salu("s_add_u32", "s10", "s10", "s11")
    a.salu("s_mul_i32", "s10", "s10", 3072)
    a.salu("s_lshl_b32", "s11", "s7", 6)
    a.salu("s_add_u32", "s10", "s10", "s11")
    a.salu("s_lshl_b32", "s11", "s3", 10)
    for C in range(8):
        for sub in range(3):
            a.salu("s_add_u32", "s12", "s10", C * 196608 + sub * 1024)
            a.salu("s_add_u32", "m0", "s11", C * 4096 + sub * 32768)
            a.dma("v6", S(28, 4), "s12", tag=("B", C))
    BF = 148
    ST = 212
    for i in range(4):
        a.valu("v_mov_b32", V(ST + i), 0)

    def bf(buf, tile):
        return BF + (buf * 8 + tile) * 4

    def reads(ks, part):
        buf = ks & 1
        lst = []
        for tile in range(6):
            sub, t = tile >> 1, tile & 1
            base = ["v7", "v8"][t] if sub < 2 else ["v9", "v10"][t]
            o = (sub * 32768 if sub < 2 else 0) + ks * 2048
            lst.append((bf(buf, tile), base, o))
        lst.append((bf(buf, 6), "v11", ks * 2048))
        lst.append((bf(buf, 7), "v12", ks * 2048))
        sel = lst[:4] if part == 0 else lst[4:]
        for (reg, base, o) in sel:
            for hh in range(2):
                a.ds_read("ds_read_b64_tr_b16", V(reg + 2 * hh, 2), base, o + hh * 1024, tag=("R", ks))

    def acc(mt, tile):
        return (mt * 6 + tile) * 4
    CSA = 48

    a.wait_vm(("B", 0))
    a.barrier()
    reads(0, 0)
    reads(0, 1)
    for ks in range(16):
        buf = ks & 1
        nxt = ks + 1 < 16
        if nxt:
            if (ks + 1) % 2 == 0:
                a.wait_vm(("B", (ks + 1) // 2))
                a.barrier()
            reads(ks + 1, 0)
        a.wait_lg(("R", ks))
        dots = []
        for mt in range(2):
            for j in range(4):
                r = V(af(mt, ks) + j)
                dots.append((V(ST + 2 * mt), r, V(ONES)))
                dots.append((V(ST + 2 * mt + 1), r, r))
        di = 0
        mf = []
        for tile in range(6):
            for mt in range(2):
                mf.append((mt, tile))
        for n, (mt, tile) in enumerate(mf):
            c = A(acc(mt, tile), 4) if ks else 0
            if tile < 2:
                a.mfma(A(acc(mt, tile), 4), V(bf(buf, tile), 4), V(af(mt, ks), 4), c)
            else:
                a.mfma(A(acc(mt, tile), 4), V(af(mt, ks), 4), V(bf(buf, tile), 4), c)
            for _ in range(2 if n % 3 != 2 else 0):
                if di < len(dots):
                    d, x, y = dots[di]
                    a.dot2(d, x, y, d)
                    di += 1
            if n == 5 and nxt:
                reads(ks + 1, 1)
        for e in range(2):
            c = A(CSA + 4 * e, 4) if ks else 0
            a.mfma(A(CSA + 4 * e, 4), V(ONES, 4), V(bf(buf, 6 + e), 4), c)
        while di < len(dots):
            d, x, y = dots[di]
            a.dot2(d, x, y, d)
            di += 1

    T = 20
    a.valu("v_xor_b32", V(T), 16, "v1")
    a.valu("v_lshlrev_b32", V(T), 2, V(T))
    a.valu("v_xor_b32", V(T + 1), 32, "v1")
    a.valu("v_lshlrev_b32", V(T + 1), 2, V(T + 1))
    for step in range(2):
        for i in range(4):
            a.bperm(V(T + 2 + i), V(T + step), V(ST + i), tag="P")
        a.wait_lg("P")
        for i in range(4):
            a.valu("v_add_f32", V(ST + i), V(ST + i), V(T + 2 + i))
    a.acc_read(V(T + 6), A(CSA))
    a.acc_read(V(T + 7), A(CSA + 4))
    a.salu("s_lshl_b32", "s12", "s3", 6)
    a.salu("s_add_u32", "s12", "s12", K1_AUX)
    a.valu("v_lshl_add_u32", V(T + 8), "v2", 2, "s12")
    a.salu("s_and_b32", "s12", "s3", 1)
    a.salu("s_lshl_b32", "s12", "s12", 6)
    a.salu("s_add_u32", "s12", "s12", K1_AUX)
    a.valu("v_lshl_add_u32", V(T + 9), "v2", 2, "s12")
    a.ds_write("ds_write_b32", V(T + 8), V(T + 6), K1_LDS_CS, tag="W")
    a.ds_write("ds_write_b32", V(T + 9), V(T + 7), K1_LDS_CS + 256, tag="W")
    for mt in range(2):
        ln_scalars(a, V(ST + 2 * mt), V(ST + 2 * mt + 1), V(T + 2), V(T + 3))
        a.trans("v_rcp_f32", V(ST + 2 * mt + 1), V(ST + 2 * mt + 1))
    a.salu("s_lshl_b32", "s12", "s3", 8)
    a.salu("s_add_u32", "s12", "s12", K1_AUX)
    a.valu("v_lshl_add_u32", V(T + 8), "v2", 2, "s12")
    for mt in range(2):
        for wh in range(2):
            a.ds_write("ds_write_b32", V(T + 8), V(ST + 2 * mt + wh), K1_LDS_STAT + mt * 128 + wh * 64, tag="W")
    a.wait_lg0()
    a.barrier()
    CSQ = T + 12
    CSK = T + 20
    STM = T + 24
    a.salu("s_mov_b32", "s13", K1_AUX)
    a.valu("v_lshl_add_u32", V(T + 9), "v3", 4, "s13")
    a.valu("v_lshl_add_u32", V(T + 10), "v2", 2, "s13")
    a.valu("v_lshl_add_u32", V(T + 8), "v3", 4, "s12")
    for t in range(2):
        a.ds_read("ds_read_b128", V(CSQ + 4 * t, 4), V(T + 9), K1_LDS_CS + t * 64, tag="X")
    for t in range(4):
        a.ds_read("ds_read_b32", V(CSK + t), V(T + 10), K1_LDS_CS + (2 + t) * 64, tag="X")
    for mt in range(2):
        for wh in range(2):
            a.ds_read("ds_read_b128", V(STM + (mt * 2 + wh) * 4, 4), V(T + 8), K1_LDS_STAT + mt * 128 + wh * 64, tag="X")
    a.valu("v_add_u32", V(T + 10), "s8", "v2")
    a.valu("v_lshlrev_b32", V(T + 10), 10, V(T + 10))
    a.valu("v_lshl_add_u32", V(T + 10), "v3", 3, V(T + 10))
    a.salu("s_lshl_b32", "s13", "s7", 6)
    a.valu("v_add_u32", V(T + 10), "s13", V(T + 10))
    a.valu("v_add_u32", V(T + 11), 16384, V(T + 10))
    a.wait_lg0()
    X = T + 40
    TM = T + 44
    PKO = T + 50
    QO = T + 66
    SM = [S(50, 2), S(52, 2), S(54, 2), S(56, 2)]
    for mt in range(2):
        for t in range(2):
            for r in range(4):
                a.acc_read(V(X + r), A(acc(mt, t) + r))
            for r in range(4):
                a.valu("v_fma_f32", V(X + r), "-" + V(ST + 2 * mt), V(CSQ + 4 * t + r), V(X + r))
            for r in range(4):
                a.valu("v_mul_f32", V(X + r), V(X + r), V(ST + 2 * mt + 1))
            bf16_round_pair(a, V(X), V(X + 1), V(TM))
            bf16_round_pair(a, V(X + 2), V(X + 3), V(TM))
            q = QO + (mt * 2 + t) * 2
            phi_pack(a, [V(X + r) for r in range(4)], [V(q), V(q + 1)], [V(TM + i) for i in range(5)], SM)
            a.bstore(2, V(q, 2), V(T + 10 + mt), S(32, 4), 0, t * 32, tag="SQ")
    for mt in range(2):
        for tt in range(4):
            for r in range(4):
                a.acc_read(V(X + r), A(acc(mt, 2 + tt) + r))
            for r in range(4):
                a.valu("v_fma_f32", V(X + r), "-" + V(STM + (mt * 2) * 4 + r), V(CSK + tt), V(X + r))
            for r in range(4):
                a.valu("v_mul_f32", V(X + r), V(X + r), V(STM + (mt * 2 + 1) * 4 + r))
            o = PKO + (tt & 1) * 4 + mt * 2 + (8 if tt >= 2 else 0)
            if tt < 2:
                bf16_round_pair(a, V(X), V(X + 1), V(TM))
                bf16_round_pair(a, V(X + 2), V(X + 3), V(TM))
                phi_pack(a, [V(X + r) for r in range(4)], [V(o), V(o + 1)], [V(TM + i) for i in range(5)], SM)
            else:
                a.valu("v_cvt_pk_bf16_f32", V(o), V(X), V(X + 1))
                a.valu("v_cvt_pk_bf16_f32", V(o + 1), V(X + 2), V(X + 3))
    KD = T + 76
    for t in range(2):
        a.mfma(V(KD + 4 * t, 4), V(PKO + 4 * t, 4), V(PKO + 8 + 4 * t, 4), 0)
        a.mfma(V(KD + 8 + 4 * t, 4), V(PKO + 4 * t, 4), V(ONES, 4), 0)
    a.salu("s_lshl_b32", "s12", "s3", 12)
    a.salu("s_add_u32", "s12", "s12", K1_AUX)
    a.valu("v_lshl_add_u32", V(T + 8), "v1", 4, "s12")
    for it in range(4):
        a.ds_write("ds_write_b128", V(T + 8), V(KD + 4 * it, 4), K1_LDS_KV + it * 1024, tag="W")
    a.wait_lg0()
    a.barrier()
    a.salu("s_lshl_b32", "s12", "s3", 10)
    a.salu("s_add_u32", "s13", "s12", K1_AUX)
    a.valu("v_lshl_add_u32", V(T + 8), "v1", 4, "s13")
    for w in range(4):
        a.ds_read("ds_read_b128", V(KD + 4 * w, 4), V(T + 8), K1_LDS_KV + w * 4096, tag="X")
    a.wait_lg0()
    for r in range(4):
        a.valu("v_add_f32", V(KD + r), V(KD + r), V(KD + 4 + r))
        a.valu("v_add_f32", V(KD + 8 + r), V(KD + 8 + r), V(KD + 12 + r))
    for r in range(4):
        a.valu("v_add_f32", V(KD + r), V(KD + r), V(KD + 8 + r))
    a.salu("s_lshl_b32", "s13", "s7", 12)
    a.salu("s_add_u32", "s13", "s13", "s12")
    a.salu("s_lshl_b32", "s14", "s6", 16)
    a.salu("s_add_u32", "s14", "s14", "s13")
    a.valu("v_lshlrev_b32", V(T + 9), 4, "v1")
    a.bstore(4, V(KD, 4), V(T + 9), S(36, 4), "s14", 0, tag="SP", flags="sc1")
    a.wait_vm0()
    a.barrier()
    a.scmp("s_cmp_lg_u32", "s3", 0)
    a.branch("s_cbranch_scc1", "K1_NOATOM")
    a.salu("s_mov_b64", "exec", 1)
    a.salu("s_lshl_b32", "s15", "s7", 4)
    a.valu("v_mov_b32", V(T + 10), "s15")
    a.valu("v_mov_b32", V(T + 11), 1)
    a.valu("v_mov_b32", V(T + 12), K1_LDS_FLAG)
    a.batomic_add_ret(V(T + 11), V(T + 10), S(44, 4))
    a.wait_vm0()
    a.ds_write("ds_write_b32", V(T + 12), V(T + 11), 0)
    a.wait_lg0()
    a.salu("s_mov_b64", "exec", -1)
    a.label("K1_NOATOM")
    a.barrier()
    a.valu("v_mov_b32", V(T + 12), K1_LDS_FLAG)
    a.ds_read("ds_read_b32", V(T + 11), V(T + 12), 0)
    a.wait_lg0()
    a.rfl("s15", V(T + 11))
    a.scmp("s_cmp_lg_u32", "s15", 15)
    a.branch("s_cbranch_scc1", "K1_END")
    P = T + 16
    for rb in range(16):
        a.salu("s_add_u32", "s14", "s13", rb * 65536)
        a.bload(4, V(P + 4 * rb, 4), V(T + 9), S(36, 4), "s14", 0, tag=("LP", rb), flags="sc1")
    for rb in range(1, 16):
        a.wait_vm(("LP", rb))
        for r in range(4):
            a.valu("v_add_f32", V(P + r), V(P + r), V(P + 4 * rb + r))
    a.valu("v_cvt_pk_bf16_f32", V(P), V(P), V(P + 1))
    a.valu("v_cvt_pk_bf16_f32", V(P + 1), V(P + 2), V(P + 3))
    a.salu("s_and_b32", "s14", "s3", 1)
    a.salu("s_lshl_b32", "s15", "s7", 1)
    a.salu("s_add_u32", "s14", "s14", "s15")
    a.scmp("s_cmp_ge_u32", "s3", 2)
    a.branch("s_cbranch_scc1", "K1_ZST")
    a.salu("s_lshl_b32", "s14", "s14", 9)
    a.valu("v_lshlrev_b32", V(T + 10), 5, "v2")
    a.valu("v_lshl_add_u32", V(T + 10), "v3", 3, V(T + 10))
    a.bstore(2, V(P, 2), V(T + 10), S(40, 4), "s14", 0)
    a.branch("s_branch", "K1_END")
    a.label("K1_ZST")
    a.salu("s_lshl_b32", "s14", "s14", 5)
    a.salu("s_add_u32", "s14", "s14", Z_REL)
    a.valu("v_lshlrev_b32", V(T + 10), 3, "v3")
    a.cmp("v_cmp_eq_u32", "vcc", 0, "v2")
    a.raw("    s_nop 1")
    a.raw("    s_and_saveexec_b64 s[58:59], vcc")
    a.bstore(2, V(P, 2), V(T + 10), S(40, 4), "s14", 0)
    a.label("K1_END")
    a.raw("    s_endpgm")
    return a.text() + kernel_desc(name, 216 + 72, 216), name, K1_LDS


K2_LDS = 65536


def gen_k2():
    a = Asm()
    name = "k2_attn_kernel"
    kernel_header(a, name)
    a.scmp("s_cmp_ge_u32", "s2", 256)
    a.raw("    s_cbranch_scc1 K2_END")
    a.raw("    s_load_dwordx2 s[16:17], s[0:1], 0")
    a.raw("    s_load_dwordx2 s[18:19], s[0:1], 16")
    a.raw("    s_load_dwordx2 s[22:23], s[0:1], 80")
    lane_setup(a)
    a.salu("s_and_b32", "s4", "s2", 7)
    a.salu("s_lshr_b32", "s5", "s2", 3)
    a.salu("s_lshl_b32", "s6", "s4", 2)
    a.salu("s_and_b32", "s7", "s5", 3)
    a.salu("s_add_u32", "s6", "s6", "s7")
    a.salu("s_lshr_b32", "s7", "s5", 2)
    a.salu("s_lshl_b32", "s8", "s6", 6)
    a.valu("v_add_u32", "v4", "s8", "v2")
    a.valu("v_lshlrev_b32", "v4", 10, "v4")
    a.valu("v_lshl_add_u32", "v4", "v3", 4, "v4")
    a.salu("s_lshl_b32", "s9", "s3", 8)
    a.valu("v_add_u32", "v4", "s9", "v4")
    for mt in range(1, 4):
        a.valu("v_add_u32", V(4 + mt), mt * 16384, "v4")
    a.valu("v_lshrrev_b32", "v8", 1, "v3")
    a.valu("v_lshlrev_b32", "v8", 9, "v8")
    a.valu("v_lshl_add_u32", "v8", "v2", 5, "v8")
    a.valu("v_and_b32", "v9", 1, "v3")
    a.valu("v_lshl_add_u32", "v8", "v9", 4, "v8")
    a.salu("s_lshl_b32", "s9", "s3", 12)
    a.valu("v_add_u32", "v8", "s9", "v8")
    a.salu("s_lshl_b32", "s9", "s3", 8)
    a.salu("s_add_u32", "s9", "s9", Z_REL)
    a.valu("v_lshl_add_u32", "v9", "v3", 4, "s9")
    a.valu("v_lshrrev_b32", "v10", 3, "v1")
    a.valu("v_bfe_u32", "v11", "v1", 1, 2)
    a.valu("v_bfe_u32", "v12", "v1", 4, 2)
    a.valu("v_xor_b32", "v11", "v11", "v12")
    a.valu("v_lshlrev_b32", "v10", 10, "v10")
    a.valu("v_lshl_add_u32", "v10", "v11", 5, "v10")
    a.valu("v_and_b32", "v11", 1, "v1")
    a.valu("v_lshl_add_u32", "v10", "v11", 4, "v10")
    a.valu("v_lshrrev_b32", "v11", 2, "v2")
    a.valu("v_lshl_add_u32", "v12", "v3", 2, "v11")
    a.valu("v_bfe_u32", "v13", "v12", 1, 2)
    a.valu("v_lshlrev_b32", "v12", 7, "v12")
    a.valu("v_lshl_add_u32", "v12", "v13", 5, "v12")
    a.valu("v_and_b32", "v13", 3, "v1")
    a.valu("v_lshl_add_u32", "v12", "v13", 3, "v12")
    a.salu("s_lshl_b32", "s9", "s3", 14)
    a.valu("v_add_u32", "v12", "s9", "v12")
    for t in range(1, 4):
        a.valu("v_xor_b32", V(12 + t), t << 5, "v12")
    a.salu("s_lshl_b32", "s10", "s3", 4)
    a.salu("s_add_u32", "s10", "s10", "s8")
    a.valu("v_add_u32", "v16", "s10", "v2")
    a.valu("v_lshlrev_b32", "v16", 10, "v16")
    a.valu("v_lshl_add_u32", "v16", "v3", 3, "v16")
    a.salu("s_lshl_b32", "s10", "s7", 7)
    a.valu("v_add_u32", "v16", "s10", "v16")
    a.cmp("v_cmp_gt_u32", S(50, 2), 2, "v3")
    a.raw("    s_waitcnt lgkmcnt(0)")
    make_srd(a, 24, 16, 0, 2048 * 512 * 2)
    make_srd(a, 28, 18, 0, 512 * 512 * 2)
    make_srd(a, 32, 22, PQ_OFF, 2048 * 512 * 2)
    make_srd(a, 36, 22, H_OFF, 2048 * 512 * 2)
    make_srd(a, 40, 22, KVF_OFF, Z_REL + 1024)
    PQ = 20
    KV = 84
    ZZ = 100
    XR = 116
    for p in range(4):
        a.bload(4, V(KV + 4 * p, 4), "v8", S(40, 4), 0, p * 1024, tag="KV")
        a.bload(4, V(ZZ + 4 * p, 4), "v9", S(40, 4), 0, p * 64, tag="KV")
    for p in range(4):
        for mt in range(4):
            a.bload(4, V(PQ + (mt * 4 + p) * 4, 4), V(4 + mt), S(32, 4), 0, p * 64, tag=("Q", p))
    a.salu("s_lshl_b32", "s11", "s3", 17)
    a.salu("s_add_u32", "s11", "s11", "s10")
    for j in range(16):
        a.salu("s_add_u32", "s12", "s11", j * 8192)
        a.salu("s_add_u32", "m0", "s9", j * 1024)
        a.dma("v10", S(28, 4), "s12", tag=("B", j // 4))
    for t in range(4):
        a.bload(2, V(XR + 2 * t, 2), "v16", S(24, 4), 0, t * 32, tag="X")
    OPS = 124
    ND = 140
    OF = 156
    WF = 172
    TM = 188
    a.wait_vm("KV")
    for p in range(4):
        for j in range(4):
            a.cndmask(V(OPS + j), 0, V(KV + 4 * p + j), S(50, 2))
            a.cndmask(V(OPS + 4 + j), V(KV + 4 * p + j), 0, S(50, 2))
            a.cndmask(V(OPS + 8 + j), 0, V(ZZ + 4 * p + j), S(50, 2))
            a.cndmask(V(OPS + 12 + j), V(ZZ + 4 * p + j), 0, S(50, 2))
        a.wait_vm(("Q", p))
        for mt in range(4):
            q = V(PQ + (mt * 4 + p) * 4, 4)
            for e in range(4):
                a.mfma(V(ND + 4 * e, 4), V(OPS + 4 * e, 4), q, 0)
            for hd in range(2):
                den = V(ND + 8 + 4 * hd)
                num = [V(ND + 4 * hd + r) for r in range(4)]
                bf16_round1(a, den, V(TM))
                a.valu("v_add_f32", den, f32bits(1e-6), den)
                bf16_round1(a, den, V(TM))
                a.trans("v_rcp_f32", den, den)
                bf16_round_pair(a, num[0], num[1], V(TM))
                bf16_round_pair(a, num[2], num[3], V(TM))
                for r in range(4):
                    a.valu("v_mul_f32", num[r], num[r], den)
                a.valu("v_cvt_pk_bf16_f32", V(OF + 4 * mt + 2 * hd), num[0], num[1])
                a.valu("v_cvt_pk_bf16_f32", V(OF + 4 * mt + 2 * hd + 1), num[2], num[3])
        a.wait_vm(("B", p))
        for t in range(4):
            for hh in range(2):
                a.ds_read("ds_read_b64_tr_b16", V(WF + 4 * t + 2 * hh, 2), V(12 + t), p * 4096 + hh * 2048, tag="R")
        a.wait_lg0()
        for t in range(4):
            for mt in range(4):
                d = A((mt * 4 + t) * 4, 4)
                a.mfma(d, V(WF + 4 * t, 4), V(OF + 4 * mt, 4), d if p else 0)
    a.valu("v_lshl_add_u32", "v17", "v1", 4, "s9")
    for mt in range(4):
        for t in range(4):
            a.ds_write("ds_write_b128", "v17", A((mt * 4 + t) * 4, 4), (mt * 4 + t) * 1024, tag="W")
    a.wait_lg0()
    a.barrier()
    a.salu("s_lshl_b32", "s12", "s3", 12)
    a.valu("v_lshl_add_u32", "v17", "v1", 4, "s12")
    RD = 20
    for w in range(4):
        for t in range(4):
            a.ds_read("ds_read_b128", V(RD + (w * 4 + t) * 4, 4), "v17", w * 16384 + t * 1024, tag=("X", w))
        if w == 2:
            a.wait_lg(("X", 0))
    a.wait_lg0()
    a.wait_vm("X")
    for t in range(4):
        for r in range(4):
            a.valu("v_add_f32", V(RD + t * 4 + r), V(RD + t * 4 + r), V(RD + (4 + t) * 4 + r))
            a.valu("v_add_f32", V(RD + (8 + t) * 4 + r), V(RD + (8 + t) * 4 + r), V(RD + (12 + t) * 4 + r))
        for r in range(4):
            a.valu("v_add_f32", V(RD + t * 4 + r), V(RD + t * 4 + r), V(RD + (8 + t) * 4 + r))
        s = [V(RD + t * 4 + r) for r in range(4)]
        bf16_round_pair(a, s[0], s[1], V(TM))
        bf16_round_pair(a, s[2], s[3], V(TM))
        xs = [V(TM + 1 + r) for r in range(4)]
        a.valu("v_lshlrev_b32", xs[0], 16, V(XR + 2 * t))
        a.valu("v_and_b32", xs[1], "0xffff0000", V(XR + 2 * t))
        a.valu("v_lshlrev_b32", xs[2], 16, V(XR + 2 * t + 1))
        a.valu("v_and_b32", xs[3], "0xffff0000", V(XR + 2 * t + 1))
        for r in range(4):
            a.valu("v_add_f32", s[r], s[r], xs[r])
        a.valu("v_cvt_pk_bf16_f32", V(XR + 2 * t), s[0], s[1])
        a.valu("v_cvt_pk_bf16_f32", V(XR + 2 * t + 1), s[2], s[3])
        a.bstore(2, V(XR + 2 * t, 2), "v16", S(36, 4), 0, t * 32)
    a.label("K2_END")
    a.raw("    s_endpgm")
    return a.text() + kernel_desc(name, 196 + 64, 196), name, K2_LDS


K3_AUX = 114688
K3_LDS_CS = 0
K3_LDS = K3_AUX + 512


def gen_k3():
    a = Asm()
    name = "k3_mlp1_kernel"
    kernel_header(a, name)
    a.scmp("s_cmp_ge_u32", "s2", 256)
    a.raw("    s_cbranch_scc1 K3_END")
    a.raw("    s_load_dwordx4 s[16:19], s[0:1], 32")
    a.raw("    s_load_dwordx2 s[22:23], s[0:1], 80")
    lane_setup(a)
    a.salu("s_and_b32", "s4", "s2", 7)
    a.salu("s_lshr_b32", "s5", "s2", 3)
    a.salu("s_lshr_b32", "s6", "s4", 1)
    a.salu("s_lshl_b32", "s6", "s6", 2)
    a.salu("s_and_b32", "s7", "s5", 3)
    a.salu("s_add_u32", "s6", "s6", "s7")
    a.salu("s_and_b32", "s7", "s4", 1)
    a.salu("s_lshl_b32", "s7", "s7", 3)
    a.salu("s_lshr_b32", "s5", "s5", 2)
    a.salu("s_add_u32", "s7", "s7", "s5")
    a.salu("s_lshl_b32", "s8", "s6", 7)
    a.salu("s_lshl_b32", "s9", "s3", 5)
    a.salu("s_add_u32", "s8", "s8", "s9")
    a.valu("v_add_u32", "v4", "s8", "v2")
    a.valu("v_lshlrev_b32", "v4", 10, "v4")
    a.valu("v_lshl_add_u32", "v4", "v3", 4, "v4")
    a.valu("v_add_u32", "v5", 16384, "v4")
    a.salu("s_movk_i32", "s10", 4682)
    a.salu("s_movk_i32", "s11", 3584)
    for i in range(7):
        c, p, k, t = "v13", "v14", "v15", "v16"
        a.valu("v_add_u32", c, 64 * i, "v1")
        a.valu("v_mul_lo_u32", p, c, "s10")
        a.valu("v_lshrrev_b32", p, 16, p)
        a.valu("v_mul_u32_u24", t, 14, p)
        a.valu("v_sub_u32", c, c, t)
        a.valu("v_bfe_u32", k, p, 2, 2)
        a.valu("v_lshlrev_b32", k, 3, k)
        a.valu("v_lshrrev_b32", t, 4, p)
        a.valu("v_lshl_add_u32", k, t, 2, k)
        a.valu("v_and_b32", t, 3, p)
        a.valu("v_add_u32", k, k, t)
        a.valu("v_mul_lo_u32", k, k, "s11")
        a.valu("v_lshl_add_u32", V(6 + i), c, 4, k)
    a.valu("v_lshrrev_b32", "v13", 2, "v2")
    a.valu("v_lshl_add_u32", "v13", "v3", 2, "v13")
    a.valu("v_mul_u32_u24", "v13", 224, "v13")
    a.valu("v_and_b32", "v14", 3, "v1")
    a.valu("v_lshl_add_u32", "v13", "v14", 3, "v13")
    a.valu("v_add_u32", "v14", 57344, "v13")
    a.salu("s_lshl_b32", "s10", "s3", 5)
    a.valu("v_add_u32", "v15", "s10", "v13")
    a.valu("v_add_u32", "v16", "s10", "v14")
    a.salu("s_add_u32", "s11", "s3", 4)
    a.salu("s_min_u32", "s11", "s11", 6)
    a.salu("s_lshl_b32", "s10", "s11", 5)
    a.valu("v_add_u32", "v17", "s10", "v13")
    a.valu("v_add_u32", "v18", "s10", "v14")
    ONES = 20
    for i in range(4):
        a.valu("v_mov_b32", V(ONES + i), "0x3f803f80")
    a.salu("s_mul_i32", "s12", "s7", 224)
    a.valu("v_lshl_add_u32", "v19", "v3", 3, "s12")
    a.raw("    s_waitcnt lgkmcnt(0)")
    make_srd(a, 24, 22, H_OFF, 2048 * 512 * 2)
    make_srd(a, 28, 16, 0, 512 * 1792 * 2)
    make_srd(a, 32, 22, H1_OFF, 2048 * 1792 * 2)
    make_srd(a, 36, 18, 0, 1792 * 2)
    AF = 24

    def af(mt, ks):
        return AF + (mt * 16 + ks) * 4
    for ks in range(16):
        for mt in range(2):
            a.bload(4, V(af(mt, ks), 4), "v4" if mt == 0 else "v5", S(24, 4), 0, ks * 64, tag="A")
    a.salu("s_mul_i32", "s13", "s3", 32 * 3584)
    a.salu("s_add_u32", "s13", "s13", "s12")
    a.salu("s_mul_i32", "s14", "s3", 7168)
    for C in range(4):
        a.salu("s_add_u32", "s15", "s13", C * 4 * 32 * 3584)
        for i in range(7):
            a.salu("s_add_u32", "m0", "s14", C * 4 * 7168 + i * 1024)
            a.dma(V(6 + i), S(28, 4), "s15", tag=("B", C))
    BF = 152
    ST = 224
    B1R = 228
    for i in range(4):
        a.valu("v_mov_b32", V(ST + i), 0)

    def bf(buf, tile):
        return BF + (buf * 9 + tile) * 4

    def reads(ks, part):
        buf = ks & 1
        hi = ks >= 8
        o = (ks - 8 if hi else ks) * 7168
        lst = []
        for t in range(7):
            lst.append((bf(buf, t), "v14" if hi else "v13", o + t * 32))
        lst.append((bf(buf, 7), "v16" if hi else "v15", o))
        lst.append((bf(buf, 8), "v18" if hi else "v17", o))
        sel = lst[:4] if part == 0 else lst[4:]
        for (reg, base, oo) in sel:
            for hh in range(2):
                a.ds_read("ds_read_b64_tr_b16", V(reg + 2 * hh, 2), base, oo + hh * 3584, tag=("R", ks))

    def acc(mt, t):
        return (mt * 7 + t) * 4
    CSA = 56
    a.wait_vm(("B", 0))
    a.barrier()
    reads(0, 0)
    reads(0, 1)
    for ks in range(16):
        buf = ks & 1
        nxt = ks + 1 < 16
        if nxt:
            if (ks + 1) % 4 == 0:
                a.wait_vm(("B", (ks + 1) // 4))
                a.barrier()
            reads(ks + 1, 0)
        a.wait_lg(("R", ks))
        dots = []
        for mt in range(2):
            for j in range(4):
                r = V(af(mt, ks) + j)
                dots.append((V(ST + 2 * mt), r, V(ONES)))
                dots.append((V(ST + 2 * mt + 1), r, r))
        di = 0
        n = 0
        for t in range(7):
            for mt in range(2):
                c = A(acc(mt, t), 4) if ks else 0
                a.mfma(A(acc(mt, t), 4), V(bf(buf, t), 4), V(af(mt, ks), 4), c)
                for _ in range(2 if n < 8 else 0):
                    if di < len(dots):
                        d, x, y = dots[di]
                        a.dot2(d, x, y, d)
                        di += 1
                if n == 5 and nxt:
                    reads(ks + 1, 1)
                n += 1
        for e in range(2):
            c = A(CSA + 4 * e, 4) if ks else 0
            a.mfma(A(CSA + 4 * e, 4), V(ONES, 4), V(bf(buf, 7 + e), 4), c)
        if ks == 13:
            for t in range(7):
                a.bload(2, V(B1R + 2 * t, 2), "v19", S(36, 4), 0, t * 32, tag="B1")
    T = 24
    a.valu("v_xor_b32", V(T), 16, "v1")
    a.valu("v_lshlrev_b32", V(T), 2, V(T))
    a.valu("v_xor_b32", V(T + 1), 32, "v1")
    a.valu("v_lshlrev_b32", V(T + 1), 2, V(T + 1))
    for step in range(2):
        for i in range(4):
            a.bperm(V(T + 2 + i), V(T + step), V(ST + i), tag="P")
        a.wait_lg("P")
        for i in range(4):
            a.valu("v_add_f32", V(ST + i), V(ST + i), V(T + 2 + i))
    a.acc_read(V(T + 6), A(CSA))
    a.acc_read(V(T + 7), A(CSA + 4))
    a.salu("s_lshl_b32", "s12", "s3", 6)
    a.salu("s_add_u32", "s12", "s12", K3_AUX)
    a.valu("v_lshl_add_u32", V(T + 8), "v2", 2, "s12")
    a.salu("s_lshl_b32", "s12", "s11", 6)
    a.salu("s_add_u32", "s12", "s12", K3_AUX)
    a.valu("v_lshl_add_u32", V(T + 9), "v2", 2, "s12")
    a.ds_write("ds_write_b32", V(T + 8), V(T + 6), K3_LDS_CS, tag="W")
    a.ds_write("ds_write_b32", V(T + 9), V(T + 7), K3_LDS_CS, tag="W")
    for mt in range(2):
        m1, s1 = V(ST + 2 * mt), V(ST + 2 * mt + 1)
        mean, var, t0, t1 = V(T + 2), V(T + 3), V(T + 4), V(T + 5)
        ln_scalars(a, m1, s1, mean, var)
        a.trans("v_rcp_f32", t0, s1)
        a.valu("v_sub_f32", mean, mean, m1)
        a.valu("v_mul_f32", mean, mean, t0)
        a.valu("v_mul_f32", var, var, t0)
        a.valu("v_mul_f32", var, var, t0)
        a.valu("v_cvt_pk_bf16_f32", t1, mean, var)
        a.valu("v_and_b32", var, "0xffff0000", t1)
        a.valu("v_lshlrev_b32", mean, 16, t1)
        a.valu("v_add_f32", var, f32bits(1e-5), var)
        bf16_round1(a, var, t1)
        a.trans("v_sqrt_f32", var, var)
        bf16_round1(a, var, t1)
        a.valu("v_fma_f32", m1, mean, s1, m1)
        a.trans("v_rcp_f32", var, var)
        a.valu("v_mul_f32", s1, t0, var)
    a.wait_lg0()
    a.barrier()
    CS = T + 12
    a.salu("s_mov_b32", "s12", K3_AUX)
    a.valu("v_lshl_add_u32", V(T + 9), "v3", 4, "s12")
    for t in range(7):
        a.ds_read("ds_read_b128", V(CS + 4 * t, 4), V(T + 9), K3_LDS_CS + t * 64, tag="X")
    a.salu("s_movk_i32", "s13", 3584)
    a.valu("v_add_u32", V(T + 10), "s8", "v2")
    a.valu("v_mul_lo_u32", V(T + 10), V(T + 10), "s13")
    a.valu("v_add_u32", V(T + 10), V(T + 10), "v19")
    a.valu("v_add_u32", V(T + 11), 16 * 3584, V(T + 10))
    a.wait_lg0()
    a.wait_vm("B1")
    BB = T + 40
    X = T + 44
    E = T + 48
    TM = T + 52
    O = T + 54
    C0 = 2.0 * math.sqrt(2.0 / math.pi) * LOG2E
    C1 = C0 * 0.044715
    a.salu("s_mov_b32", "s50", f32bits(C1))
    a.salu("s_mov_b32", "s51", f32bits(C0))
    a.valu("v_mov_b32", V(T + 8), "s51")
    cnt = 0
    for t in range(7):
        a.valu("v_lshlrev_b32", V(BB), 16, V(B1R + 2 * t))
        a.valu("v_and_b32", V(BB + 1), "0xffff0000", V(B1R + 2 * t))
        a.valu("v_lshlrev_b32", V(BB + 2), 16, V(B1R + 2 * t + 1))
        a.valu("v_and_b32", V(BB + 3), "0xffff0000", V(B1R + 2 * t + 1))
        for mt in range(2):
            for r in range(4):
                a.acc_read(V(X + r), A(acc(mt, t) + r))
            for r in range(4):
                a.valu("v_fma_f32", V(X + r), "-" + V(ST + 2 * mt), V(CS + 4 * t + r), V(X + r))
            for r in range(4):
                a.valu("v_mul_f32", V(X + r), V(X + r), V(ST + 2 * mt + 1))
            bf16_round_pair(a, V(X), V(X + 1), V(TM))
            bf16_round_pair(a, V(X + 2), V(X + 3), V(TM))
            for r in range(4):
                a.valu("v_add_f32", V(X + r), V(X + r), V(BB + r))
            bf16_round_pair(a, V(X), V(X + 1), V(TM))
            bf16_round_pair(a, V(X + 2), V(X + 3), V(TM))
            for r in range(4):
                a.valu("v_mul_f32", V(E + r), V(X + r), V(X + r))
            for r in range(4):
                a.valu("v_fma_f32", V(E + r), V(E + r), "s50", V(T + 8))
            for r in range(4):
                a.valu("v_mul_f32", V(E + r), "-" + V(E + r), V(X + r))
            for r in range(4):
                a.trans("v_exp_f32", V(E + r), V(E + r))
            for r in range(4):
                a.valu("v_add_f32", V(E + r), 1.0, V(E + r))
            for r in range(4):
                a.trans("v_rcp_f32", V(E + r), V(E + r))
            for r in range(4):
                a.valu("v_mul_f32", V(X + r), V(X + r), V(E + r))
            o = O + 2 * (cnt & 1)
            cnt += 1
            a.valu("v_cvt_pk_bf16_f32", V(o), V(X), V(X + 1))
            a.valu("v_cvt_pk_bf16_f32", V(o + 1), V(X + 2), V(X + 3))
            a.bstore(2, V(o, 2), V(T + 10 + mt), S(32, 4), 0, t * 32)
    a.label("K3_END")
    a.raw("    s_endpgm")
    return a.text() + kernel_desc(name, 244 + 64, 244), name, K3_LDS


K4_D = 4
K4_LDS = 65536


def gen_k4():
    a = Asm()
    name = "k4_mlp2_kernel"
    kernel_header(a, name)
    a.scmp("s_cmp_ge_u32", "s2", 256)
    a.raw("    s_cbranch_scc1 K4_END")
    a.raw("    s_load_dwordx4 s[16:19], s[0:1], 48")
    a.raw("    s_load_dwordx2 s[20:21], s[0:1], 64")
    a.raw("    s_load_dwordx2 s[22:23], s[0:1], 80")
    lane_setup(a)
    a.salu("s_and_b32", "s4", "s2", 7)
    a.salu("s_lshr_b32", "s5", "s2", 3)
    a.salu("s_lshl_b32", "s6", "s4", 2)
    a.salu("s_and_b32", "s7", "s5", 3)
    a.salu("s_add_u32", "s6", "s6", "s7")
    a.salu("s_lshr_b32", "s7", "s5", 2)
    a.salu("s_lshl_b32", "s8", "s6", 6)
    a.salu("s_movk_i32", "s9", 3584)
    a.valu("v_add_u32", "v4", "s8", "v2")
    a.valu("v_mul_lo_u32", "v4", "v4", "s9")
    a.valu("v_lshl_add_u32", "v4", "v3", 4, "v4")
    a.salu("s_mul_i32", "s9", "s3", 896)
    a.valu("v_add_u32", "v4", "s9", "v4")
    for mt in range(1, 4):
        a.valu("v_add_u32", V(4 + mt), mt * 16 * 3584, "v4")
    a.valu("v_bfe_u32", "v10", "v1", 3, 2)
    a.valu("v_lshrrev_b32", "v11", 5, "v1")
    a.valu("v_lshl_add_u32", "v10", "v11", 3, "v10")
    a.valu("v_bfe_u32", "v11", "v1", 1, 2)
    a.valu("v_bfe_u32", "v12", "v1", 4, 2)
    a.valu("v_xor_b32", "v11", "v11", "v12")
    a.valu("v_lshlrev_b32", "v10", 10, "v10")
    a.valu("v_lshl_add_u32", "v10", "v11", 5, "v10")
    a.valu("v_and_b32", "v11", 1, "v1")
    a.valu("v_lshl_add_u32", "v10", "v11", 4, "v10")
    a.valu("v_lshrrev_b32", "v11", 2, "v2")
    a.valu("v_lshl_add_u32", "v12", "v3", 2, "v11")
    a.valu("v_bfe_u32", "v13", "v12", 1, 2)
    a.valu("v_lshlrev_b32", "v12", 7, "v12")
    a.valu("v_lshl_add_u32", "v12", "v13", 5, "v12")
    a.valu("v_and_b32", "v13", 3, "v1")
    a.valu("v_lshl_add_u32", "v12", "v13", 3, "v12")
    a.salu("s_lshl_b32", "s9", "s3", 14)
    a.valu("v_add_u32", "v12", "s9", "v12")
    for t in range(1, 4):
        a.valu("v_xor_b32", V(12 + t), t << 5, "v12")
    a.salu("s_lshl_b32", "s10", "s3", 4)
    a.salu("s_add_u32", "s10", "s10", "s8")
    a.valu("v_add_u32", "v16", "s10", "v2")
    a.valu("v_lshlrev_b32", "v16", 10, "v16")
    a.valu("v_lshl_add_u32", "v16", "v3", 3, "v16")
    a.salu("s_lshl_b32", "s10", "s7", 7)
    a.valu("v_add_u32", "v16", "s10", "v16")
    a.valu("v_lshl_add_u32", "v18", "v3", 3, "s10")
    a.raw("    s_waitcnt lgkmcnt(0)")
    make_srd(a, 24, 22, H1_OFF, 2048 * 1792 * 2)
    make_srd(a, 28, 16, 0, 1792 * 512 * 2)
    make_srd(a, 32, 22, H_OFF, 2048 * 512 * 2)
    make_srd(a, 36, 18, 0, 512 * 2)
    make_srd(a, 40, 20, 0, 2048 * 512 * 2)
    a.salu("s_mul_i32", "s11", "s3", 448 * 1024)
    a.salu("s_add_u32", "s11", "s11", "s10")
    D = K4_D
    AFB = 20
    WF = 84
    HR = 116
    B2R = 124
    TM = 132
    JOFF = [0, 16, 4, 20]

    def issue(ks):
        sl = ks % D
        for mt in range(4):
            a.bload(4, V(AFB + (sl * 4 + mt) * 4, 4), V(4 + mt), S(24, 4), 0, ks * 64, tag=("L", ks))
        for j in range(4):
            a.salu("s_add_u32", "s12", "s11", (32 * ks + JOFF[j]) * 1024)
            a.salu("s_add_u32", "m0", "s9", sl * 4096 + j * 1024)
            a.dma("v10", S(28, 4), "s12", tag=("L", ks))

    def reads(ks):
        sl = ks % D
        b = ks & 1
        for t in range(4):
            for hh in range(2):
                a.ds_read("ds_read_b64_tr_b16", V(WF + (b * 4 + t) * 4 + 2 * hh, 2), V(12 + t), sl * 4096 + hh * 2048, tag=("R", ks))

    for ks in range(D):
        issue(ks)
    a.wait_vm(("L", 0))
    reads(0)
    for ks in range(14):
        sl = ks % D
        b = ks & 1
        if ks + 1 < 14:
            a.wait_vm(("L", ks + 1))
            reads(ks + 1)
        a.wait_lg(("R", ks))
        for t in range(4):
            for mt in range(4):
                d = A((mt * 4 + t) * 4, 4)
                a.mfma(d, V(WF + (b * 4 + t) * 4, 4), V(AFB + (sl * 4 + mt) * 4, 4), d if ks else 0)
        if ks + D < 14:
            issue(ks + D)
        if ks == 11:
            for t in range(4):
                a.bload(2, V(HR + 2 * t, 2), "v16", S(32, 4), 0, t * 32, tag="E")
                a.bload(2, V(B2R + 2 * t, 2), "v18", S(36, 4), 0, t * 32, tag="E")
    a.valu("v_lshl_add_u32", "v17", "v1", 4, "s9")
    for mt in range(4):
        for t in range(4):
            a.ds_write("ds_write_b128", "v17", A((mt * 4 + t) * 4, 4), (mt * 4 + t) * 1024, tag="W")
    a.wait_lg0()
    a.barrier()
    a.salu("s_lshl_b32", "s12", "s3", 12)
    a.valu("v_lshl_add_u32", "v17", "v1", 4, "s12")
    RD = 20
    for w in range(4):
        for t in range(4):
            a.ds_read("ds_read_b128", V(RD + (w * 4 + t) * 4, 4), "v17", w * 16384 + t * 1024, tag=("X", w))
        if w == 2:
            a.wait_lg(("X", 0))
    a.wait_lg0()
    a.wait_vm("E")
    for t in range(4):
        for r in range(4):
            a.valu("v_add_f32", V(RD + t * 4 + r), V(RD + t * 4 + r), V(RD + (4 + t) * 4 + r))
            a.valu("v_add_f32", V(RD + (8 + t) * 4 + r), V(RD + (8 + t) * 4 + r), V(RD + (12 + t) * 4 + r))
        for r in range(4):
            a.valu("v_add_f32", V(RD + t * 4 + r), V(RD + t * 4 + r), V(RD + (8 + t) * 4 + r))
        s = [V(RD + t * 4 + r) for r in range(4)]
        xs = [V(TM + 1 + r) for r in range(4)]
        bf16_round_pair(a, s[0], s[1], V(TM))
        bf16_round_pair(a, s[2], s[3], V(TM))
        for (src, dsts) in ((B2R, xs),):
            a.valu("v_lshlrev_b32", xs[0], 16, V(src + 2 * t))
            a.valu("v_and_b32", xs[1], "0xffff0000", V(src + 2 * t))
            a.valu("v_lshlrev_b32", xs[2], 16, V(src + 2 * t + 1))
            a.valu("v_and_b32", xs[3], "0xffff0000", V(src + 2 * t + 1))
        for r in range(4):
            a.valu("v_add_f32", s[r], s[r], xs[r])
        bf16_round_pair(a, s[0], s[1], V(TM))
        bf16_round_pair(a, s[2], s[3], V(TM))
        a.valu("v_lshlrev_b32", xs[0], 16, V(HR + 2 * t))
        a.valu("v_and_b32", xs[1], "0xffff0000", V(HR + 2 * t))
        a.valu("v_lshlrev_b32", xs[2], 16, V(HR + 2 * t + 1))
        a.valu("v_and_b32", xs[3], "0xffff0000", V(HR + 2 * t + 1))
        for r in range(4):
            a.valu("v_add_f32", s[r], s[r], xs[r])
        a.valu("v_cvt_pk_bf16_f32", V(HR + 2 * t), s[0], s[1])
        a.valu("v_cvt_pk_bf16_f32", V(HR + 2 * t + 1), s[2], s[3])
        a.bstore(2, V(HR + 2 * t, 2), "v16", S(40, 4), 0, t * 32)
    a.label("K4_END")
    a.raw("    s_endpgm")
    return a.text() + kernel_desc(name, 140 + 64, 140), name, K4_LDS


HEADER = """; Kernarg layout for this problem (88 bytes, ptrs only, base s[0:1]):
"""


def main():
    ks = [gen_k1(), gen_k2(), gen_k3(), gen_k4()]
    out = HEADER
    for (_, name, lds) in ks:
        out += f"; @launch kernel={name} grid=(256,1,1) block=(256,1,1) lds={lds}\n"
    out += '.amdgcn_target "amdgcn-amd-amdhsa--gfx950"\n.text\n'
    for (txt, _, _) in ks:
        out += txt
    path = sys.argv[1] if len(sys.argv) > 1 else f"cdna_kernels/{NAME}.s"
    open(path, "w").write(out)
    print("wrote", path, len(out), "bytes")


if __name__ == "__main__":
    main()
```

```python
import re


def R(prefix, lo, n=1):
    if n == 1:
        return f"{prefix}{lo}"
    return f"{prefix}[{lo}:{lo + n - 1}]"


def V(lo, n=1):
    return R("v", lo, n)


def A(lo, n=1):
    return R("a", lo, n)


def S(lo, n=1):
    return R("s", lo, n)


_re_rng = re.compile(r"^([vas])\[(\d+):(\d+)\]$")
_re_one = re.compile(r"^([vas])(\d+)$")


def expand(op):
    if op is None:
        return []
    if isinstance(op, (int, float)):
        return []
    op = op.strip()
    if op.startswith("-"):
        op = op[1:]
    if op.startswith("abs(") and op.endswith(")"):
        op = op[4:-1]
    if op.startswith("|") and op.endswith("|"):
        op = op[1:-1]
    m = _re_rng.match(op)
    if m:
        return [f"{m.group(1)}{i}" for i in range(int(m.group(2)), int(m.group(3)) + 1)]
    m = _re_one.match(op)
    if m:
        return [op]
    if op == "vcc":
        return ["vcc"]
    if op in ("m0", "exec", "scc"):
        return [op]
    return []


class Ins:
    __slots__ = ("kind", "wr", "rd", "srcc", "ab", "states", "sub")

    def __init__(self, kind, wr=(), rd=(), srcc=(), ab=(), states=1, sub=None):
        self.kind = kind
        self.wr = set(wr)
        self.rd = set(rd)
        self.srcc = tuple(srcc)
        self.ab = set(ab)
        self.states = states
        self.sub = sub


VALU_KINDS = ("valu", "trans", "dot", "rdlane", "perml")


class Asm:
    def __init__(self):
        self.lines = []
        self.hist = []
        self.vmq = []
        self.lgq = []
        self.nops = 0

    def raw(self, text):
        self.lines.append(text)

    def comment(self, text):
        self.lines.append("    ; " + text)

    def label(self, name):
        self.flush()
        self.lines.append(name + ":")

    def flush(self):
        need = 0
        dist = 0
        for p in reversed(self.hist):
            req = 0
            if p.kind == "mfma":
                req = 8
            elif p.kind in VALU_KINDS:
                req = 5 if any(r[0] == "s" or r == "vcc" for r in p.wr) else 3
            elif p.kind == "wstore":
                req = 2
            elif p.kind == "salu" and "m0" in p.wr:
                req = 1
            need = max(need, req - dist)
            dist += p.states
        self._nop(need)
        self.hist = []

    def _nop(self, n):
        while n > 0:
            k = min(n, 16)
            self.lines.append(f"    s_nop {k - 1}")
            self.hist.append(Ins("nop", states=k))
            self.nops += 1
            n -= k

    def _required(self, p, c):
        req = 0
        pw = p.wr
        if p.kind in ("valu", "trans", "rdlane", "perml"):
            common_rd = pw & c.rd
            if c.kind == "mfma" and common_rd:
                req = max(req, 2)
            if p.kind == "trans" and c.kind in ("valu", "dot", "rdlane", "perml") and common_rd:
                req = max(req, 1)
            sg = {r for r in pw if r[0] == "s" or r == "vcc"}
            if sg & c.rd:
                if c.kind in VALU_KINDS:
                    req = max(req, 4 if c.kind == "rdlane" else 2)
                elif c.kind in ("vmem", "wstore", "dma"):
                    req = max(req, 5)
            if c.kind == "rdlane" and common_rd:
                req = max(req, 1)
            if c.kind == "perml" and common_rd:
                req = max(req, 2)
        if p.kind == "dot":
            touched = pw & (c.rd | c.wr)
            if touched:
                if c.kind == "dot" and c.sub == p.sub and not (pw & c.ab):
                    req = max(req, 0)
                else:
                    req = max(req, 3)
        if p.kind == "mfma":
            if c.kind == "mfma":
                if pw & c.ab:
                    req = max(req, 8)
                ov = pw & set(c.srcc)
                if ov:
                    if tuple(sorted(pw, key=_rk)) == tuple(sorted(c.srcc, key=_rk)):
                        req = max(req, 0)
                    else:
                        req = max(req, 6)
                elif pw & c.wr:
                    req = max(req, 8)
            else:
                if pw & (c.rd | c.wr):
                    req = max(req, 8)
                if c.kind in VALU_KINDS and (set(p.srcc) & c.wr):
                    req = max(req, 3)
        if p.kind == "salu" and "m0" in pw and c.kind == "dma":
            req = max(req, 1)
        if p.kind == "wstore":
            if p.rd & c.wr:
                req = max(req, 2 if c.kind in VALU_KINDS else 1)
        return req

    def ins(self, text, ins):
        need = 0
        dist = 0
        for p in reversed(self.hist):
            r = self._required(p, ins)
            if r - dist > need:
                need = r - dist
            dist += p.states
            if dist > 24:
                break
        self._nop(need)
        self.lines.append("    " + text)
        self.hist.append(ins)
        if len(self.hist) > 40:
            self.hist = self.hist[-40:]

    def valu(self, op, dst, *srcs, kind="valu", extra_wr=(), extra_rd=(), mods=""):
        wr = expand(dst) + [r for e in extra_wr for r in expand(e)]
        rd = [r for s in srcs for r in expand(s)] + [r for e in extra_rd for r in expand(e)]
        txt = f"{op} {dst}, " + ", ".join(str(s) for s in srcs) + mods
        self.ins(txt, Ins(kind, wr, rd))

    def trans(self, op, dst, src):
        self.valu(op, dst, src, kind="trans")

    def salu(self, op, dst, *srcs):
        wr = expand(dst)
        rd = [r for s in srcs for r in expand(s)]
        txt = f"{op} {dst}" + "".join(f", {s}" for s in srcs)
        self.ins(txt, Ins("salu", wr, rd))

    def scmp(self, op, a, b):
        self.ins(f"{op} {a}, {b}", Ins("salu", ["scc"], expand(a) + expand(b)))

    def branch(self, op, label):
        self.flush()
        self.lines.append(f"    {op} {label}")

    def dot2(self, dst, a, b, c):
        self.ins(
            f"v_dot2_f32_bf16 {dst}, {a}, {b}, {c}",
            Ins("dot", expand(dst), expand(a) + expand(b) + expand(c), ab=expand(a) + expand(b), sub="dot2"),
        )

    def mfma(self, d, a, b, c):
        cs = expand(c)
        self.ins(
            f"v_mfma_f32_16x16x32_bf16 {d}, {a}, {b}, {c}",
            Ins("mfma", expand(d), expand(a) + expand(b) + cs, srcc=cs, ab=expand(a) + expand(b)),
        )

    def rfl(self, sdst, vsrc):
        self.ins(f"v_readfirstlane_b32 {sdst}, {vsrc}", Ins("rdlane", expand(sdst), expand(vsrc)))

    def acc_read(self, vdst, asrc):
        self.valu("v_accvgpr_read_b32", vdst, asrc)

    def cmp(self, op, sdst, a, b):
        self.valu(op, sdst, a, b)

    def cndmask(self, dst, f, t, mask):
        self.valu("v_cndmask_b32", dst, f, t, mask)

    def bload(self, n, dst, voff, srd, soff=0, off=0, tag=None, flags=""):
        op = {1: "buffer_load_dword", 2: "buffer_load_dwordx2", 4: "buffer_load_dwordx4"}[n]
        txt = f"{op} {dst}, {voff}, {srd}, {soff} offen" + (f" offset:{off}" if off else "") + (" " + flags if flags else "")
        self.ins(txt, Ins("vmem", expand(dst), expand(voff) + expand(srd) + expand(soff)))
        self.vmq.append(tag)

    def bstore(self, n, src, voff, srd, soff=0, off=0, tag=None, flags=""):
        op = {1: "buffer_store_dword", 2: "buffer_store_dwordx2", 4: "buffer_store_dwordx4"}[n]
        txt = f"{op} {src}, {voff}, {srd}, {soff} offen" + (f" offset:{off}" if off else "") + (" " + flags if flags else "")
        kind = "wstore" if n == 4 else "vmem"
        self.ins(txt, Ins(kind, [], expand(src) + expand(voff) + expand(srd) + expand(soff)))
        self.vmq.append(tag)

    def dma(self, voff, srd, soff, tag=None, flags=""):
        txt = f"buffer_load_dwordx4 {voff}, {srd}, {soff} offen lds" + (" " + flags if flags else "")
        self.ins(txt, Ins("dma", [], expand(voff) + expand(srd) + expand(soff) + ["m0"]))
        self.vmq.append(tag)

    def batomic_add_ret(self, vdata, voff, srd, tag=None):
        txt = f"buffer_atomic_add {vdata}, {voff}, {srd}, 0 offen sc0"
        self.ins(txt, Ins("vmem", expand(vdata), expand(vdata) + expand(voff) + expand(srd)))
        self.vmq.append(tag)

    def ds_read(self, op, dst, addr, off=0, tag=None):
        txt = f"{op} {dst}, {addr}" + (f" offset:{off}" if off else "")
        self.ins(txt, Ins("ds", expand(dst), expand(addr)))
        self.lgq.append(tag)

    def ds_write(self, op, addr, src, off=0, tag=None):
        txt = f"{op} {addr}, {src}" + (f" offset:{off}" if off else "")
        self.ins(txt, Ins("ds", [], expand(addr) + expand(src)))
        self.lgq.append(tag)

    def bperm(self, dst, addr, src, tag=None):
        self.ins(f"ds_bpermute_b32 {dst}, {addr}, {src}", Ins("ds", expand(dst), expand(addr) + expand(src)))
        self.lgq.append(tag)

    def _count_after(self, q, tags):
        if not isinstance(tags, list):
            tags = [tags]
        last = -1
        for i, t in enumerate(q):
            if t in tags:
                last = i
        if last < 0:
            return None
        return len(q) - 1 - last

    def wait_vm(self, tags):
        n = self._count_after(self.vmq, tags)
        if n is None:
            return
        assert n <= 63, n
        self.ins(f"s_waitcnt vmcnt({n})", Ins("wait"))
        self.vmq = self.vmq[len(self.vmq) - n :] if n else []

    def wait_lg(self, tags):
        n = self._count_after(self.lgq, tags)
        if n is None:
            return
        assert n <= 15, n
        self.ins(f"s_waitcnt lgkmcnt({n})", Ins("wait"))
        self.lgq = self.lgq[len(self.lgq) - n :] if n else []

    def wait_vm0(self):
        self.ins("s_waitcnt vmcnt(0)", Ins("wait"))
        self.vmq = []

    def wait_lg0(self):
        self.ins("s_waitcnt lgkmcnt(0)", Ins("wait"))
        self.lgq = []

    def barrier(self):
        self.ins("s_barrier", Ins("wait"))

    stamps = False
    nstamp = 0

    def stamp(self):
        if not self.stamps:
            return
        self.ins("s_memtime s[98:99]", Ins("salu", ["s98", "s99"]))
        self.wait_lg0()
        self.salu("s_mov_b32", f"s{70 + self.nstamp}", "s98")
        self.nstamp += 1

    def dump_stamps(self, ws_lo, kidx):
        if not self.stamps:
            return
        self.salu("s_add_u32", "s64", f"s{ws_lo}", (15 << 20) + kidx * 262144)
        self.salu("s_addc_u32", "s65", f"s{ws_lo + 1}", 0)
        self.salu("s_and_b32", "s65", "s65", "0xffff")
        self.salu("s_mov_b32", "s66", 262144)
        self.salu("s_mov_b32", "s67", "0x20000")
        self.salu("s_lshl_b32", "s68", "s2", 2)
        self.salu("s_add_u32", "s68", "s68", "s3")
        self.salu("s_lshl_b32", "s68", "s68", 7)
        self.salu("s_mov_b64", "exec", 1)
        self.valu("v_mov_b32", "v1", 0)
        for i in range(self.nstamp):
            self.valu("v_mov_b32", "v2", f"s{70 + i}")
            self.bstore(1, "v2", "v1", "s[64:67]", "s68", i * 4)
            self.wait_vm0()

    def text(self):
        return "\n".join(self.lines) + "\n"


def _rk(r):
    return (r[0], int(r[1:]) if r[1:].isdigit() else 0)
```

```python
import sys, os, math
sys.path.insert(0, os.path.dirname(__file__))
from asmlib import Asm, V, A, S
if os.environ.get('STAMPS'):
    Asm.stamps = True

NAME = "sequential_preLN__linear_attn_block__mixer_channel_mlp__prompt"

PQ_OFF = 0
H_OFF = 2 << 20
H1_OFF = 4 << 20
KVP_OFF = 12 << 20
KVF_OFF = 13 << 20
Z_REL = 16384
HI = 65536

LOG2E = 1.4426950408889634


def f32bits(x):
    import struct
    return "0x%08x" % struct.unpack("<I", struct.pack("<f", x))[0]


def make_srd(a, sd, sb, off, nbytes):
    if off:
        a.salu("s_add_u32", S(sd), S(sb), off)
        a.salu("s_addc_u32", S(sd + 1), S(sb + 1), 0)
        a.salu("s_and_b32", S(sd + 1), S(sd + 1), "0xffff")
    else:
        a.salu("s_mov_b32", S(sd), S(sb))
        a.salu("s_and_b32", S(sd + 1), S(sb + 1), "0xffff")
    a.salu("s_mov_b32", S(sd + 2), nbytes)
    a.salu("s_mov_b32", S(sd + 3), "0x20000")


def lane_setup(a):
    a.valu("v_lshrrev_b32", "v4", 6, "v0")
    a.valu("v_and_b32", "v1", 63, "v0")
    a.rfl("s3", "v4")
    a.valu("v_and_b32", "v2", 15, "v1")
    a.valu("v_lshrrev_b32", "v3", 4, "v1")


def lref(regs, off):
    if off >= HI:
        assert off - HI < 65536
        return regs[1], off - HI
    return regs[0], off


def bf16_round_pair(a, x0, x1, tmp):
    a.valu("v_cvt_pk_bf16_f32", tmp, x0, x1)
    a.valu("v_lshlrev_b32", x0, 16, tmp)
    a.valu("v_and_b32", x1, "0xffff0000", tmp)


def bf16_round1(a, x, tmp):
    a.valu("v_cvt_pk_bf16_f32", tmp, x, x)
    a.valu("v_lshlrev_b32", x, 16, tmp)


def unpack2(a, lo, hi, src):
    a.valu("v_lshlrev_b32", lo, 16, src)
    a.valu("v_and_b32", hi, "0xffff0000", src)


def phi_pack(a, xs, out_pk, tmps, smask):
    e = tmps[:4]
    tp = tmps[4]
    for i in range(4):
        a.valu("v_mul_f32", e[i], f32bits(LOG2E), xs[i])
    for i in range(4):
        a.cmp("v_cmp_lt_f32", smask[i], 0, xs[i])
    for i in range(4):
        a.trans("v_exp_f32", e[i], e[i])
    for i in range(4):
        a.valu("v_add_f32", xs[i], 1.0, xs[i])
    for i in range(4):
        a.cndmask(xs[i], e[i], xs[i], smask[i])
    bf16_round_pair(a, xs[0], xs[1], tp)
    bf16_round_pair(a, xs[2], xs[3], tp)
    for i in range(4):
        a.valu("v_add_f32", xs[i], f32bits(1e-6), xs[i])
    a.valu("v_cvt_pk_bf16_f32", out_pk[0], xs[0], xs[1])
    a.valu("v_cvt_pk_bf16_f32", out_pk[1], xs[2], xs[3])


def ln_scalars(a, s1, s2, tmp, tmp2):
    a.valu("v_mul_f32", tmp, f32bits(1.0 / 512), s1)
    a.valu("v_mul_f32", tmp2, f32bits(1.0 / 512), s2)
    a.valu("v_fma_f32", tmp2, "-" + tmp, tmp, tmp2)
    a.valu("v_max_f32", tmp2, 0, tmp2)
    a.valu("v_cvt_pk_bf16_f32", s1, tmp, tmp2)
    a.valu("v_and_b32", s2, "0xffff0000", s1)
    a.valu("v_lshlrev_b32", s1, 16, s1)
    a.valu("v_add_f32", s2, f32bits(1e-5), s2)
    a.valu("v_cvt_pk_bf16_f32", s2, s2, s2)
    a.valu("v_lshlrev_b32", s2, 16, s2)
    a.trans("v_sqrt_f32", s2, s2)
    a.valu("v_cvt_pk_bf16_f32", s2, s2, s2)
    a.valu("v_lshlrev_b32", s2, 16, s2)


def kernel_header(a, name):
    a.raw(f".globl {name}")
    a.raw(".p2align 8")
    a.raw(f".type {name},@function")
    a.raw(f"{name}:")


def kernel_desc(name, nvgpr, accum_off, nsgpr=102):
    return f""".section .rodata,"a"
.p2align 6
.amdhsa_kernel {name}
  .amdhsa_next_free_vgpr {nvgpr}
  .amdhsa_next_free_sgpr {nsgpr}
  .amdhsa_accum_offset {accum_off}
  .amdhsa_group_segment_fixed_size 0
  .amdhsa_kernarg_size 88
  .amdhsa_user_sgpr_count 2
  .amdhsa_user_sgpr_kernarg_segment_ptr 1
  .amdhsa_system_sgpr_workgroup_id_x 1
.end_amdhsa_kernel
.text
"""


def map_16x16(a):
    a.salu("s_and_b32", "s4", "s2", 7)
    a.salu("s_lshr_b32", "s5", "s2", 3)
    a.salu("s_lshr_b32", "s6", "s4", 1)
    a.salu("s_lshl_b32", "s6", "s6", 2)
    a.salu("s_and_b32", "s7", "s5", 3)
    a.salu("s_add_u32", "s6", "s6", "s7")
    a.salu("s_and_b32", "s7", "s4", 1)
    a.salu("s_lshl_b32", "s7", "s7", 3)
    a.salu("s_lshr_b32", "s5", "s5", 2)
    a.salu("s_add_u32", "s7", "s7", "s5")


def map_32x8(a):
    a.salu("s_and_b32", "s4", "s2", 7)
    a.salu("s_lshr_b32", "s5", "s2", 3)
    a.salu("s_lshl_b32", "s6", "s4", 2)
    a.salu("s_and_b32", "s7", "s5", 3)
    a.salu("s_add_u32", "s6", "s6", "s7")
    a.salu("s_lshr_b32", "s7", "s5", 2)


def act128_setup(a, vdma, vrd0lo, vrd0hi, vrd1lo, vrd1hi, t0, t1):
    a.valu("v_lshrrev_b32", t0, 3, "v1")
    a.valu("v_and_b32", t1, 7, "v1")
    a.valu("v_xor_b32", t1, t1, t0)
    a.valu("v_lshlrev_b32", t0, 10, t0)
    a.valu("v_lshl_add_u32", vdma, t1, 4, t0)
    a.valu("v_and_b32", t0, 7, "v2")
    a.valu("v_xor_b32", t0, t0, "v3")
    a.salu("s_lshl_b32", "s9", "s3", 12)
    a.valu("v_lshl_add_u32", t1, "v2", 7, "s9")
    a.valu("v_lshl_add_u32", vrd0lo, t0, 4, t1)
    a.valu("v_xor_b32", vrd1lo, 64, vrd0lo)
    a.valu("v_add_u32", vrd0hi, HI, vrd0lo)
    a.valu("v_add_u32", vrd1hi, HI, vrd1lo)


K1_SLOT = 16384 + 12288
K1_AUX = 4 * K1_SLOT
K1_STAT = 0
K1_CS = 1024
K1_FLAG = 1536
K1_LDS = K1_AUX + 2048
K1_QT = 0
K1_KV = 8192


def gen_k1():
    a = Asm()
    name = "k1_qkv_kernel"
    kernel_header(a, name)
    a.scmp("s_cmp_ge_u32", "s2", 256)
    a.raw("    s_cbranch_scc1 K1_END")
    a.raw("    s_load_dwordx4 s[16:19], s[0:1], 0")
    a.raw("    s_load_dwordx4 s[20:23], s[0:1], 72")
    lane_setup(a)
    map_16x16(a)
    a.salu("s_lshl_b32", "s8", "s6", 7)
    a.salu("s_lshl_b32", "s9", "s3", 5)
    a.salu("s_add_u32", "s8", "s8", "s9")
    act128_setup(a, "v4", "v5", "v6", "v7", "v8", "v9", "v10")
    ARD = [("v5", "v6"), ("v7", "v8")]
    a.valu("v_lshrrev_b32", "v9", 2, "v1")
    a.valu("v_lshrrev_b32", "v10", 4, "v1")
    a.valu("v_and_b32", "v11", 3, "v9")
    a.valu("v_lshl_add_u32", "v11", "v10", 3, "v11")
    a.salu("s_movk_i32", "s10", 3072)
    a.valu("v_mul_lo_u32", "v11", "v11", "s10")
    a.valu("v_bfe_u32", "v12", "v1", 1, 1)
    a.valu("v_and_b32", "v10", 1, "v10")
    a.valu("v_xor_b32", "v12", "v12", "v10")
    a.valu("v_lshl_add_u32", "v11", "v12", 5, "v11")
    a.valu("v_and_b32", "v12", 1, "v1")
    a.valu("v_lshl_add_u32", "v9", "v12", 4, "v11")
    a.valu("v_lshrrev_b32", "v10", 2, "v2")
    a.valu("v_lshl_add_u32", "v10", "v3", 2, "v10")
    a.valu("v_lshlrev_b32", "v10", 6, "v10")
    a.valu("v_and_b32", "v11", 3, "v1")
    a.valu("v_lshl_add_u32", "v10", "v11", 3, "v10")
    a.valu("v_and_b32", "v11", 1, "v3")
    a.valu("v_lshl_add_u32", "v10", "v11", 5, "v10")
    a.valu("v_add_u32", "v11", HI, "v10")
    a.valu("v_xor_b32", "v12", 32, "v10")
    a.valu("v_add_u32", "v13", HI, "v12")
    BRD = [("v10", "v11"), ("v12", "v13")]
    a.salu("s_and_b32", "s10", "s3", 1)
    a.salu("s_lshl_b32", "s10", "s10", 5)
    a.valu("v_xor_b32", "v16", "s10", "v10")
    a.salu("s_lshr_b32", "s10", "s3", 1)
    a.salu("s_lshl_b32", "s10", "s10", 12)
    a.valu("v_add_u32", "v14", "s10", "v16")
    a.valu("v_add_u32", "v15", HI, "v14")
    a.valu("v_add_u32", "v17", HI, "v16")
    XRD = [("v14", "v15"), ("v16", "v17")]
    ONES = 20
    for i in range(4):
        a.valu("v_mov_b32", V(ONES + i), "0x3f803f80")
    a.raw("    s_waitcnt lgkmcnt(0)")
    make_srd(a, 24, 16, 0, 2048 * 512 * 2)
    make_srd(a, 28, 18, 0, 512 * 1536 * 2)
    make_srd(a, 32, 22, PQ_OFF, 2048 * 512 * 2)
    make_srd(a, 36, 22, KVP_OFF, 1 << 20)
    make_srd(a, 40, 22, KVF_OFF, 32768)
    make_srd(a, 44, 20, 0, 256)
    a.salu("s_lshl_b32", "s12", "s8", 10)
    a.salu("s_lshr_b32", "s10", "s3", 1)
    a.salu("s_lshl_b32", "s10", "s10", 5)
    a.salu("s_and_b32", "s11", "s3", 1)
    a.salu("s_lshl_b32", "s11", "s11", 2)
    a.salu("s_add_u32", "s10", "s10", "s11")
    a.salu("s_mul_i32", "s10", "s10", 3072)
    a.salu("s_lshl_b32", "s11", "s7", 6)
    a.salu("s_add_u32", "s10", "s10", "s11")
    a.salu("s_lshl_b32", "s11", "s3", 10)

    def issue(C):
        sl = (C % 4) * K1_SLOT
        for j in range(4):
            a.salu("s_add_u32", "s13", "s12", j * 8192 + C * 128)
            a.salu("s_add_u32", "m0", "s9", sl + j * 1024)
            a.dma("v4", S(24, 4), "s13", tag=("L", C))
        for sub in range(3):
            a.salu("s_add_u32", "s13", "s10", C * 196608 + sub * 1024)
            a.salu("s_add_u32", "m0", "s11", sl + 16384 + sub * 4096)
            a.dma("v9", S(28, 4), "s13", tag=("L", C))

    FB = 24
    ST = 104

    def fa(buf, mt):
        return FB + (buf * 10 + mt) * 4

    def fb(buf, tile):
        return FB + (buf * 10 + 2 + tile) * 4

    def reads(ks, part):
        buf = ks & 1
        C, s = ks >> 1, ks & 1
        sl = (C % 4) * K1_SLOT
        if part == 0:
            for mt in range(2):
                r, o = lref(ARD[s], sl + mt * 2048)
                a.ds_read("ds_read_b128", V(fa(buf, mt), 4), r, o, tag=("R", ks))
        lst = []
        for tile in range(6):
            sub, t = tile >> 1, tile & 1
            lst.append((fb(buf, tile), BRD[t], sl + 16384 + sub * 4096 + s * 2048))
        lst.append((fb(buf, 6), XRD[0], sl + 16384 + s * 2048))
        lst.append((fb(buf, 7), XRD[1], sl + 16384 + 8192 + s * 2048))
        sel = lst[:3] if part == 0 else lst[3:]
        for (reg, regs, o) in sel:
            for hh in range(2):
                r, oo = lref(regs, o + hh * 1024)
                a.ds_read("ds_read_b64_tr_b16", V(reg + 2 * hh, 2), r, oo, tag=("R", ks))

    def acc(mt, tile):
        return (mt * 6 + tile) * 4
    CSA = 48
    for i in range(4):
        a.valu("v_mov_b32", V(ST + i), 0)
    a.stamp()
    for C in range(3):
        issue(C)
    a.stamp()
    a.wait_vm(("L", 0))
    a.barrier()
    a.stamp()
    issue(3)
    reads(0, 0)
    reads(0, 1)
    for ks in range(16):
        buf = ks & 1
        nxt = ks + 1 < 16
        if nxt:
            if (ks + 1) % 2 == 0:
                C = (ks + 1) // 2
                a.wait_lg(("R", ks))
                a.wait_vm(("L", C))
                a.barrier()
                if C + 3 < 8:
                    issue(C + 3)
            reads(ks + 1, 0)
        a.wait_lg(("R", ks))
        dots = []
        for mt in range(2):
            for j in range(4):
                r = V(fa(buf, mt) + j)
                dots.append((V(ST + 2 * mt), r, V(ONES)))
                dots.append((V(ST + 2 * mt + 1), r, r))
        di = 0
        n = 0
        for tile in range(6):
            for mt in range(2):
                c = A(acc(mt, tile), 4) if ks else 0
                if tile < 2:
                    a.mfma(A(acc(mt, tile), 4), V(fb(buf, tile), 4), V(fa(buf, mt), 4), c)
                else:
                    a.mfma(A(acc(mt, tile), 4), V(fa(buf, mt), 4), V(fb(buf, tile), 4), c)
                for _ in range(2 if n % 3 != 2 else 0):
                    if di < len(dots):
                        d, x, y = dots[di]
                        a.dot2(d, x, y, d)
                        di += 1
                if n == 4 and nxt:
                    reads(ks + 1, 1)
                n += 1
        for e in range(2):
            c = A(CSA + 4 * e, 4) if ks else 0
            a.mfma(A(CSA + 4 * e, 4), V(ONES, 4), V(fb(buf, 6 + e), 4), c)
        while di < len(dots):
            d, x, y = dots[di]
            a.dot2(d, x, y, d)
            di += 1

    a.stamp()
    T = 24
    a.valu("v_xor_b32", V(T), 16, "v1")
    a.valu("v_lshlrev_b32", V(T), 2, V(T))
    a.valu("v_xor_b32", V(T + 1), 32, "v1")
    a.valu("v_lshlrev_b32", V(T + 1), 2, V(T + 1))
    for step in range(2):
        for i in range(4):
            a.bperm(V(T + 2 + i), V(T + step), V(ST + i), tag="P")
        a.wait_lg("P")
        for i in range(4):
            a.valu("v_add_f32", V(ST + i), V(ST + i), V(T + 2 + i))
    a.acc_read(V(T + 6), A(CSA))
    a.acc_read(V(T + 7), A(CSA + 4))
    a.salu("s_lshl_b32", "s12", "s3", 6)
    a.salu("s_add_u32", "s12", "s12", K1_AUX)
    a.valu("v_lshl_add_u32", V(T + 8), "v2", 2, "s12")
    a.salu("s_and_b32", "s12", "s3", 1)
    a.salu("s_lshl_b32", "s12", "s12", 6)
    a.salu("s_add_u32", "s12", "s12", K1_AUX)
    a.valu("v_lshl_add_u32", V(T + 9), "v2", 2, "s12")
    a.ds_write("ds_write_b32", V(T + 8), V(T + 6), K1_CS, tag="W")
    a.ds_write("ds_write_b32", V(T + 9), V(T + 7), K1_CS + 256, tag="W")
    for mt in range(2):
        ln_scalars(a, V(ST + 2 * mt), V(ST + 2 * mt + 1), V(T + 2), V(T + 3))
        a.trans("v_rcp_f32", V(ST + 2 * mt + 1), V(ST + 2 * mt + 1))
    a.salu("s_lshl_b32", "s12", "s3", 8)
    a.salu("s_add_u32", "s12", "s12", K1_AUX)
    a.valu("v_lshl_add_u32", V(T + 8), "v2", 2, "s12")
    for mt in range(2):
        for wh in range(2):
            a.ds_write("ds_write_b32", V(T + 8), V(ST + 2 * mt + wh), K1_STAT + mt * 128 + wh * 64, tag="W")
    a.wait_lg0()
    a.barrier()
    CSQ = T + 12
    CSK = T + 20
    STM = T + 24
    a.salu("s_mov_b32", "s13", K1_AUX)
    a.valu("v_lshl_add_u32", V(T + 9), "v3", 4, "s13")
    a.valu("v_lshl_add_u32", V(T + 10), "v2", 2, "s13")
    a.valu("v_lshl_add_u32", V(T + 8), "v3", 4, "s12")
    for t in range(2):
        a.ds_read("ds_read_b128", V(CSQ + 4 * t, 4), V(T + 9), K1_CS + t * 64, tag="X")
    for t in range(4):
        a.ds_read("ds_read_b32", V(CSK + t), V(T + 10), K1_CS + (2 + t) * 64, tag="X")
    for mt in range(2):
        for wh in range(2):
            a.ds_read("ds_read_b128", V(STM + (mt * 2 + wh) * 4, 4), V(T + 8), K1_STAT + mt * 128 + wh * 64, tag="X")
    a.salu("s_lshl_b32", "s13", "s3", 11)
    a.valu("v_lshl_add_u32", V(T + 10), "v2", 6, "s13")
    a.valu("v_lshl_add_u32", V(T + 10), "v3", 3, V(T + 10))
    a.valu("v_lshl_add_u32", V(T + 11), "v1", 4, "s13")
    a.wait_lg0()
    X = T + 40
    TM = T + 44
    PKO = T + 50
    QO = T + 66
    SM = [S(50, 2), S(52, 2), S(54, 2), S(56, 2)]
    for mt in range(2):
        for t in range(2):
            for r in range(4):
                a.acc_read(V(X + r), A(acc(mt, t) + r))
            for r in range(4):
                a.valu("v_fma_f32", V(X + r), "-" + V(ST + 2 * mt), V(CSQ + 4 * t + r), V(X + r))
            for r in range(4):
                a.valu("v_mul_f32", V(X + r), V(X + r), V(ST + 2 * mt + 1))
            bf16_round_pair(a, V(X), V(X + 1), V(TM))
            bf16_round_pair(a, V(X + 2), V(X + 3), V(TM))
            q = QO + (mt * 2 + t) * 2
            phi_pack(a, [V(X + r) for r in range(4)], [V(q), V(q + 1)], [V(TM + i) for i in range(5)], SM)
            a.ds_write("ds_write_b64", V(T + 10), V(q, 2), K1_QT + mt * 1024 + t * 32, tag="QW")
    a.valu("v_lshrrev_b32", V(T + 8), 2, "v1")
    a.valu("v_add_u32", V(T + 8), "s8", V(T + 8))
    a.valu("v_lshlrev_b32", V(T + 8), 10, V(T + 8))
    a.valu("v_and_b32", V(T + 9), 3, "v1")
    a.valu("v_lshl_add_u32", V(T + 8), V(T + 9), 4, V(T + 8))
    a.salu("s_lshl_b32", "s13", "s7", 6)
    a.salu("s_add_u32", "s14", "s13", 16384)
    a.wait_lg0()
    for mt in range(2):
        a.ds_read("ds_read_b128", V(QO + 4 * mt, 4), V(T + 11), K1_QT + mt * 1024, tag="QR")
    for mt in range(2):
        for tt in range(4):
            for r in range(4):
                a.acc_read(V(X + r), A(acc(mt, 2 + tt) + r))
            for r in range(4):
                a.valu("v_fma_f32", V(X + r), "-" + V(STM + (mt * 2) * 4 + r), V(CSK + tt), V(X + r))
            for r in range(4):
                a.valu("v_mul_f32", V(X + r), V(X + r), V(STM + (mt * 2 + 1) * 4 + r))
            o = PKO + (tt & 1) * 4 + mt * 2 + (8 if tt >= 2 else 0)
            if tt < 2:
                bf16_round_pair(a, V(X), V(X + 1), V(TM))
                bf16_round_pair(a, V(X + 2), V(X + 3), V(TM))
                phi_pack(a, [V(X + r) for r in range(4)], [V(o), V(o + 1)], [V(TM + i) for i in range(5)], SM)
            else:
                a.valu("v_cvt_pk_bf16_f32", V(o), V(X), V(X + 1))
                a.valu("v_cvt_pk_bf16_f32", V(o + 1), V(X + 2), V(X + 3))
            if mt == 0 and tt == 0:
                a.wait_lg0()
                a.bstore(4, V(QO, 4), V(T + 8), S(32, 4), "s13", 0)
                a.bstore(4, V(QO + 4, 4), V(T + 8), S(32, 4), "s14", 0)
    a.stamp()
    KD = T + 76
    for t in range(2):
        a.mfma(V(KD + 4 * t, 4), V(PKO + 4 * t, 4), V(PKO + 8 + 4 * t, 4), 0)
        a.mfma(V(KD + 8 + 4 * t, 4), V(PKO + 4 * t, 4), V(ONES, 4), 0)
    a.salu("s_lshl_b32", "s12", "s3", 12)
    a.valu("v_lshl_add_u32", V(T + 8), "v1", 4, "s12")
    for it in range(4):
        a.ds_write("ds_write_b128", V(T + 8), V(KD + 4 * it, 4), K1_KV + it * 1024, tag="W")
    a.wait_lg0()
    a.barrier()
    a.salu("s_lshl_b32", "s12", "s3", 10)
    a.valu("v_lshl_add_u32", V(T + 8), "v1", 4, "s12")
    for w in range(4):
        a.ds_read("ds_read_b128", V(KD + 4 * w, 4), V(T + 8), K1_KV + w * 4096, tag="X")
    a.wait_lg0()
    for r in range(4):
        a.valu("v_add_f32", V(KD + r), V(KD + r), V(KD + 4 + r))
        a.valu("v_add_f32", V(KD + 8 + r), V(KD + 8 + r), V(KD + 12 + r))
    for r in range(4):
        a.valu("v_add_f32", V(KD + r), V(KD + r), V(KD + 8 + r))
    a.salu("s_lshl_b32", "s13", "s7", 12)
    a.salu("s_add_u32", "s13", "s13", "s12")
    a.salu("s_lshl_b32", "s14", "s6", 16)
    a.salu("s_add_u32", "s14", "s14", "s13")
    a.valu("v_lshlrev_b32", V(T + 9), 4, "v1")
    a.bstore(4, V(KD, 4), V(T + 9), S(36, 4), "s14", 0, tag="SP", flags="sc1")
    a.wait_vm0()
    a.stamp()
    a.dump_stamps(22, 0)
    a.salu("s_mov_b64", "exec", -1)
    a.barrier()
    a.scmp("s_cmp_lg_u32", "s3", 0)
    a.branch("s_cbranch_scc1", "K1_NOATOM")
    a.salu("s_mov_b64", "exec", 1)
    a.salu("s_lshl_b32", "s15", "s7", 4)
    a.valu("v_mov_b32", V(T + 10), "s15")
    a.valu("v_mov_b32", V(T + 11), 1)
    a.valu("v_mov_b32", V(T + 12), K1_AUX + K1_FLAG)
    a.batomic_add_ret(V(T + 11), V(T + 10), S(44, 4))
    a.wait_vm0()
    a.ds_write("ds_write_b32", V(T + 12), V(T + 11), 0)
    a.wait_lg0()
    a.salu("s_mov_b64", "exec", -1)
    a.label("K1_NOATOM")
    a.barrier()
    a.valu("v_mov_b32", V(T + 12), K1_AUX + K1_FLAG)
    a.ds_read("ds_read_b32", V(T + 11), V(T + 12), 0)
    a.wait_lg0()
    a.rfl("s15", V(T + 11))
    a.scmp("s_cmp_lg_u32", "s15", 15)
    a.branch("s_cbranch_scc1", "K1_END")
    P = T + 16
    for rb in range(16):
        a.salu("s_add_u32", "s14", "s13", rb * 65536)
        a.bload(4, V(P + 4 * rb, 4), V(T + 9), S(36, 4), "s14", 0, tag=("LP", rb), flags="sc1")
    a.valu("v_lshrrev_b32", V(T + 10), 1, "v3")
    a.valu("v_lshlrev_b32", V(T + 10), 8, V(T + 10))
    a.valu("v_lshl_add_u32", V(T + 10), "v2", 4, V(T + 10))
    a.valu("v_and_b32", V(T + 11), 1, "v3")
    a.valu("v_lshl_add_u32", V(T + 10), V(T + 11), 3, V(T + 10))
    a.salu("s_and_b32", "s14", "s3", 1)
    a.salu("s_lshl_b32", "s14", "s14", 9)
    a.salu("s_lshl_b32", "s15", "s7", 10)
    a.salu("s_add_u32", "s14", "s14", "s15")
    a.salu("s_lshr_b32", "s15", "s3", 1)
    a.salu("s_lshl_b32", "s15", "s15", 14)
    a.salu("s_add_u32", "s14", "s14", "s15")
    for rb in range(1, 16):
        a.wait_vm(("LP", rb))
        for r in range(4):
            a.valu("v_add_f32", V(P + r), V(P + r), V(P + 4 * rb + r))
    a.valu("v_cvt_pk_bf16_f32", V(P), V(P), V(P + 1))
    a.valu("v_cvt_pk_bf16_f32", V(P + 1), V(P + 2), V(P + 3))
    a.bstore(2, V(P, 2), V(T + 10), S(40, 4), "s14", 0)
    a.label("K1_END")
    a.raw("    s_endpgm")
    return a.text() + kernel_desc(name, 120 + 56, 120), name, K1_LDS


def splitk_addr_setup(a, wave_lds, t0, t1, natural_k):
    if natural_k:
        a.valu("v_bfe_u32", "v10", "v1", 3, 2)
        a.valu("v_lshrrev_b32", t0, 5, "v1")
        a.valu("v_lshl_add_u32", "v10", t0, 3, "v10")
    else:
        a.valu("v_lshrrev_b32", "v10", 3, "v1")
    a.valu("v_bfe_u32", t0, "v1", 1, 2)
    a.valu("v_bfe_u32", t1, "v1", 4, 2)
    a.valu("v_xor_b32", t0, t0, t1)
    a.valu("v_lshlrev_b32", "v10", 10, "v10")
    a.valu("v_lshl_add_u32", "v10", t0, 5, "v10")
    a.valu("v_and_b32", t0, 1, "v1")
    a.valu("v_lshl_add_u32", "v10", t0, 4, "v10")
    a.valu("v_lshrrev_b32", t0, 2, "v2")
    a.valu("v_lshl_add_u32", "v12", "v3", 2, t0)
    a.valu("v_bfe_u32", t1, "v12", 1, 2)
    a.valu("v_lshlrev_b32", "v12", 7, "v12")
    a.valu("v_lshl_add_u32", "v12", t1, 5, "v12")
    a.valu("v_and_b32", t1, 3, "v1")
    a.valu("v_lshl_add_u32", "v12", t1, 3, "v12")
    a.valu("v_add_u32", "v12", "s9", "v12")
    for t in range(1, 4):
        a.valu("v_xor_b32", V(12 + t), t << 5, "v12")
    a.valu("v_lshrrev_b32", t0, 2, "v2")
    a.valu("v_sub_u32", t0, 4, t0)
    a.valu("v_and_b32", t0, 3, t0)
    a.valu("v_xor_b32", t0, t0, "v3")
    a.valu("v_lshl_add_u32", t1, "v2", 6, "s9")
    a.valu("v_lshl_add_u32", "v9", t0, 4, t1)
    a.valu("v_lshrrev_b32", t0, 4, "v1")
    a.valu("v_sub_u32", t0, 4, t0)
    a.valu("v_and_b32", t0, 3, t0)
    a.valu("v_and_b32", t1, 3, "v1")
    a.valu("v_xor_b32", t1, t1, t0)
    a.valu("v_lshlrev_b32", t1, 4, t1)
    a.valu("v_lshrrev_b32", t0, 2, "v1")


def splitk_reduce(a, RD, TM):
    a.valu("v_lshl_add_u32", "v17", "v2", 8, "s9")
    for t in range(4):
        a.valu("v_add_u32", V(TM), 4 * t, "v3")
        a.valu("v_xor_b32", V(TM), V(TM), "v2")
        a.valu("v_lshl_add_u32", V(TM + 1 + t), V(TM), 4, "v17")
    for mt in range(4):
        for t in range(4):
            a.ds_write("ds_write_b128", V(TM + 1 + t), A((mt * 4 + t) * 4, 4), mt * 4096, tag="W")
    a.valu("v_lshrrev_b32", V(TM + 6), 3, "v1")
    a.valu("v_and_b32", V(TM + 7), 7, "v1")
    a.valu("v_lshlrev_b32", V(TM + 7), 1, V(TM + 7))
    a.salu("s_lshl_b32", "s12", "s3", 12)
    a.valu("v_lshl_add_u32", V(TM + 8), V(TM + 6), 8, "s12")
    a.valu("v_xor_b32", V(TM + 7), V(TM + 7), V(TM + 6))
    a.valu("v_lshl_add_u32", V(TM + 9), V(TM + 7), 4, V(TM + 8))
    a.valu("v_xor_b32", V(TM + 10), 16, V(TM + 9))
    a.valu("v_xor_b32", V(TM + 11), 128, V(TM + 9))
    a.valu("v_xor_b32", V(TM + 12), 128, V(TM + 10))
    a.wait_lg0()
    a.barrier()
    for ps in range(2):
        for w in range(4):
            for h in range(2):
                a.ds_read("ds_read_b128", V(RD + ((ps * 4 + w) * 2 + h) * 4, 4), V(TM + 9 + 2 * ps + h),
                          w * 16384 + ps * 2048, tag=("X", ps))
    for ps in range(2):
        a.wait_lg(("X", ps))
        b = RD + ps * 32
        for j in range(8):
            a.valu("v_add_f32", V(b + j), V(b + j), V(b + 8 + j))
            a.valu("v_add_f32", V(b + 16 + j), V(b + 16 + j), V(b + 24 + j))
        for j in range(8):
            a.valu("v_add_f32", V(b + j), V(b + j), V(b + 16 + j))


K2_LDS = 131072


def gen_k2():
    a = Asm()
    name = "k2_attn_kernel"
    kernel_header(a, name)
    a.scmp("s_cmp_ge_u32", "s2", 256)
    a.raw("    s_cbranch_scc1 K2_END")
    a.raw("    s_load_dwordx2 s[16:17], s[0:1], 0")
    a.raw("    s_load_dwordx2 s[18:19], s[0:1], 16")
    a.raw("    s_load_dwordx2 s[22:23], s[0:1], 80")
    lane_setup(a)
    map_32x8(a)
    a.salu("s_lshl_b32", "s8", "s6", 6)
    a.salu("s_lshl_b32", "s9", "s3", 15)
    splitk_addr_setup(a, 32768, "v4", "v5", False)
    a.valu("v_lshl_add_u32", "v8", "v4", 10, "v5")
    a.valu("v_lshlrev_b32", "v6", 4, "v1")
    a.valu("v_lshrrev_b32", "v4", 3, "v1")
    a.salu("s_lshl_b32", "s10", "s3", 4)
    a.salu("s_add_u32", "s10", "s10", "s8")
    a.valu("v_add_u32", "v16", "s10", "v4")
    a.valu("v_lshlrev_b32", "v16", 10, "v16")
    a.valu("v_and_b32", "v4", 7, "v1")
    a.valu("v_lshl_add_u32", "v16", "v4", 4, "v16")
    a.salu("s_lshl_b32", "s10", "s7", 7)
    a.valu("v_add_u32", "v16", "s10", "v16")
    a.cmp("v_cmp_gt_u32", S(50, 2), 2, "v3")
    a.raw("    s_waitcnt lgkmcnt(0)")
    make_srd(a, 24, 16, 0, 2048 * 512 * 2)
    make_srd(a, 28, 18, 0, 512 * 512 * 2)
    make_srd(a, 32, 22, PQ_OFF, 2048 * 512 * 2)
    make_srd(a, 36, 22, H_OFF, 2048 * 512 * 2)
    make_srd(a, 40, 22, KVF_OFF, 32768)
    KV = 20
    ZZ = 36
    XR = 52
    a.stamp()
    a.salu("s_lshl_b32", "s11", "s3", 12)
    a.salu("s_add_u32", "s12", "s11", Z_REL)
    for p in range(4):
        a.bload(4, V(KV + 4 * p, 4), "v6", S(40, 4), "s11", p * 1024, tag="KV")
        a.bload(4, V(ZZ + 4 * p, 4), "v6", S(40, 4), "s12", p * 1024, tag="KV")
    a.salu("s_lshl_b32", "s11", "s8", 10)
    a.salu("s_lshl_b32", "s12", "s3", 8)
    a.salu("s_add_u32", "s11", "s11", "s12")
    a.salu("s_lshl_b32", "s13", "s3", 17)
    a.salu("s_add_u32", "s13", "s13", "s10")
    for p in range(4):
        for mt in range(4):
            a.salu("s_add_u32", "s12", "s11", mt * 16384 + p * 64)
            a.salu("s_add_u32", "m0", "s9", p * 4096 + mt * 1024)
            a.dma("v8", S(32, 4), "s12", tag=("Q", p))
        for j in range(4 * p, 4 * p + 4):
            a.salu("s_add_u32", "s12", "s13", j * 8192)
            a.salu("s_add_u32", "m0", "s9", 16384 + j * 1024)
            a.dma("v10", S(28, 4), "s12", tag=("B", p))
    for ps in range(2):
        a.salu("s_movk_i32", "s12", ps * 8192)
        a.bload(4, V(XR + 4 * ps, 4), "v16", S(24, 4), "s12", 0, tag="X")
    a.stamp()
    OPS = 60
    ND = 76
    OF = 92
    WF = 108
    QF = 124
    TM = 140
    a.wait_vm("KV")
    for p in range(4):
        for j in range(4):
            a.cndmask(V(OPS + j), 0, V(KV + 4 * p + j), S(50, 2))
            a.cndmask(V(OPS + 4 + j), V(KV + 4 * p + j), 0, S(50, 2))
            a.cndmask(V(OPS + 8 + j), 0, V(ZZ + 4 * p + j), S(50, 2))
            a.cndmask(V(OPS + 12 + j), V(ZZ + 4 * p + j), 0, S(50, 2))
        a.wait_vm(("Q", p))
        for mt in range(4):
            a.ds_read("ds_read_b128", V(QF + 4 * mt, 4), "v9", p * 4096 + mt * 1024, tag=("QR", mt))
        a.wait_vm(("B", p))
        for t in range(4):
            for hh in range(2):
                a.ds_read("ds_read_b64_tr_b16", V(WF + 4 * t + 2 * hh, 2), V(12 + t), 16384 + p * 4096 + hh * 2048, tag="R")
        for mt in range(4):
            a.wait_lg(("QR", mt))
            q = V(QF + 4 * mt, 4)
            for e in range(4):
                a.mfma(V(ND + 4 * e, 4), V(OPS + 4 * e, 4), q, 0)
            for hd in range(2):
                den = V(ND + 8 + 4 * hd)
                num = [V(ND + 4 * hd + r) for r in range(4)]
                bf16_round1(a, den, V(TM))
                a.valu("v_add_f32", den, f32bits(1e-6), den)
                bf16_round1(a, den, V(TM))
                a.trans("v_rcp_f32", den, den)
                bf16_round_pair(a, num[0], num[1], V(TM))
                bf16_round_pair(a, num[2], num[3], V(TM))
                for r in range(4):
                    a.valu("v_mul_f32", num[r], num[r], den)
                a.valu("v_cvt_pk_bf16_f32", V(OF + 4 * mt + 2 * hd), num[0], num[1])
                a.valu("v_cvt_pk_bf16_f32", V(OF + 4 * mt + 2 * hd + 1), num[2], num[3])
        a.wait_lg0()
        for t in range(4):
            for mt in range(4):
                d = A((mt * 4 + t) * 4, 4)
                a.mfma(d, V(WF + 4 * t, 4), V(OF + 4 * mt, 4), d if p else 0)
    a.stamp()
    a.barrier()
    a.salu("s_lshl_b32", "s9", "s3", 14)
    RD = 60
    splitk_reduce(a, RD, TM)
    a.wait_vm("X")
    for ps in range(2):
        s = [V(RD + ps * 32 + j) for j in range(8)]
        xs = [V(TM + 1 + j) for j in range(8)]
        for j in range(4):
            bf16_round_pair(a, s[2 * j], s[2 * j + 1], V(TM))
        for j in range(4):
            unpack2(a, xs[2 * j], xs[2 * j + 1], V(XR + 4 * ps + j))
        for j in range(8):
            a.valu("v_add_f32", s[j], s[j], xs[j])
        for j in range(4):
            a.valu("v_cvt_pk_bf16_f32", V(XR + 4 * ps + j), s[2 * j], s[2 * j + 1])
        a.salu("s_movk_i32", "s12", ps * 8192)
        a.bstore(4, V(XR + 4 * ps, 4), "v16", S(36, 4), "s12", 0)
    a.stamp()
    a.dump_stamps(22, 1)
    a.label("K2_END")
    a.raw("    s_endpgm")
    return a.text() + kernel_desc(name, 156 + 64, 156), name, K2_LDS


K3_SLOT = 32768
K3_AUX = 4 * K3_SLOT
K3_LDS = K3_AUX + 512


def gen_k3():
    a = Asm()
    name = "k3_mlp1_kernel"
    kernel_header(a, name)
    a.scmp("s_cmp_ge_u32", "s2", 256)
    a.raw("    s_cbranch_scc1 K3_END")
    a.raw("    s_load_dwordx4 s[16:19], s[0:1], 32")
    a.raw("    s_load_dwordx2 s[22:23], s[0:1], 80")
    lane_setup(a)
    map_16x16(a)
    a.salu("s_lshl_b32", "s8", "s6", 7)
    a.salu("s_lshl_b32", "s9", "s3", 5)
    a.salu("s_add_u32", "s8", "s8", "s9")
    act128_setup(a, "v4", "v5", "v6", "v7", "v8", "v9", "v10")
    ARD = [("v5", "v6"), ("v7", "v8")]
    a.salu("s_movk_i32", "s10", 3584)
    a.valu("v_mul_lo_u32", "v11", "v3", "s10")
    a.valu("v_and_b32", "v12", 1, "v1")
    a.valu("v_lshl_add_u32", "v11", "v12", 4, "v11")
    a.valu("v_bfe_u32", "v12", "v1", 1, 3)
    a.valu("v_xor_b32", "v12", "v12", "v3")
    a.valu("v_xor_b32", "v13", 4, "v12")
    a.valu("v_min_u32", "v12", 6, "v12")
    a.valu("v_min_u32", "v13", 6, "v13")
    a.valu("v_lshl_add_u32", "v9", "v12", 5, "v11")
    a.valu("v_lshl_add_u32", "v10", "v13", 5, "v11")
    a.valu("v_lshrrev_b32", "v11", 2, "v2")
    a.valu("v_lshl_add_u32", "v11", "v3", 2, "v11")
    a.valu("v_and_b32", "v12", 7, "v11")
    a.valu("v_lshlrev_b32", "v11", 8, "v11")
    a.valu("v_lshl_add_u32", "v11", "v12", 5, "v11")
    a.valu("v_and_b32", "v12", 3, "v1")
    a.valu("v_lshl_add_u32", "v11", "v12", 3, "v11")
    TB = 24
    for t in range(7):
        a.valu("v_xor_b32", V(TB + 2 * t), t << 5, "v11")
        a.valu("v_add_u32", V(TB + 2 * t + 1), HI, V(TB + 2 * t))
    a.salu("s_lshl_b32", "s10", "s3", 5)
    a.valu("v_xor_b32", V(TB + 14), "s10", "v11")
    a.valu("v_add_u32", V(TB + 15), HI, V(TB + 14))
    a.salu("s_add_u32", "s11", "s3", 4)
    a.salu("s_min_u32", "s11", "s11", 6)
    a.salu("s_lshl_b32", "s10", "s11", 5)
    a.valu("v_xor_b32", V(TB + 16), "s10", "v11")
    a.valu("v_add_u32", V(TB + 17), HI, V(TB + 16))
    BRD = [(V(TB + 2 * t), V(TB + 2 * t + 1)) for t in range(9)]
    ONES = 20
    for i in range(4):
        a.valu("v_mov_b32", V(ONES + i), "0x3f803f80")
    a.salu("s_mul_i32", "s14", "s7", 224)
    a.valu("v_lshl_add_u32", "v19", "v3", 3, "s14")
    a.raw("    s_waitcnt lgkmcnt(0)")
    make_srd(a, 24, 22, H_OFF, 2048 * 512 * 2)
    make_srd(a, 28, 16, 0, 512 * 1792 * 2)
    make_srd(a, 32, 22, H1_OFF, 2048 * 1792 * 2)
    make_srd(a, 36, 18, 0, 1792 * 2)
    a.salu("s_lshl_b32", "s12", "s8", 10)
    a.salu("s_lshr_b32", "s10", "s3", 1)
    a.salu("s_lshl_b32", "s10", "s10", 5)
    a.salu("s_and_b32", "s13", "s3", 1)
    a.salu("s_lshl_b32", "s13", "s13", 2)
    a.salu("s_add_u32", "s10", "s10", "s13")
    a.salu("s_mul_i32", "s10", "s10", 3584)
    a.salu("s_add_u32", "s10", "s10", "s14")

    def issue(C):
        sl = (C % 4) * K3_SLOT
        for j in range(4):
            a.salu("s_add_u32", "s13", "s12", j * 8192 + C * 128)
            a.salu("s_add_u32", "m0", "s9", sl + j * 1024)
            a.dma("v4", S(24, 4), "s13", tag=("L", C))
        for u in range(4):
            a.salu("s_add_u32", "s13", "s10", (64 * C + 8 * u) * 3584)
            a.salu("s_add_u32", "m0", "s9", sl + 16384 + u * 1024)
            a.dma("v9" if u % 2 == 0 else "v10", S(28, 4), "s13", tag=("L", C))

    FB = 44
    ST = 132
    B1R = 136

    def fa(buf, mt):
        return FB + (buf * 11 + mt) * 4

    def fb(buf, tile):
        return FB + (buf * 11 + 2 + tile) * 4

    def reads(ks, part):
        buf = ks & 1
        C, s = ks >> 1, ks & 1
        sl = (C % 4) * K3_SLOT
        if part == 0:
            for mt in range(2):
                r, o = lref(ARD[s], sl + mt * 2048)
                a.ds_read("ds_read_b128", V(fa(buf, mt), 4), r, o, tag=("R", ks))
        tl = list(range(3)) if part == 0 else list(range(3, 9))
        for t in tl:
            for hh in range(2):
                r, oo = lref(BRD[t], sl + 16384 + s * 8192 + hh * 4096)
                a.ds_read("ds_read_b64_tr_b16", V(fb(buf, t) + 2 * hh, 2), r, oo, tag=("R", ks))

    def acc(mt, t):
        return (mt * 7 + t) * 4
    CSA = 56
    for i in range(4):
        a.valu("v_mov_b32", V(ST + i), 0)
    a.stamp()
    for C in range(3):
        issue(C)
    a.stamp()
    a.wait_vm(("L", 0))
    a.barrier()
    a.stamp()
    issue(3)
    reads(0, 0)
    reads(0, 1)
    for ks in range(16):
        buf = ks & 1
        nxt = ks + 1 < 16
        if nxt:
            if (ks + 1) % 2 == 0:
                C = (ks + 1) // 2
                a.wait_lg(("R", ks))
                a.wait_vm(("L", C))
                a.barrier()
                if C + 3 < 8:
                    issue(C + 3)
                if C == 6:
                    for t in range(7):
                        a.bload(2, V(B1R + 2 * t, 2), "v19", S(36, 4), 0, t * 32, tag="B1")
            reads(ks + 1, 0)
        a.wait_lg(("R", ks))
        dots = []
        for mt in range(2):
            for j in range(4):
                r = V(fa(buf, mt) + j)
                dots.append((V(ST + 2 * mt), r, V(ONES)))
                dots.append((V(ST + 2 * mt + 1), r, r))
        di = 0
        n = 0
        for t in range(7):
            for mt in range(2):
                c = A(acc(mt, t), 4) if ks else 0
                a.mfma(A(acc(mt, t), 4), V(fb(buf, t), 4), V(fa(buf, mt), 4), c)
                for _ in range(2 if n < 8 else 0):
                    if di < len(dots):
                        d, x, y = dots[di]
                        a.dot2(d, x, y, d)
                        di += 1
                if n == 3 and nxt:
                    reads(ks + 1, 1)
                n += 1
        for e in range(2):
            c = A(CSA + 4 * e, 4) if ks else 0
            a.mfma(A(CSA + 4 * e, 4), V(ONES, 4), V(fb(buf, 7 + e), 4), c)
    a.stamp()
    T = 24
    a.valu("v_xor_b32", V(T), 16, "v1")
    a.valu("v_lshlrev_b32", V(T), 2, V(T))
    a.valu("v_xor_b32", V(T + 1), 32, "v1")
    a.valu("v_lshlrev_b32", V(T + 1), 2, V(T + 1))
    for step in range(2):
        for i in range(4):
            a.bperm(V(T + 2 + i), V(T + step), V(ST + i), tag="P")
        a.wait_lg("P")
        for i in range(4):
            a.valu("v_add_f32", V(ST + i), V(ST + i), V(T + 2 + i))
    a.acc_read(V(T + 6), A(CSA))
    a.acc_read(V(T + 7), A(CSA + 4))
    a.salu("s_lshl_b32", "s12", "s3", 6)
    a.salu("s_add_u32", "s12", "s12", K3_AUX)
    a.valu("v_lshl_add_u32", V(T + 8), "v2", 2, "s12")
    a.salu("s_lshl_b32", "s12", "s11", 6)
    a.salu("s_add_u32", "s12", "s12", K3_AUX)
    a.valu("v_lshl_add_u32", V(T + 9), "v2", 2, "s12")
    a.ds_write("ds_write_b32", V(T + 8), V(T + 6), 0, tag="W")
    a.ds_write("ds_write_b32", V(T + 9), V(T + 7), 0, tag="W")
    for mt in range(2):
        m1, s1 = V(ST + 2 * mt), V(ST + 2 * mt + 1)
        mean, var, t0, t1 = V(T + 2), V(T + 3), V(T + 4), V(T + 5)
        ln_scalars(a, m1, s1, mean, var)
        a.trans("v_rcp_f32", t0, s1)
        a.valu("v_sub_f32", mean, mean, m1)
        a.valu("v_mul_f32", mean, mean, t0)
        a.valu("v_mul_f32", var, var, t0)
        a.valu("v_mul_f32", var, var, t0)
        a.valu("v_cvt_pk_bf16_f32", t1, mean, var)
        a.valu("v_and_b32", var, "0xffff0000", t1)
        a.valu("v_lshlrev_b32", mean, 16, t1)
        a.valu("v_add_f32", var, f32bits(1e-5), var)
        bf16_round1(a, var, t1)
        a.trans("v_sqrt_f32", var, var)
        bf16_round1(a, var, t1)
        a.valu("v_fma_f32", m1, mean, s1, m1)
        a.trans("v_rcp_f32", var, var)
        a.valu("v_mul_f32", s1, t0, var)
    a.wait_lg0()
    a.barrier()
    CS = T + 12
    a.salu("s_mov_b32", "s12", K3_AUX)
    a.valu("v_lshl_add_u32", V(T + 9), "v3", 4, "s12")
    for t in range(7):
        a.ds_read("ds_read_b128", V(CS + 4 * t, 4), V(T + 9), t * 64, tag="X")
    a.salu("s_lshl_b32", "s13", "s3", 13)
    a.valu("v_mul_u32_u24", V(T + 10), 224, "v2")
    a.valu("v_lshl_add_u32", V(T + 10), "v3", 3, V(T + 10))
    a.valu("v_add_u32", V(T + 10), "s13", V(T + 10))
    a.valu("v_lshl_add_u32", V(T + 11), "v1", 4, "s13")
    SO = T + 60
    a.salu("s_movk_i32", "s15", 4682)
    a.salu("s_movk_i32", "s12", 3584)
    a.salu("s_mul_i32", "s13", "s8", 3584)
    a.salu("s_add_u32", "s13", "s13", "s14")
    for i in range(7):
        c, p, t_ = V(T + 2), V(T + 3), V(T + 4)
        a.valu("v_add_u32", c, 64 * i, "v1")
        a.valu("v_mul_lo_u32", p, c, "s15")
        a.valu("v_lshrrev_b32", p, 16, p)
        a.valu("v_mul_u32_u24", t_, 14, p)
        a.valu("v_sub_u32", c, c, t_)
        a.valu("v_mul_lo_u32", p, p, "s12")
        a.valu("v_lshl_add_u32", V(SO + i), c, 4, p)
    a.wait_lg0()
    a.wait_vm("B1")
    BB = T + 40
    X = T + 44
    E = T + 48
    TM = T + 52
    O = T + 54
    C0 = 2.0 * math.sqrt(2.0 / math.pi) * LOG2E
    C1 = C0 * 0.044715
    a.salu("s_mov_b32", "s50", f32bits(C1))
    a.salu("s_mov_b32", "s51", f32bits(C0))
    a.valu("v_mov_b32", V(T + 8), "s51")
    cnt = 0
    for t in range(7):
        unpack2(a, V(BB), V(BB + 1), V(B1R + 2 * t))
        unpack2(a, V(BB + 2), V(BB + 3), V(B1R + 2 * t + 1))
        for mt in range(2):
            for r in range(4):
                a.acc_read(V(X + r), A(acc(mt, t) + r))
            for r in range(4):
                a.valu("v_fma_f32", V(X + r), "-" + V(ST + 2 * mt), V(CS + 4 * t + r), V(X + r))
            for r in range(4):
                a.valu("v_mul_f32", V(X + r), V(X + r), V(ST + 2 * mt + 1))
            bf16_round_pair(a, V(X), V(X + 1), V(TM))
            bf16_round_pair(a, V(X + 2), V(X + 3), V(TM))
            for r in range(4):
                a.valu("v_add_f32", V(X + r), V(X + r), V(BB + r))
            bf16_round_pair(a, V(X), V(X + 1), V(TM))
            bf16_round_pair(a, V(X + 2), V(X + 3), V(TM))
            for r in range(4):
                a.valu("v_mul_f32", V(E + r), V(X + r), V(X + r))
            for r in range(4):
                a.valu("v_fma_f32", V(E + r), V(E + r), "s50", V(T + 8))
            for r in range(4):
                a.valu("v_mul_f32", V(E + r), "-" + V(E + r), V(X + r))
            for r in range(4):
                a.trans("v_exp_f32", V(E + r), V(E + r))
            for r in range(4):
                a.valu("v_add_f32", V(E + r), 1.0, V(E + r))
            for r in range(4):
                a.trans("v_rcp_f32", V(E + r), V(E + r))
            for r in range(4):
                a.valu("v_mul_f32", V(X + r), V(X + r), V(E + r))
            o = O + 2 * (cnt & 1)
            cnt += 1
            a.valu("v_cvt_pk_bf16_f32", V(o), V(X), V(X + 1))
            a.valu("v_cvt_pk_bf16_f32", V(o + 1), V(X + 2), V(X + 3))
            a.ds_write("ds_write_b64", V(T + 10), V(o, 2), mt * 3584 + t * 32, tag="OW")
    a.wait_lg0()
    RB = T + 68
    for i in range(7):
        a.ds_read("ds_read_b128", V(RB + 4 * i, 4), V(T + 11), i * 1024, tag=("OR", i))
    for i in range(7):
        a.wait_lg(("OR", i))
        a.bstore(4, V(RB + 4 * i, 4), V(SO + i), S(32, 4), "s13", 0)
    a.stamp()
    a.dump_stamps(22, 2)
    a.label("K3_END")
    a.raw("    s_endpgm")
    return a.text() + kernel_desc(name, 152 + 64, 152), name, K3_LDS


K4_D = 4
K4_LDS = 131072


def gen_k4():
    a = Asm()
    name = "k4_mlp2_kernel"
    kernel_header(a, name)
    a.scmp("s_cmp_ge_u32", "s2", 256)
    a.raw("    s_cbranch_scc1 K4_END")
    a.raw("    s_load_dwordx4 s[16:19], s[0:1], 48")
    a.raw("    s_load_dwordx2 s[20:21], s[0:1], 64")
    a.raw("    s_load_dwordx2 s[22:23], s[0:1], 80")
    lane_setup(a)
    map_32x8(a)
    a.salu("s_lshl_b32", "s8", "s6", 6)
    a.salu("s_lshl_b32", "s9", "s3", 15)
    splitk_addr_setup(a, 32768, "v4", "v5", True)
    a.salu("s_movk_i32", "s10", 3584)
    a.valu("v_mul_lo_u32", "v4", "v4", "s10")
    a.valu("v_add_u32", "v8", "v4", "v5")
    a.valu("v_lshrrev_b32", "v4", 3, "v1")
    a.salu("s_lshl_b32", "s10", "s3", 4)
    a.salu("s_add_u32", "s10", "s10", "s8")
    a.valu("v_add_u32", "v16", "s10", "v4")
    a.valu("v_lshlrev_b32", "v16", 10, "v16")
    a.valu("v_and_b32", "v4", 7, "v1")
    a.valu("v_lshl_add_u32", "v16", "v4", 4, "v16")
    a.salu("s_lshl_b32", "s10", "s7", 7)
    a.valu("v_add_u32", "v16", "s10", "v16")
    a.valu("v_lshl_add_u32", "v18", "v4", 4, "s10")
    a.raw("    s_waitcnt lgkmcnt(0)")
    make_srd(a, 24, 22, H1_OFF, 2048 * 1792 * 2)
    make_srd(a, 28, 16, 0, 1792 * 512 * 2)
    make_srd(a, 32, 22, H_OFF, 2048 * 512 * 2)
    make_srd(a, 36, 18, 0, 512 * 2)
    make_srd(a, 40, 20, 0, 2048 * 512 * 2)
    a.salu("s_mul_i32", "s11", "s3", 448 * 1024)
    a.salu("s_add_u32", "s11", "s11", "s10")
    a.salu("s_mul_i32", "s13", "s8", 3584)
    a.salu("s_mul_i32", "s12", "s3", 896)
    a.salu("s_add_u32", "s13", "s13", "s12")
    D = K4_D
    FR = 20
    HR = 84
    B2R = 92
    TM = 96
    JOFF = [0, 16, 4, 20]

    def issue(ks):
        sl = ks % D
        for mt in range(4):
            a.salu("s_add_u32", "s12", "s13", mt * 16 * 3584 + ks * 64)
            a.salu("s_add_u32", "m0", "s9", sl * 4096 + mt * 1024)
            a.dma("v8", S(24, 4), "s12", tag=("L", ks))
        for j in range(4):
            a.salu("s_add_u32", "s12", "s11", (32 * ks + JOFF[j]) * 1024)
            a.salu("s_add_u32", "m0", "s9", 16384 + sl * 4096 + j * 1024)
            a.dma("v10", S(28, 4), "s12", tag=("L", ks))

    def reads(ks):
        sl = ks % D
        b = ks & 1
        for mt in range(4):
            a.ds_read("ds_read_b128", V(FR + (b * 8 + mt) * 4, 4), "v9", sl * 4096 + mt * 1024, tag=("R", ks))
        for t in range(4):
            for hh in range(2):
                a.ds_read("ds_read_b64_tr_b16", V(FR + (b * 8 + 4 + t) * 4 + 2 * hh, 2), V(12 + t),
                          16384 + sl * 4096 + hh * 2048, tag=("R", ks))

    a.stamp()
    for ks in range(D):
        issue(ks)
    a.stamp()
    a.wait_vm(("L", 0))
    a.stamp()
    reads(0)
    for ks in range(14):
        b = ks & 1
        if ks + 1 < 14:
            a.wait_vm(("L", ks + 1))
            reads(ks + 1)
        a.wait_lg(("R", ks))
        if ks + D < 14:
            issue(ks + D)
        if ks == 9:
            for ps in range(2):
                a.salu("s_movk_i32", "s12", ps * 8192)
                a.bload(4, V(HR + 4 * ps, 4), "v16", S(32, 4), "s12", 0, tag="E")
            a.bload(4, V(B2R, 4), "v18", S(36, 4), 0, 0, tag="E")
        for t in range(4):
            for mt in range(4):
                d = A((mt * 4 + t) * 4, 4)
                a.mfma(d, V(FR + (b * 8 + 4 + t) * 4, 4), V(FR + (b * 8 + mt) * 4, 4), d if ks else 0)
    a.stamp()
    a.barrier()
    a.salu("s_lshl_b32", "s9", "s3", 14)
    RD = 20
    TM2 = 100
    splitk_reduce(a, RD, TM2)
    a.wait_vm("E")
    bs = [V(TM2 + 14 + j) for j in range(8)]
    for j in range(4):
        unpack2(a, bs[2 * j], bs[2 * j + 1], V(B2R + j))
    for ps in range(2):
        s = [V(RD + ps * 32 + j) for j in range(8)]
        xs = [V(TM2 + 1 + j) for j in range(8)]
        for j in range(4):
            bf16_round_pair(a, s[2 * j], s[2 * j + 1], V(TM2))
        for j in range(8):
            a.valu("v_add_f32", s[j], s[j], bs[j])
        for j in range(4):
            bf16_round_pair(a, s[2 * j], s[2 * j + 1], V(TM2))
        for j in range(4):
            unpack2(a, xs[2 * j], xs[2 * j + 1], V(HR + 4 * ps + j))
        for j in range(8):
            a.valu("v_add_f32", s[j], s[j], xs[j])
        for j in range(4):
            a.valu("v_cvt_pk_bf16_f32", V(HR + 4 * ps + j), s[2 * j], s[2 * j + 1])
        a.salu("s_movk_i32", "s12", ps * 8192)
        a.bstore(4, V(HR + 4 * ps, 4), "v16", S(40, 4), "s12", 0)
    a.stamp()
    a.dump_stamps(22, 3)
    a.label("K4_END")
    a.raw("    s_endpgm")
    return a.text() + kernel_desc(name, 124 + 64, 124), name, K4_LDS


HEADER = """; Kernarg layout for this problem (88 bytes, ptrs only, base s[0:1]):
"""


def main():
    ks = [gen_k1(), gen_k2(), gen_k3(), gen_k4()]
    out = HEADER
    for (_, name, lds) in ks:
        out += f"; @launch kernel={name} grid=(256,1,1) block=(256,1,1) lds={lds}\n"
    out += '.amdgcn_target "amdgcn-amd-amdhsa--gfx950"\n.text\n'
    for (txt, _, _) in ks:
        out += txt
    path = sys.argv[1] if len(sys.argv) > 1 else f"cdna_kernels/{NAME}.s"
    open(path, "w").write(out)
    print("wrote", path, len(out), "bytes")


if __name__ == "__main__":
    main()
```

```python
import re


def R(prefix, lo, n=1):
    if n == 1:
        return f"{prefix}{lo}"
    return f"{prefix}[{lo}:{lo + n - 1}]"


def V(lo, n=1):
    return R("v", lo, n)


def A(lo, n=1):
    return R("a", lo, n)


def S(lo, n=1):
    return R("s", lo, n)


_re_rng = re.compile(r"^([vas])\[(\d+):(\d+)\]$")
_re_one = re.compile(r"^([vas])(\d+)$")


def expand(op):
    if op is None:
        return []
    if isinstance(op, (int, float)):
        return []
    op = op.strip()
    if op.startswith("-"):
        op = op[1:]
    if op.startswith("abs(") and op.endswith(")"):
        op = op[4:-1]
    if op.startswith("|") and op.endswith("|"):
        op = op[1:-1]
    m = _re_rng.match(op)
    if m:
        return [f"{m.group(1)}{i}" for i in range(int(m.group(2)), int(m.group(3)) + 1)]
    m = _re_one.match(op)
    if m:
        return [op]
    if op == "vcc":
        return ["vcc"]
    if op in ("m0", "exec", "scc"):
        return [op]
    return []


class Ins:
    __slots__ = ("kind", "wr", "rd", "srcc", "ab", "states", "sub")

    def __init__(self, kind, wr=(), rd=(), srcc=(), ab=(), states=1, sub=None):
        self.kind = kind
        self.wr = set(wr)
        self.rd = set(rd)
        self.srcc = tuple(srcc)
        self.ab = set(ab)
        self.states = states
        self.sub = sub


VALU_KINDS = ("valu", "trans", "dot", "rdlane", "perml")


class Asm:
    def __init__(self):
        self.lines = []
        self.hist = []
        self.vmq = []
        self.lgq = []
        self.nops = 0

    def raw(self, text):
        self.lines.append(text)

    def comment(self, text):
        self.lines.append("    ; " + text)

    def label(self, name):
        self.flush()
        self.lines.append(name + ":")

    def flush(self):
        need = 0
        dist = 0
        for p in reversed(self.hist):
            req = 0
            if p.kind == "mfma":
                req = 8
            elif p.kind in VALU_KINDS:
                req = 5 if any(r[0] == "s" or r == "vcc" for r in p.wr) else 3
            elif p.kind == "wstore":
                req = 2
            elif p.kind == "salu" and "m0" in p.wr:
                req = 1
            need = max(need, req - dist)
            dist += p.states
        self._nop(need)
        self.hist = []

    def _nop(self, n):
        while n > 0:
            k = min(n, 16)
            self.lines.append(f"    s_nop {k - 1}")
            self.hist.append(Ins("nop", states=k))
            self.nops += 1
            n -= k

    def _required(self, p, c):
        req = 0
        pw = p.wr
        if p.kind in ("valu", "trans", "rdlane", "perml"):
            common_rd = pw & c.rd
            if c.kind == "mfma" and common_rd:
                req = max(req, 2)
            if p.kind == "trans" and c.kind in ("valu", "dot", "rdlane", "perml") and common_rd:
                req = max(req, 1)
            sg = {r for r in pw if r[0] == "s" or r == "vcc"}
            if sg & c.rd:
                if c.kind in VALU_KINDS:
                    req = max(req, 4 if c.kind == "rdlane" else 2)
                elif c.kind in ("vmem", "wstore", "dma"):
                    req = max(req, 5)
            if c.kind == "rdlane" and common_rd:
                req = max(req, 1)
            if c.kind == "perml" and common_rd:
                req = max(req, 2)
        if p.kind == "dot":
            touched = pw & (c.rd | c.wr)
            if touched:
                if c.kind == "dot" and c.sub == p.sub and not (pw & c.ab):
                    req = max(req, 0)
                else:
                    req = max(req, 3)
        if p.kind == "mfma":
            if c.kind == "mfma":
                if pw & c.ab:
                    req = max(req, 8)
                ov = pw & set(c.srcc)
                if ov:
                    if tuple(sorted(pw, key=_rk)) == tuple(sorted(c.srcc, key=_rk)):
                        req = max(req, 0)
                    else:
                        req = max(req, 6)
                elif pw & c.wr:
                    req = max(req, 8)
            else:
                if pw & (c.rd | c.wr):
                    req = max(req, 8)
                if c.kind in VALU_KINDS and (set(p.srcc) & c.wr):
                    req = max(req, 3)
        if p.kind == "salu" and "m0" in pw and c.kind == "dma":
            req = max(req, 1)
        if p.kind == "wstore":
            if p.rd & c.wr:
                req = max(req, 2 if c.kind in VALU_KINDS else 1)
        return req

    def ins(self, text, ins):
        need = 0
        dist = 0
        for p in reversed(self.hist):
            r = self._required(p, ins)
            if r - dist > need:
                need = r - dist
            dist += p.states
            if dist > 24:
                break
        self._nop(need)
        self.lines.append("    " + text)
        self.hist.append(ins)
        if len(self.hist) > 40:
            self.hist = self.hist[-40:]

    def valu(self, op, dst, *srcs, kind="valu", extra_wr=(), extra_rd=(), mods=""):
        wr = expand(dst) + [r for e in extra_wr for r in expand(e)]
        rd = [r for s in srcs for r in expand(s)] + [r for e in extra_rd for r in expand(e)]
        txt = f"{op} {dst}, " + ", ".join(str(s) for s in srcs) + mods
        self.ins(txt, Ins(kind, wr, rd))

    def trans(self, op, dst, src):
        self.valu(op, dst, src, kind="trans")

    def salu(self, op, dst, *srcs):
        wr = expand(dst)
        rd = [r for s in srcs for r in expand(s)]
        txt = f"{op} {dst}" + "".join(f", {s}" for s in srcs)
        self.ins(txt, Ins("salu", wr, rd))

    def scmp(self, op, a, b):
        self.ins(f"{op} {a}, {b}", Ins("salu", ["scc"], expand(a) + expand(b)))

    def branch(self, op, label):
        self.flush()
        self.lines.append(f"    {op} {label}")

    abl = set()

    def dot2(self, dst, a, b, c):
        if "nodots" in self.abl:
            return
        self.ins(
            f"v_dot2_f32_bf16 {dst}, {a}, {b}, {c}",
            Ins("dot", expand(dst), expand(a) + expand(b) + expand(c), ab=expand(a) + expand(b), sub="dot2"),
        )

    def mfma(self, d, a, b, c):
        if "nomfma" in self.abl:
            return
        cs = expand(c)
        self.ins(
            f"v_mfma_f32_16x16x32_bf16 {d}, {a}, {b}, {c}",
            Ins("mfma", expand(d), expand(a) + expand(b) + cs, srcc=cs, ab=expand(a) + expand(b)),
        )

    def mfma16(self, d, a, b, c):
        cs = expand(c)
        self.ins(
            f"v_mfma_f32_16x16x16_bf16 {d}, {a}, {b}, {c}",
            Ins("mfma", expand(d), expand(a) + expand(b) + cs, srcc=cs, ab=expand(a) + expand(b)),
        )

    def pk(self, op, dst, *srcs, sel=None, selhi=None, neglo=None, neghi=None):
        mods = ""
        if sel:
            mods += " op_sel:[" + ",".join(map(str, sel)) + "]"
        if selhi:
            mods += " op_sel_hi:[" + ",".join(map(str, selhi)) + "]"
        if neglo:
            mods += " neg_lo:[" + ",".join(map(str, neglo)) + "]"
        if neghi:
            mods += " neg_hi:[" + ",".join(map(str, neghi)) + "]"
        self.valu(op, dst, *srcs, mods=mods)

    def permswap(self, n, x, y):
        self.ins(f"v_permlane{n}_swap_b32 {x}, {y}", Ins("perml", expand(x) + expand(y), expand(x) + expand(y)))

    def rfl(self, sdst, vsrc):
        self.ins(f"v_readfirstlane_b32 {sdst}, {vsrc}", Ins("rdlane", expand(sdst), expand(vsrc)))

    def acc_read(self, vdst, asrc):
        self.valu("v_accvgpr_read_b32", vdst, asrc)

    def dpp_add(self, dst, src, ctrl):
        txt = f"v_add_f32_dpp {dst}, {src}, {src} {ctrl} row_mask:0xf bank_mask:0xf"
        self.ins(txt, Ins("perml", expand(dst), expand(src)))

    def cmp(self, op, sdst, a, b):
        self.valu(op, sdst, a, b)

    def cndmask(self, dst, f, t, mask):
        self.valu("v_cndmask_b32", dst, f, t, mask)

    def bload(self, n, dst, voff, srd, soff=0, off=0, tag=None, flags=""):
        op = {1: "buffer_load_dword", 2: "buffer_load_dwordx2", 4: "buffer_load_dwordx4"}[n]
        txt = f"{op} {dst}, {voff}, {srd}, {soff} offen" + (f" offset:{off}" if off else "") + (" " + flags if flags else "")
        self.ins(txt, Ins("vmem", expand(dst), expand(voff) + expand(srd) + expand(soff)))
        self.vmq.append(tag)

    def bstore(self, n, src, voff, srd, soff=0, off=0, tag=None, flags=""):
        op = {1: "buffer_store_dword", 2: "buffer_store_dwordx2", 4: "buffer_store_dwordx4"}[n]
        txt = f"{op} {src}, {voff}, {srd}, {soff} offen" + (f" offset:{off}" if off else "") + (" " + flags if flags else "")
        kind = "wstore" if n == 4 else "vmem"
        self.ins(txt, Ins(kind, [], expand(src) + expand(voff) + expand(srd) + expand(soff)))
        self.vmq.append(tag)

    def dma(self, voff, srd, soff, tag=None, flags=""):
        txt = f"buffer_load_dwordx4 {voff}, {srd}, {soff} offen lds" + (" " + flags if flags else "")
        self.ins(txt, Ins("dma", [], expand(voff) + expand(srd) + expand(soff) + ["m0"]))
        self.vmq.append(tag)

    def batomic_add_ret(self, vdata, voff, srd, tag=None):
        txt = f"buffer_atomic_add {vdata}, {voff}, {srd}, 0 offen sc0"
        self.ins(txt, Ins("vmem", expand(vdata), expand(vdata) + expand(voff) + expand(srd)))
        self.vmq.append(tag)

    def ds_read(self, op, dst, addr, off=0, tag=None):
        if "notr" in self.abl and "tr" in op:
            return
        txt = f"{op} {dst}, {addr}" + (f" offset:{off}" if off else "")
        self.ins(txt, Ins("ds", expand(dst), expand(addr)))
        self.lgq.append(tag)

    def ds_write(self, op, addr, src, off=0, tag=None):
        txt = f"{op} {addr}, {src}" + (f" offset:{off}" if off else "")
        self.ins(txt, Ins("ds", [], expand(addr) + expand(src)))
        self.lgq.append(tag)

    def bperm(self, dst, addr, src, tag=None):
        self.ins(f"ds_bpermute_b32 {dst}, {addr}, {src}", Ins("ds", expand(dst), expand(addr) + expand(src)))
        self.lgq.append(tag)

    def _count_after(self, q, tags):
        if not isinstance(tags, list):
            tags = [tags]
        last = -1
        for i, t in enumerate(q):
            if t in tags:
                last = i
        if last < 0:
            return None
        return len(q) - 1 - last

    def wait_vm(self, tags):
        n = self._count_after(self.vmq, tags)
        if n is None:
            return
        assert n <= 63, n
        self.ins(f"s_waitcnt vmcnt({n})", Ins("wait"))
        self.vmq = self.vmq[len(self.vmq) - n :] if n else []

    def wait_lg(self, tags):
        n = self._count_after(self.lgq, tags)
        if n is None:
            return
        assert n <= 15, n
        self.ins(f"s_waitcnt lgkmcnt({n})", Ins("wait"))
        self.lgq = self.lgq[len(self.lgq) - n :] if n else []

    def wait_vm0(self):
        self.ins("s_waitcnt vmcnt(0)", Ins("wait"))
        self.vmq = []

    def wait_lg0(self):
        self.ins("s_waitcnt lgkmcnt(0)", Ins("wait"))
        self.lgq = []

    def barrier(self):
        self.ins("s_barrier", Ins("wait"))

    stamps = False
    nstamp = 0

    def stamp(self):
        if not self.stamps:
            return
        self.ins(("s_memrealtime" if self.stamps == 2 else "s_memtime") + " s[98:99]", Ins("salu", ["s98", "s99"]))
        self.wait_lg0()
        self.salu("s_mov_b32", f"s{70 + self.nstamp}", "s98")
        self.nstamp += 1

    def dump_stamps(self, ws_lo, kidx):
        if not self.stamps:
            return
        self.salu("s_add_u32", "s64", f"s{ws_lo}", (16 << 20) + kidx * (1 << 20))
        self.salu("s_addc_u32", "s65", f"s{ws_lo + 1}", 0)
        self.salu("s_and_b32", "s65", "s65", "0xffff")
        self.salu("s_mov_b32", "s66", 1 << 20)
        self.salu("s_mov_b32", "s67", "0x20000")
        self.salu("s_lshl_b32", "s68", "s2", 4)
        self.salu("s_add_u32", "s68", "s68", "s3")
        self.salu("s_lshl_b32", "s68", "s68", 7)
        self.salu("s_mov_b64", "exec", 1)
        self.valu("v_mov_b32", "v1", 0)
        for i in range(self.nstamp):
            self.valu("v_mov_b32", "v2", f"s{70 + i}")
            self.bstore(1, "v2", "v1", "s[64:67]", "s68", i * 4)
            self.wait_vm0()

    def text(self):
        return "\n".join(self.lines) + "\n"


def _rk(r):
    return (r[0], int(r[1:]) if r[1:].isdigit() else 0)
```

```python
import sys, os, math
sys.path.insert(0, os.path.dirname(__file__))
from asmlib import Asm, V, A, S
Asm.abl = set(os.environ.get('ABL', '').split(','))
if os.environ.get('STAMPS'):
    Asm.stamps = int(os.environ.get('STAMPS'))

NAME = "sequential_preLN__linear_attn_block__mixer_channel_mlp__prompt"

PQF_OFF = 0
HF_OFF = 2 << 20
H1F_OFF = 4 << 20
KVP_OFF = 12 << 20
ZP_OFF = 13 << 20
KVF_OFF = (13 << 20) + (512 << 10)
ST_OFF = 14 << 20
HI = 65536

LOG2E = 1.4426950408889634


def f32bits(x):
    import struct
    return "0x%08x" % struct.unpack("<I", struct.pack("<f", x))[0]


def make_srd(a, sd, sb, off, nbytes):
    if off:
        a.salu("s_add_u32", S(sd), S(sb), off)
        a.salu("s_addc_u32", S(sd + 1), S(sb + 1), 0)
        a.salu("s_and_b32", S(sd + 1), S(sd + 1), "0xffff")
    else:
        a.salu("s_mov_b32", S(sd), S(sb))
        a.salu("s_and_b32", S(sd + 1), S(sb + 1), "0xffff")
    a.salu("s_mov_b32", S(sd + 2), nbytes)
    a.salu("s_mov_b32", S(sd + 3), "0x20000")


def lane_setup(a):
    a.valu("v_lshrrev_b32", "v4", 6, "v0")
    a.valu("v_and_b32", "v1", 63, "v0")
    a.rfl("s3", "v4")
    a.valu("v_and_b32", "v2", 15, "v1")
    a.valu("v_lshrrev_b32", "v3", 4, "v1")
    a.salu("s_bfe_u32", "s4", "s2", "0x20001")
    a.salu("s_and_b32", "s5", "s2", 1)
    a.salu("s_lshr_b32", "s8", "s2", 3)


def map_8x4(a):
    a.salu("s_and_b32", "s6", "s8", 7)
    a.salu("s_lshl_b32", "s9", "s4", 3)
    a.salu("s_add_u32", "s6", "s6", "s9")
    a.salu("s_lshr_b32", "s7", "s8", 3)
    a.salu("s_lshl_b32", "s9", "s5", 2)
    a.salu("s_add_u32", "s7", "s7", "s9")


def lref(regs, off):
    if off >= HI:
        assert off - HI < 65536
        return regs[1], off - HI
    return regs[0], off


def bf16_round_pair(a, x0, x1, tmp, smask):
    a.valu("v_cvt_pk_bf16_f32", tmp, x0, x1)
    a.valu("v_lshlrev_b32", x0, 16, tmp)
    a.valu("v_and_b32", x1, smask, tmp)


def bf16_round1(a, x, tmp):
    a.valu("v_cvt_pk_bf16_f32", tmp, x, x)
    a.valu("v_lshlrev_b32", x, 16, tmp)


def unpack2(a, lo, hi, src, smask):
    a.valu("v_lshlrev_b32", lo, 16, src)
    a.valu("v_and_b32", hi, smask, src)


def ln_scalars(a, s1, s2, tmp, tmp2):
    a.valu("v_mul_f32", tmp, f32bits(1.0 / 512), s1)
    a.valu("v_mul_f32", tmp2, f32bits(1.0 / 512), s2)
    a.valu("v_fma_f32", tmp2, "-" + tmp, tmp, tmp2)
    a.valu("v_max_f32", tmp2, 0, tmp2)
    a.valu("v_cvt_pk_bf16_f32", s1, tmp, tmp2)
    a.valu("v_and_b32", s2, "0xffff0000", s1)
    a.valu("v_lshlrev_b32", s1, 16, s1)
    a.valu("v_add_f32", s2, f32bits(1e-5), s2)
    a.valu("v_cvt_pk_bf16_f32", s2, s2, s2)
    a.valu("v_lshlrev_b32", s2, 16, s2)
    a.trans("v_sqrt_f32", s2, s2)
    a.valu("v_cvt_pk_bf16_f32", s2, s2, s2)
    a.valu("v_lshlrev_b32", s2, 16, s2)


def gsum(a, x, t):
    a.valu("v_mov_b32", t, x)
    a.permswap(16, x, t)
    a.valu("v_add_f32", x, x, t)
    a.valu("v_mov_b32", t, x)
    a.permswap(32, x, t)
    a.valu("v_add_f32", x, x, t)


def kernel_header(a, name):
    a.raw(f".globl {name}")
    a.raw(".p2align 8")
    a.raw(f".type {name},@function")
    a.raw(f"{name}:")


def kernel_desc(name, nvgpr, nsgpr=102):
    nv = (nvgpr + 7) // 8 * 8
    return f""".section .rodata,"a"
.p2align 6
.amdhsa_kernel {name}
  .amdhsa_next_free_vgpr {nv}
  .amdhsa_next_free_sgpr {nsgpr}
  .amdhsa_accum_offset {nv}
  .amdhsa_group_segment_fixed_size 0
  .amdhsa_kernarg_size 88
  .amdhsa_user_sgpr_count 2
  .amdhsa_user_sgpr_kernarg_segment_ptr 1
  .amdhsa_system_sgpr_workgroup_id_x 1
.end_amdhsa_kernel
.text
"""


def sub_asm(a):
    b = Asm()
    b.nstamp = 0
    return b


def w128_dma_voff(a, dst, t0, t1, pitch, perm):
    if perm:
        a.valu("v_bfe_u32", dst, "v1", 3, 2)
        a.valu("v_lshrrev_b32", t0, 5, "v1")
        a.valu("v_lshl_add_u32", dst, t0, 3, dst)
    else:
        a.valu("v_lshrrev_b32", dst, 3, "v1")
    a.valu("v_mul_u32_u24", dst, pitch, dst)
    a.valu("v_bfe_u32", t0, "v1", 1, 2)
    a.valu("v_bfe_u32", t1, "v1", 4, 2)
    a.valu("v_xor_b32", t0, t0, t1)
    a.valu("v_lshl_add_u32", dst, t0, 5, dst)
    a.valu("v_and_b32", t0, 1, "v1")
    a.valu("v_lshl_add_u32", dst, t0, 4, dst)


def w128_tr_base(a, dst, t0, t1):
    a.valu("v_lshrrev_b32", t0, 2, "v2")
    a.valu("v_lshl_add_u32", dst, "v3", 2, t0)
    a.valu("v_bfe_u32", t1, dst, 1, 2)
    a.valu("v_lshlrev_b32", dst, 7, dst)
    a.valu("v_lshl_add_u32", dst, t1, 5, dst)
    a.valu("v_and_b32", t1, 3, "v1")
    a.valu("v_lshl_add_u32", dst, t1, 3, dst)


K1_WB = 65536
K1_AUX = K1_WB + 5 * 16384
K1_LDS = K1_AUX + 1024


def gen_k1():
    a = Asm()
    name = "k1_qkv_kernel"
    kernel_header(a, name)
    a.scmp("s_cmp_ge_u32", "s2", 256)
    a.raw("    s_cbranch_scc1 K1_END")
    a.raw("    s_load_dwordx4 s[16:19], s[0:1], 0")
    a.raw("    s_load_dwordx4 s[20:23], s[0:1], 72")
    a.raw("    s_load_dwordx2 s[48:49], s[0:1], 16")
    lane_setup(a)
    map_8x4(a)
    a.scmp("s_cmp_ge_u32", "s3", 4)
    a.branch("s_cbranch_scc1", "K1_LOADER")

    a.valu("v_and_b32", "v4", 7, "v2")
    a.valu("v_xor_b32", "v4", "v4", "v3")
    a.valu("v_lshlrev_b32", "v5", 7, "v2")
    a.valu("v_lshl_add_u32", "v5", "v4", 4, "v5")
    a.valu("v_xor_b32", "v6", 64, "v5")
    a.salu("s_lshl_b32", "s9", "s3", 11)
    a.valu("v_add_u32", "v7", "s9", "v5")
    a.valu("v_add_u32", "v8", "s9", "v6")
    w128_tr_base(a, "v9", "v4", "v10")
    a.salu("s_lshl_b32", "s9", "s3", 5)
    a.valu("v_xor_b32", "v9", "s9", "v9")
    a.valu("v_add_u32", "v9", K1_WB, "v9")
    a.valu("v_add_u32", "v10", HI, "v9")
    WRD = ("v9", "v10")
    ONES = 12
    for i in range(4):
        a.valu("v_mov_b32", V(ONES + i), "0x3f803f80")
    a.raw("    s_waitcnt lgkmcnt(0)")
    make_srd(a, 32, 22, PQF_OFF, 2 << 20)
    make_srd(a, 36, 22, KVP_OFF, 1 << 20)
    make_srd(a, 40, 22, ZP_OFF, 1 << 20)
    make_srd(a, 44, 20, 0, 256)
    a.salu("s_mov_b32", "s52", "0xffff0000")
    FB = 16
    ACK = 72
    ACV = 88
    CSK = 104
    CSV = 108
    RS = 112
    GR = 116
    ACQ = 120
    CSQ = 136
    T = 140

    def fr(buf, idx):
        return FB + (buf * 7 + idx) * 4

    def reads1(ks):
        buf = ks & 1
        s, sub = ks >> 1, ks & 1
        ar = "v5" if sub == 0 else "v6"
        xr = "v7" if sub == 0 else "v8"
        sl = (s % 5) * 16384
        for part in range(2):
            for hh in range(2):
                r, o = lref(WRD, sl + part * 8192 + sub * 4096 + hh * 2048)
                a.ds_read("ds_read_b64_tr_b16", V(fr(buf, 5 + part) + 2 * hh, 2), r, o, tag=("R", ks))
        for m in range(4):
            a.ds_read("ds_read_b128", V(fr(buf, m), 4), ar, s * 8192 + m * 2048, tag=("R", ks))
        a.ds_read("ds_read_b128", V(fr(buf, 4), 4), xr, s * 8192, tag=("R", ks))

    a.stamp()
    a.barrier()
    a.stamp()
    reads1(0)
    for ks in range(16):
        buf = ks & 1
        if ks + 1 < 16:
            if (ks + 1) % 2 == 0:
                a.wait_lg(("R", ks))
                a.barrier()
            reads1(ks + 1)
        a.wait_lg(("R", ks))
        K, Vv = V(fr(buf, 5), 4), V(fr(buf, 6), 4)
        XA = V(fr(buf, 4), 4)
        for m in range(4):
            d = V(ACK + 4 * m, 4)
            a.mfma(d, V(fr(buf, m), 4), K, d if ks else 0)
            d = V(ACV + 4 * m, 4)
            a.mfma(d, V(fr(buf, m), 4), Vv, d if ks else 0)
        a.mfma(V(CSK, 4), V(ONES, 4), K, V(CSK, 4) if ks else 0)
        a.mfma(V(CSV, 4), V(ONES, 4), Vv, V(CSV, 4) if ks else 0)
        a.mfma(V(RS, 4), XA, V(ONES, 4), V(RS, 4) if ks else 0)
        a.mfma(V(GR, 4), XA, XA, V(GR, 4) if ks else 0)
    a.stamp()
    a.valu("v_and_b32", V(T), 3, "v2")
    a.cmp("v_cmp_eq_u32", S(54, 2), 1, V(T))
    a.cmp("v_cmp_eq_u32", S(56, 2), 2, V(T))
    a.cmp("v_cmp_eq_u32", S(58, 2), 3, V(T))
    a.valu("v_lshrrev_b32", V(T + 1), 2, "v2")
    a.cmp("v_cmp_eq_u32", S(60, 2), V(T + 1), "v3")
    for base in (RS, GR):
        a.cndmask(V(base), V(base), V(base + 1), S(54, 2))
        a.cndmask(V(base), V(base), V(base + 2), S(56, 2))
        a.cndmask(V(base), V(base), V(base + 3), S(58, 2))
    a.valu("v_mov_b32", V(RS + 1), V(GR))
    ln_scalars(a, V(RS), V(RS + 1), V(T + 2), V(T + 3))
    a.trans("v_rcp_f32", V(RS + 1), V(RS + 1))
    a.salu("s_lshl_b32", "s9", "s3", 6)
    a.salu("s_add_u32", "s9", "s9", K1_AUX)
    a.valu("v_lshl_add_u32", V(T + 4), "v2", 2, "s9")
    a.salu("s_lshl_b32", "s9", "s3", 7)
    a.salu("s_add_u32", "s9", "s9", K1_AUX + 512)
    a.valu("v_lshl_add_u32", V(T + 5), "v2", 3, "s9")
    a.salu("s_mov_b64", "exec", S(60, 2))
    a.ds_write("ds_write_b32", V(T + 4), V(RS), 0, tag="W")
    a.ds_write("ds_write_b32", V(T + 4), V(RS + 1), 256, tag="W")
    a.ds_write("ds_write_b64", V(T + 5), V(RS, 2), 0, tag="W")
    a.salu("s_mov_b64", "exec", -1)
    a.wait_lg0()
    a.barrier()
    MN = T + 8
    RD = T + 24
    PR = T + 40
    a.salu("s_mov_b32", "s9", K1_AUX)
    a.valu("v_lshl_add_u32", V(T + 4), "v3", 4, "s9")
    a.valu("v_lshl_add_u32", V(T + 5), "v2", 3, "s9")
    for m in range(4):
        a.ds_read("ds_read_b128", V(MN + 4 * m, 4), V(T + 4), m * 64, tag="S1")
        a.ds_read("ds_read_b128", V(RD + 4 * m, 4), V(T + 4), 256 + m * 64, tag="S1")
    for m in range(4):
        a.ds_read("ds_read_b64", V(PR + 2 * m, 2), V(T + 5), 512 + m * 128, tag="S2")

    def reads2(ks):
        buf = ks & 1
        s, sub = ks >> 1, ks & 1
        ar = "v5" if sub == 0 else "v6"
        sl = ((8 + (ks >> 2)) % 5) * 16384
        for hh in range(2):
            r, o = lref(WRD, sl + ((ks >> 1) & 1) * 8192 + sub * 4096 + hh * 2048)
            a.ds_read("ds_read_b64_tr_b16", V(fr(buf, 5) + 2 * hh, 2), r, o, tag=("R2", ks))
        for m in range(4):
            a.ds_read("ds_read_b128", V(fr(buf, m), 4), ar, s * 8192 + m * 2048, tag=("R2", ks))

    EPSP = T + 48
    L2P = T + 50
    a.valu("v_mov_b32", V(EPSP), f32bits(1e-6))
    a.valu("v_mov_b32", V(EPSP + 1), f32bits(1e-6))
    a.valu("v_mov_b32", V(L2P), f32bits(LOG2E))
    a.valu("v_mov_b32", V(L2P + 1), f32bits(LOG2E))
    a.salu("s_mov_b32", "s53", f32bits(1e-6))
    U = T + 52
    PKO = T + 56
    KVD = T + 72

    def phi4(x, out):
        for h in range(2):
            a.pk("v_pk_mul_f32", V(U + 2 * h, 2), V(x + 2 * h, 2), V(L2P, 2))
        for r in range(4):
            a.valu("v_min_f32", V(U + r), 0, V(U + r))
        for r in range(4):
            a.trans("v_exp_f32", V(U + r), V(U + r))
        for r in range(4):
            a.valu("v_max_f32", V(x + r), "s53", V(x + r))
        for h in range(2):
            a.pk("v_pk_add_f32", V(x + 2 * h, 2), V(x + 2 * h, 2), V(U + 2 * h, 2))
        for h in range(2):
            a.valu("v_cvt_pk_bf16_f32", V(out + h), V(x + 2 * h), V(x + 2 * h + 1))

    a.wait_lg("S1")
    for m in range(4):
        x = ACK + 4 * m
        for h in range(2):
            a.pk("v_pk_fma_f32", V(x + 2 * h, 2), V(MN + 4 * m + 2 * h, 2), V(CSK, 2), V(x + 2 * h, 2),
                 neglo=[1, 0, 0], neghi=[1, 0, 0])
        for h in range(2):
            a.pk("v_pk_fma_f32", V(x + 2 * h, 2), V(x + 2 * h, 2), V(RD + 4 * m + 2 * h, 2), V(EPSP, 2))
        phi4(x, PKO + 2 * m)
        x = ACV + 4 * m
        for h in range(2):
            a.pk("v_pk_fma_f32", V(x + 2 * h, 2), V(MN + 4 * m + 2 * h, 2), V(CSV, 2), V(x + 2 * h, 2),
                 neglo=[1, 0, 0], neghi=[1, 0, 0])
        for h in range(2):
            a.pk("v_pk_mul_f32", V(x + 2 * h, 2), V(x + 2 * h, 2), V(RD + 4 * m + 2 * h, 2))
        for h in range(2):
            a.valu("v_cvt_pk_bf16_f32", V(PKO + 8 + 2 * m + h), V(x + 2 * h), V(x + 2 * h + 1))
    reads2(0)
    a.mfma(V(KVD, 4), V(PKO, 4), V(PKO + 8, 4), 0)
    a.mfma(V(KVD + 4, 4), V(PKO, 4), V(ONES, 4), 0)
    a.mfma(V(KVD, 4), V(PKO + 4, 4), V(PKO + 12, 4), V(KVD, 4))
    a.mfma(V(KVD + 4, 4), V(PKO + 4, 4), V(ONES, 4), V(KVD + 4, 4))
    a.salu("s_lshl_b32", "s10", "s7", 2)
    a.salu("s_add_u32", "s10", "s10", "s3")
    a.salu("s_lshl_b32", "s11", "s10", 5)
    a.salu("s_add_u32", "s11", "s11", "s6")
    a.salu("s_lshl_b32", "s12", "s11", 10)
    a.salu("s_lshl_b32", "s13", "s11", 6)
    LN16 = T + 6
    G16 = T + 7
    a.valu("v_lshlrev_b32", V(LN16), 4, "v1")
    a.valu("v_lshlrev_b32", V(G16), 4, "v3")
    a.bstore(4, V(KVD, 4), V(LN16), S(36, 4), "s12", 0, tag="SP", flags="sc1")
    a.salu("s_mov_b32", "s14", "0x00010001")
    a.salu("s_mov_b32", "s15", "0x00010001")
    a.salu("s_mov_b64", "exec", S(14, 2))
    a.bstore(4, V(KVD + 4, 4), V(G16), S(40, 4), "s13", 0, tag="SP", flags="sc1")
    a.salu("s_mov_b64", "exec", -1)
    a.stamp()
    ATV = T + 80
    ATA = T + 81
    for ks in range(16):
        buf = ks & 1
        if ks + 1 < 16:
            reads2(ks + 1)
        a.wait_lg(("R2", ks))
        Q = V(fr(buf, 5), 4)
        for m in range(4):
            d = V(ACQ + 4 * m, 4)
            a.mfma(d, Q, V(fr(buf, m), 4), d if ks else 0)
        a.mfma(V(CSQ, 4), Q, V(ONES, 4), V(CSQ, 4) if ks else 0)
        if ks == 8:
            a.wait_vm0()
            a.salu("s_lshl_b32", "s14", "s10", 2)
            a.valu("v_mov_b32", V(ATA), "s14")
            a.valu("v_mov_b32", V(ATV), 1)
            a.salu("s_mov_b64", "exec", 1)
            a.batomic_add_ret(V(ATV), V(ATA), S(44, 4), tag="AT")
            a.salu("s_mov_b64", "exec", -1)
    a.stamp()
    a.wait_vm0()
    a.rfl("s15", V(ATV))
    P = 16
    PB = [16 + 4 * n for n in range(26)] + [T + 84 + 4 * n for n in range(6)]
    ZB = T + 108
    a.scmp("s_cmp_lg_u32", "s15", 31)
    a.branch("s_cbranch_scc1", "K1_SKIP1")
    a.salu("s_lshl_b32", "s12", "s10", 15)
    for n in range(32):
        a.salu("s_add_u32", "s13", "s12", n * 1024)
        a.bload(4, V(PB[n], 4), V(LN16), S(36, 4), "s13", 0, tag=("LP", n), flags="sc1")
    a.valu("v_lshl_add_u32", V(T + 4), "v2", 6, V(G16))
    a.salu("s_lshl_b32", "s13", "s10", 11)
    a.bload(4, V(ZB, 4), V(T + 4), S(40, 4), "s13", 0, tag="LZ", flags="sc1")
    a.bload(4, V(ZB + 4, 4), V(T + 4), S(40, 4), "s13", 1024, tag="LZ", flags="sc1")
    a.label("K1_SKIP1")
    a.vmq = []
    a.wait_lg0()
    a.salu("s_and_b32", "s13", "s3", 1)
    a.salu("s_lshl_b32", "s13", "s13", 3)
    a.valu("v_add_u32", V(T + 5), "s13", V(LN16))
    a.salu("s_lshl_b32", "s13", "s6", 4)
    a.salu("s_lshr_b32", "s14", "s10", 1)
    a.salu("s_add_u32", "s13", "s13", "s14")
    a.salu("s_lshl_b32", "s13", "s13", 12)
    QO = PKO
    for m in range(4):
        x = ACQ + 4 * m
        for h in range(2):
            a.pk("v_pk_fma_f32", V(x + 2 * h, 2), V(PR + 2 * m, 2), V(CSQ + 2 * h, 2), V(x + 2 * h, 2),
                 sel=[0, 0, 0], selhi=[0, 1, 1], neglo=[1, 0, 0], neghi=[1, 0, 0])
        for h in range(2):
            a.pk("v_pk_fma_f32", V(x + 2 * h, 2), V(x + 2 * h, 2), V(PR + 2 * m, 2), V(EPSP, 2),
                 sel=[0, 1, 0], selhi=[1, 1, 1])
        phi4(x, QO + 2 * m)
        a.bstore(2, V(QO + 2 * m, 2), V(T + 5), S(32, 4), "s13", m * 1024)
    a.stamp()
    a.scmp("s_cmp_lg_u32", "s15", 31)
    a.branch("s_cbranch_scc1", "K1_DONE")
    a.wait_vm0()
    for n in range(1, 32):
        for h in range(2):
            a.pk("v_pk_add_f32", V(PB[0] + 2 * h, 2), V(PB[0] + 2 * h, 2), V(PB[n] + 2 * h, 2))
    for r in range(4):
        a.valu("v_add_f32", V(ZB + r), V(ZB + r), V(ZB + 4 + r))
    for sh in (8, 4, 2, 1):
        for r in range(4):
            a.dpp_add(V(ZB + r), V(ZB + r), f"row_ror:{sh}")
    O4 = PB[1]
    a.valu("v_cvt_pk_bf16_f32", V(O4), V(PB[0]), V(PB[0] + 1))
    a.valu("v_cvt_pk_bf16_f32", V(O4 + 1), V(PB[0] + 2), V(PB[0] + 3))
    a.valu("v_cvt_pk_bf16_f32", V(O4 + 2), V(ZB), V(ZB + 1))
    a.valu("v_cvt_pk_bf16_f32", V(O4 + 3), V(ZB + 2), V(ZB + 3))
    a.salu("s_lshl_b32", "s13", "s10", 10)
    a.salu("s_add_u32", "s13", "s13", KVF_OFF - ZP_OFF)
    a.bstore(4, V(O4, 4), V(LN16), S(40, 4), "s13", 0)
    a.label("K1_DONE")
    a.dump_stamps(22, 0)
    a.raw("    s_endpgm")
    nv = T + 116

    b = sub_asm(a)
    b.label("K1_LOADER")
    b.salu("s_sub_u32", "s9", "s3", 4)
    b.valu("v_lshrrev_b32", "v4", 3, "v1")
    b.valu("v_and_b32", "v5", 7, "v1")
    b.valu("v_xor_b32", "v5", "v5", "v4")
    b.valu("v_lshlrev_b32", "v4", 10, "v4")
    b.valu("v_lshl_add_u32", "v4", "v5", 4, "v4")
    w128_dma_voff(b, "v5", "v6", "v7", 3072, True)
    b.raw("    s_waitcnt lgkmcnt(0)")
    make_srd(b, 24, 16, 0, 2048 * 512 * 2)
    make_srd(b, 28, 18, 0, 512 * 1536 * 2)
    make_srd(b, 32, 48, 0, 512 * 512 * 2)
    b.salu("s_lshl_b32", "s10", "s6", 6)
    b.salu("s_lshl_b32", "s11", "s9", 4)
    b.salu("s_add_u32", "s10", "s10", "s11")
    b.salu("s_lshl_b32", "s10", "s10", 10)
    b.salu("s_lshl_b32", "s11", "s9", 11)
    b.salu("s_and_b32", "s12", "s9", 1)
    b.salu("s_mul_i32", "s12", "s12", 32 * 3072)
    b.salu("s_lshl_b32", "s15", "s7", 7)
    b.salu("s_add_u32", "s12", "s12", "s15")
    b.salu("s_lshr_b32", "s15", "s9", 1)
    b.salu("s_mul_i32", "s13", "s15", 64 * 3072)
    b.salu("s_add_u32", "s13", "s13", "s12")
    b.salu("s_lshl_b32", "s15", "s15", 10)
    b.salu("s_add_u32", "s12", "s12", "s15")
    b.salu("s_add_u32", "s12", "s12", 1024)
    b.salu("s_lshl_b32", "s14", "s9", 12)
    b.salu("s_add_u32", "s14", "s14", K1_WB)

    def issue(t):
        sl = (t % 5) * 16384
        if t < 8:
            for u in range(2):
                b.salu("s_add_u32", "s15", "s10", u * 8192 + t * 128)
                b.salu("s_add_u32", "m0", "s11", t * 8192 + u * 1024)
                b.dma("v4", S(24, 4), "s15", tag=("L", t))
        for u in range(4):
            k0 = 16 * (u & 1) + 4 * (u >> 1)
            if t < 8:
                b.salu("s_add_u32", "s15", "s12", (64 * t + k0) * 3072)
            else:
                b.salu("s_add_u32", "s15", "s13", (128 * (t - 8) + k0) * 3072)
            b.salu("s_add_u32", "m0", "s14", sl + u * 1024)
            b.dma("v5", S(28, 4), "s15", tag=("L", t))

    b.stamp()
    for t in range(5):
        issue(t)
    b.stamp()
    for s in range(8):
        b.wait_vm(("L", s))
        b.barrier()
        if s >= 1:
            issue(s + 4)
    b.wait_vm0()
    b.barrier()
    b.stamp()
    b.valu("v_lshrrev_b32", "v6", 5, "v1")
    b.valu("v_and_b32", "v7", 31, "v1")
    b.valu("v_lshlrev_b32", "v6", 10, "v6")
    b.valu("v_lshl_add_u32", "v6", "v7", 4, "v6")
    b.salu("s_lshl_b32", "s10", "s8", 4)
    b.salu("s_lshl_b32", "s11", "s9", 2)
    b.salu("s_add_u32", "s10", "s10", "s11")
    b.salu("s_lshl_b32", "s10", "s10", 10)
    b.salu("s_lshl_b32", "s11", "s5", 9)
    b.salu("s_add_u32", "s10", "s10", "s11")
    for u in range(2):
        b.bload(4, V(8 + 4 * u, 4), "v6", S(32, 4), "s10", u * 2048)
    b.wait_vm0()
    b.dump_stamps(22, 0)
    b.label("K1_END")
    b.raw("    s_endpgm")
    return a.text() + b.text() + kernel_desc(name, nv), name, K1_LDS, 256, 512


K2_RED = 65536
K2_LDS = 131072


def gen_k2():
    a = Asm()
    name = "k2_attn_kernel"
    kernel_header(a, name)
    a.scmp("s_cmp_ge_u32", "s2", 256)
    a.raw("    s_cbranch_scc1 K2_END")
    a.raw("    s_load_dwordx2 s[16:17], s[0:1], 0")
    a.raw("    s_load_dwordx2 s[18:19], s[0:1], 16")
    a.raw("    s_load_dwordx2 s[20:21], s[0:1], 32")
    a.raw("    s_load_dwordx2 s[22:23], s[0:1], 80")
    lane_setup(a)
    map_8x4(a)
    a.salu("s_and_b32", "s10", "s3", 3)
    a.salu("s_lshr_b32", "s11", "s3", 2)
    a.valu("v_lshlrev_b32", "v4", 4, "v1")
    w128_dma_voff(a, "v5", "v6", "v7", 1024, False)
    w128_tr_base(a, "v8", "v6", "v7")
    a.salu("s_lshl_b32", "s9", "s10", 14)
    a.valu("v_add_u32", "v8", "s9", "v8")
    for t in range(1, 4):
        a.valu("v_xor_b32", V(8 + t), t << 5, "v8")
    a.salu("s_lshr_b32", "s12", "s3", 1)
    a.salu("s_lshl_b32", "s12", "s12", 4)
    a.salu("s_lshl_b32", "s13", "s6", 6)
    a.salu("s_add_u32", "s12", "s12", "s13")
    a.valu("v_add_u32", "v12", "s12", "v2")
    a.valu("v_lshlrev_b32", "v13", 10, "v12")
    a.valu("v_lshl_add_u32", "v13", "v3", 3, "v13")
    a.salu("s_and_b32", "s13", "s3", 1)
    a.salu("s_lshl_b32", "s14", "s7", 1)
    a.salu("s_add_u32", "s13", "s13", "s14")
    a.salu("s_lshl_b32", "s14", "s13", 6)
    a.raw("    s_waitcnt lgkmcnt(0)")
    make_srd(a, 24, 16, 0, 2048 * 512 * 2)
    make_srd(a, 28, 18, 0, 512 * 512 * 2)
    make_srd(a, 32, 22, PQF_OFF, 2 << 20)
    make_srd(a, 36, 22, HF_OFF, 2 << 20)
    make_srd(a, 40, 22, KVF_OFF, 32768)
    make_srd(a, 44, 22, ST_OFF, 256 << 10)
    make_srd(a, 48, 20, 0, 512 * 1792 * 2)
    a.salu("s_mov_b32", "s52", "0xffff0000")
    KV = 16
    PQ = 48
    XR = 80
    PF = 84
    OF = 100
    WF = 132
    ACC = 164
    ND = 196
    TM = 228
    a.stamp()
    a.salu("s_lshl_b32", "s15", "s10", 13)
    for hd in range(8):
        a.bload(4, V(KV + 4 * hd, 4), "v4", S(40, 4), "s15", hd * 1024 if hd < 4 else 0, tag="KV") if hd < 4 else None
        if hd == 3:
            a.salu("s_add_u32", "s15", "s15", 4096)
        if hd >= 4:
            a.bload(4, V(KV + 4 * hd, 4), "v4", S(40, 4), "s15", (hd - 4) * 1024, tag="KV")
    a.salu("s_lshl_b32", "s15", "s6", 4)
    a.salu("s_lshl_b32", "s9", "s10", 2)
    a.salu("s_add_u32", "s15", "s15", "s9")
    a.salu("s_lshl_b32", "s15", "s15", 2)
    a.salu("s_lshl_b32", "s9", "s11", 1)
    a.salu("s_add_u32", "s15", "s15", "s9")
    a.salu("s_lshl_b32", "s15", "s15", 10)
    for p in range(4):
        for mm in range(2):
            a.bload(4, V(PQ + (2 * p + mm) * 4, 4), "v4", S(32, 4), "s15", mm * 1024, tag=("Q", p))
        if p < 3:
            a.salu("s_add_u32", "s15", "s15", 4096)
    a.salu("s_lshl_b32", "s15", "s10", 7)
    a.salu("s_lshl_b32", "s9", "s11", 6)
    a.salu("s_add_u32", "s15", "s15", "s9")
    a.salu("s_lshl_b32", "s9", "s15", 7)
    a.salu("s_lshl_b32", "s15", "s15", 10)
    a.salu("s_lshl_b32", "s53", "s7", 7)
    a.salu("s_add_u32", "s15", "s15", "s53")
    for u in range(8):
        a.salu("s_add_u32", "s53", "s15", u * 8192)
        a.salu("s_add_u32", "m0", "s9", u * 1024)
        a.dma("v5", S(28, 4), "s53", tag="B")
    for t in range(2):
        a.bload(2, V(XR + 2 * t, 2), "v13", S(24, 4), "s14", t * 32, tag="X")
    a.salu("s_lshl_b32", "s15", "s8", 4)
    a.salu("s_lshl_b32", "s9", "s3", 1)
    a.salu("s_add_u32", "s15", "s15", "s9")
    a.salu("s_mul_i32", "s15", "s15", 3584)
    a.salu("s_mul_i32", "s9", "s5", 1792)
    a.salu("s_add_u32", "s15", "s15", "s9")
    a.salu("s_add_u32", "s9", "s15", 3584)
    for u in range(2):
        a.bload(4, V(PF + 4 * u, 4), "v4", S(48, 4), "s15", u * 1024, tag="PF")
        a.bload(4, V(PF + 8 + 4 * u, 4), "v4", S(48, 4), "s9", u * 1024, tag="PF")
    a.stamp()
    a.wait_vm("KV")
    a.salu("s_mov_b32", "s53", f32bits(1e-6))
    units = [(p, mm) for p in range(4) for mm in range(2)]

    def o_mfma(u):
        p, mm = units[u]
        if mm == 0:
            a.wait_vm(("Q", p))
        q = PQ + (2 * p + mm) * 4
        nd = ND + 16 * (u & 1)
        for hd in range(2):
            kv = KV + 4 * (2 * p + hd)
            a.mfma16(V(nd + 8 * hd + 4, 4), V(kv + 2, 2), V(q + 2 * hd, 2), 0)
            a.mfma16(V(nd + 8 * hd, 4), V(kv, 2), V(q + 2 * hd, 2), 0)

    def o_valu(u):
        p, mm = units[u]
        nd = ND + 16 * (u & 1)
        for hd in range(2):
            den = V(nd + 8 * hd + 4)
            a.valu("v_add_f32", den, "s53", den)
            a.trans("v_rcp_f32", den, den)
        for hd in range(2):
            den = V(nd + 8 * hd + 4)
            for r in range(4):
                a.valu("v_mul_f32", V(nd + 8 * hd + r), V(nd + 8 * hd + r), den)
            o = OF + (2 * p + mm) * 4 + 2 * hd
            a.valu("v_cvt_pk_bf16_f32", V(o), V(nd + 8 * hd), V(nd + 8 * hd + 1))
            a.valu("v_cvt_pk_bf16_f32", V(o + 1), V(nd + 8 * hd + 2), V(nd + 8 * hd + 3))

    o_mfma(0)
    for u in range(8):
        if u + 1 < 8:
            o_mfma(u + 1)
        o_valu(u)
    a.stamp()
    a.wait_vm("B")
    a.barrier()

    def wreads(p):
        for t in range(4):
            for hh in range(2):
                a.ds_read("ds_read_b64_tr_b16", V(WF + ((p & 1) * 4 + t) * 4 + 2 * hh, 2), V(8 + t),
                          p * 4096 + hh * 2048, tag=("R", p))
    wreads(0)
    for p in range(4):
        if p < 3:
            wreads(p + 1)
        a.wait_lg(("R", p))
        for t in range(4):
            for mm in range(2):
                d = V(ACC + (mm * 4 + t) * 4, 4)
                a.mfma(d, V(WF + ((p & 1) * 4 + t) * 4, 4), V(OF + (2 * p + mm) * 4, 4), d if p else 0)
    a.stamp()
    a.salu("s_lshl_b32", "s9", "s10", 14)
    a.salu("s_lshl_b32", "s15", "s11", 13)
    a.salu("s_add_u32", "s9", "s9", "s15")
    a.salu("s_add_u32", "s9", "s9", K2_RED)
    a.valu("v_add_u32", V(TM), "s9", "v4")
    for mm in range(2):
        for t in range(4):
            a.ds_write("ds_write_b128", V(TM), V(ACC + (mm * 4 + t) * 4, 4), (mm * 4 + t) * 1024, tag="W")
    a.salu("s_lshl_b32", "s9", "s3", 11)
    a.salu("s_add_u32", "s9", "s9", K2_RED)
    a.valu("v_add_u32", V(TM), "s9", "v4")
    a.wait_lg0()
    a.barrier()
    RB = 16
    for hg in range(4):
        for t in range(2):
            a.ds_read("ds_read_b128", V(RB + hg * 8 + 4 * t, 4), V(TM), hg * 16384 + t * 1024, tag=("X", hg >> 1))
    a.wait_lg(("X", 0))
    for j in range(8):
        a.valu("v_add_f32", V(RB + j), V(RB + j), V(RB + 8 + j))
    a.wait_lg(("X", 1))
    for j in range(8):
        a.valu("v_add_f32", V(RB + 16 + j), V(RB + 16 + j), V(RB + 24 + j))
    for j in range(8):
        a.valu("v_add_f32", V(RB + j), V(RB + j), V(RB + 16 + j))
    a.wait_vm("X")
    XS = RB + 8
    for j in range(4):
        bf16_round_pair(a, V(RB + 2 * j), V(RB + 2 * j + 1), V(TM + 1), "s52")
    for j in range(4):
        unpack2(a, V(XS + 2 * j), V(XS + 2 * j + 1), V(XR + j), "s52")
    for j in range(8):
        a.valu("v_add_f32", V(RB + j), V(RB + j), V(XS + j))
    HO = RB + 16
    for j in range(4):
        a.valu("v_cvt_pk_bf16_f32", V(HO + j), V(RB + 2 * j), V(RB + 2 * j + 1))
    a.salu("s_add_u32", "s9", "s12", "s13")
    a.salu("s_lshl_b32", "s9", "s9", 10)
    a.bstore(4, V(HO, 4), "v4", S(36, 4), "s9", 0)
    for j in range(4):
        unpack2(a, V(RB + 2 * j), V(RB + 2 * j + 1), V(HO + j), "s52")
    S1, S2 = RB + 24, RB + 25
    a.valu("v_add_f32", V(S1), V(RB), V(RB + 1))
    a.valu("v_mul_f32", V(S2), V(RB), V(RB))
    a.valu("v_fmac_f32", V(S2), V(RB + 1), V(RB + 1))
    for j in range(2, 8):
        a.valu("v_add_f32", V(S1), V(S1), V(RB + j))
        a.valu("v_fmac_f32", V(S2), V(RB + j), V(RB + j))
    gsum(a, V(S1), V(TM + 1))
    gsum(a, V(S2), V(TM + 2))
    a.valu("v_lshlrev_b32", V(TM + 3), 7, "v12")
    a.salu("s_lshl_b32", "s9", "s13", 3)
    a.salu("s_mov_b64", "exec", "0xffff")
    a.bstore(2, V(S1, 2), V(TM + 3), S(44, 4), "s9", 0)
    a.salu("s_mov_b64", "exec", -1)
    a.stamp()
    a.wait_vm0()
    a.dump_stamps(22, 1)
    a.label("K2_END")
    a.raw("    s_endpgm")
    return a.text() + kernel_desc(name, TM + 8), name, K2_LDS, 256, 512


K3_LDS = 131072


def gen_k3():
    a = Asm()
    name = "k3_mlp1_kernel"
    kernel_header(a, name)
    a.scmp("s_cmp_ge_u32", "s2", 256)
    a.raw("    s_cbranch_scc1 K3_END")
    a.raw("    s_load_dwordx4 s[16:19], s[0:1], 32")
    a.raw("    s_load_dwordx2 s[20:21], s[0:1], 48")
    a.raw("    s_load_dwordx2 s[22:23], s[0:1], 80")
    lane_setup(a)
    a.valu("v_lshlrev_b32", "v4", 4, "v1")
    a.scmp("s_cmp_ge_u32", "s8", 28)
    a.branch("s_cbranch_scc1", "K3_PF")
    a.salu("s_and_b32", "s6", "s8", 3)
    a.salu("s_lshl_b32", "s9", "s4", 2)
    a.salu("s_add_u32", "s6", "s6", "s9")
    a.salu("s_lshr_b32", "s7", "s8", 2)
    a.salu("s_mul_i32", "s9", "s5", 7)
    a.salu("s_add_u32", "s7", "s7", "s9")
    a.scmp("s_cmp_ge_u32", "s3", 8)
    a.branch("s_cbranch_scc1", "K3_LOADER")
    a.salu("s_and_b32", "s10", "s3", 1)
    a.salu("s_lshr_b32", "s11", "s3", 1)
    a.salu("s_lshl_b32", "s9", "s10", 13)
    a.valu("v_add_u32", "v5", "s9", "v4")
    a.valu("v_add_u32", "v6", HI, "v5")
    a.valu("v_lshrrev_b32", "v7", 2, "v2")
    a.valu("v_lshl_add_u32", "v7", "v3", 2, "v7")
    a.valu("v_and_b32", "v8", 7, "v7")
    a.valu("v_lshlrev_b32", "v7", 8, "v7")
    a.valu("v_lshl_add_u32", "v7", "v8", 5, "v7")
    a.valu("v_and_b32", "v8", 3, "v1")
    a.valu("v_lshl_add_u32", "v7", "v8", 3, "v7")
    a.valu("v_add_u32", "v7", 16384, "v7")
    a.salu("s_lshl_b32", "s9", "s11", 6)
    a.valu("v_xor_b32", "v7", "s9", "v7")
    a.valu("v_add_u32", "v8", HI, "v7")
    a.valu("v_xor_b32", "v9", 32, "v7")
    a.valu("v_add_u32", "v10", HI, "v9")
    WRD = [("v7", "v8"), ("v9", "v10")]
    ARD = ("v5", "v6")
    ONES = 12
    for i in range(4):
        a.valu("v_mov_b32", V(ONES + i), "0x3f803f80")
    a.salu("s_lshl_b32", "s12", "s6", 7)
    a.salu("s_lshl_b32", "s9", "s10", 6)
    a.salu("s_add_u32", "s12", "s12", "s9")
    a.valu("v_lshlrev_b32", "v11", 7, "v2")
    a.valu("v_lshl_add_u32", "v11", "v3", 5, "v11")
    a.salu("s_lshl_b32", "s13", "s12", 7)
    a.raw("    s_waitcnt lgkmcnt(0)")
    make_srd(a, 32, 22, H1F_OFF, 7 << 20)
    make_srd(a, 36, 18, 0, 1792 * 2)
    make_srd(a, 44, 22, ST_OFF, 256 << 10)
    FB = 16
    ACC = 64
    CS = 96
    STT = 104
    B1R = 136
    T = 140
    for m in range(4):
        for h in range(2):
            a.bload(4, V(STT + 8 * m + 4 * h, 4), "v11", S(44, 4), "s13", (m & 1) * 2048 + h * 16, tag="ST")
        if m == 1:
            a.salu("s_add_u32", "s13", "s13", 4096)
    a.valu("v_lshlrev_b32", V(T), 3, "v3")
    a.salu("s_lshl_b32", "s13", "s7", 8)
    a.salu("s_lshl_b32", "s9", "s11", 6)
    a.salu("s_add_u32", "s13", "s13", "s9")
    for t in range(2):
        a.bload(2, V(B1R + 2 * t, 2), V(T), S(36, 4), "s13", t * 32, tag="B1")

    def fr(buf, idx):
        return FB + (buf * 6 + idx) * 4

    def reads(ks):
        buf = ks & 1
        s, sub = ks >> 1, ks & 1
        sl = (s % 4) * 32768
        for t in range(2):
            for hh in range(2):
                r, o = lref(WRD[t], sl + sub * 8192 + hh * 4096)
                a.ds_read("ds_read_b64_tr_b16", V(fr(buf, 4 + t) + 2 * hh, 2), r, o, tag=("R", ks))
        for m in range(4):
            r, o = lref(ARD, sl + m * 2048 + sub * 1024)
            a.ds_read("ds_read_b128", V(fr(buf, m), 4), r, o, tag=("R", ks))

    a.stamp()
    a.barrier()
    a.stamp()
    reads(0)
    for ks in range(16):
        buf = ks & 1
        if ks + 1 < 16:
            if (ks + 1) % 2 == 0:
                a.wait_lg(("R", ks))
                a.barrier()
            reads(ks + 1)
        a.wait_lg(("R", ks))
        for t in range(2):
            W = V(fr(buf, 4 + t), 4)
            for m in range(4):
                d = V(ACC + (m * 2 + t) * 4, 4)
                a.mfma(d, W, V(fr(buf, m), 4), d if ks else 0)
            a.mfma(V(CS + 4 * t, 4), W, V(ONES, 4), V(CS + 4 * t, 4) if ks else 0)
        if ks == 2:
            a.wait_vm("ST")
            for m in range(4):
                b0 = STT + 8 * m
                for j in (2, 4, 6):
                    a.valu("v_add_f32", V(b0), V(b0), V(b0 + j))
                    a.valu("v_add_f32", V(b0 + 1), V(b0 + 1), V(b0 + j + 1))
                gsum(a, V(b0), V(b0 + 2))
                gsum(a, V(b0 + 1), V(b0 + 3))
        if 3 <= ks < 7:
            m = ks - 3
            b0 = STT + 8 * m
            m1, s1 = V(b0), V(b0 + 1)
            mean, var, t0, t1 = V(b0 + 2), V(b0 + 3), V(b0 + 4), V(b0 + 5)
            ln_scalars(a, m1, s1, mean, var)
            a.trans("v_rcp_f32", t0, s1)
            a.valu("v_sub_f32", mean, mean, m1)
            a.valu("v_mul_f32", mean, mean, t0)
            a.valu("v_mul_f32", var, var, t0)
            a.valu("v_mul_f32", var, var, t0)
            a.valu("v_cvt_pk_bf16_f32", t1, mean, var)
            a.valu("v_and_b32", var, "0xffff0000", t1)
            a.valu("v_lshlrev_b32", mean, 16, t1)
            a.valu("v_add_f32", var, f32bits(1e-5), var)
            bf16_round1(a, var, t1)
            a.trans("v_sqrt_f32", var, var)
            bf16_round1(a, var, t1)
            a.valu("v_fma_f32", m1, mean, s1, m1)
            a.trans("v_rcp_f32", var, var)
            a.valu("v_mul_f32", s1, t0, var)
    a.stamp()
    C0 = 2.0 * math.sqrt(2.0 / math.pi) * LOG2E
    C1 = C0 * 0.044715
    a.salu("s_mov_b32", "s50", f32bits(-C1))
    a.salu("s_mov_b32", "s52", "0xffff0000")
    BB = T
    NC0 = T + 8
    E = T + 12
    O = T + 16
    a.valu("v_mov_b32", V(NC0), f32bits(-C0))
    a.wait_vm("B1")
    for t in range(2):
        unpack2(a, V(BB + 4 * t), V(BB + 4 * t + 1), V(B1R + 2 * t), "s52")
        unpack2(a, V(BB + 4 * t + 2), V(BB + 4 * t + 3), V(B1R + 2 * t + 1), "s52")
    a.salu("s_lshr_b32", "s13", "s12", 4)
    a.salu("s_mul_i32", "s13", "s13", 56)
    a.salu("s_lshl_b32", "s9", "s7", 2)
    a.salu("s_add_u32", "s13", "s13", "s9")
    a.salu("s_add_u32", "s13", "s13", "s11")
    a.salu("s_lshl_b32", "s13", "s13", 10)
    for m in range(4):
        M1, SC = V(STT + 8 * m), V(STT + 8 * m + 1)
        o = O + 4 * (m & 1)
        for t in range(2):
            x = ACC + (m * 2 + t) * 4
            for r in range(4):
                a.valu("v_fma_f32", V(x + r), "-" + M1, V(CS + 4 * t + r), V(x + r))
            for r in range(4):
                a.valu("v_fma_f32", V(x + r), V(x + r), SC, V(BB + 4 * t + r))
            for r in range(4):
                a.valu("v_mul_f32", V(E + r), V(x + r), V(x + r))
            for r in range(4):
                a.valu("v_fma_f32", V(E + r), V(E + r), "s50", V(NC0))
            for r in range(4):
                a.valu("v_mul_f32", V(E + r), V(E + r), V(x + r))
            for r in range(4):
                a.trans("v_exp_f32", V(E + r), V(E + r))
            for r in range(4):
                a.valu("v_add_f32", V(E + r), 1.0, V(E + r))
            for r in range(4):
                a.trans("v_rcp_f32", V(E + r), V(E + r))
            for r in range(4):
                a.valu("v_mul_f32", V(x + r), V(x + r), V(E + r))
            a.valu("v_cvt_pk_bf16_f32", V(o + 2 * t), V(x), V(x + 1))
            a.valu("v_cvt_pk_bf16_f32", V(o + 2 * t + 1), V(x + 2), V(x + 3))
        a.bstore(4, V(o, 4), "v4", S(32, 4), "s13", 0)
        if m < 3:
            a.salu("s_add_u32", "s13", "s13", 56 * 1024)
    a.stamp()
    a.dump_stamps(22, 2)
    a.raw("    s_endpgm")
    nv = T + 24

    b = sub_asm(a)
    b.label("K3_LOADER")
    b.salu("s_sub_u32", "s9", "s3", 8)
    b.valu("v_mul_u32_u24", "v5", 3584, "v3")
    b.valu("v_and_b32", "v6", 1, "v1")
    b.valu("v_lshl_add_u32", "v5", "v6", 4, "v5")
    b.valu("v_bfe_u32", "v6", "v1", 1, 3)
    b.valu("v_xor_b32", "v6", "v6", "v3")
    b.valu("v_xor_b32", "v7", 4, "v6")
    b.valu("v_lshl_add_u32", "v6", "v6", 5, "v5")
    b.valu("v_lshl_add_u32", "v7", "v7", 5, "v5")
    b.raw("    s_waitcnt lgkmcnt(0)")
    make_srd(b, 24, 22, HF_OFF, 2 << 20)
    make_srd(b, 28, 16, 0, 512 * 1792 * 2)
    b.salu("s_lshl_b32", "s10", "s6", 3)
    b.salu("s_lshl_b32", "s11", "s9", 1)
    b.salu("s_add_u32", "s10", "s10", "s11")
    b.salu("s_lshl_b32", "s10", "s10", 14)
    b.salu("s_lshl_b32", "s11", "s9", 12)
    b.salu("s_mul_i32", "s12", "s9", 16 * 3584)
    b.salu("s_lshl_b32", "s13", "s7", 8)
    b.salu("s_add_u32", "s12", "s12", "s13")

    def issue(s):
        sl = (s % 4) * 32768
        for u in range(4):
            b.salu("s_add_u32", "s15", "s12", (64 * s + 4 * u) * 3584)
            b.salu("s_add_u32", "m0", "s11", sl + 16384 + u * 1024)
            b.dma("v6" if u % 2 == 0 else "v7", S(28, 4), "s15", tag=("L", s))
        for mm in range(2):
            for kss in range(2):
                b.salu("s_add_u32", "s15", "s10", mm * 16384 + (2 * s + kss) * 1024)
                b.salu("s_add_u32", "m0", "s11", sl + mm * 2048 + kss * 1024)
                b.dma("v4", S(24, 4), "s15", tag=("L", s))

    b.stamp()
    for s in range(4):
        issue(s)
    b.stamp()
    for s in range(8):
        b.wait_vm(("L", s))
        b.barrier()
        if 1 <= s and s + 3 < 8:
            issue(s + 3)
    b.stamp()
    b.dump_stamps(22, 2)
    b.raw("    s_endpgm")

    c = sub_asm(a)
    c.label("K3_PF")
    c.scmp("s_cmp_ge_u32", "s3", 8)
    c.branch("s_cbranch_scc1", "K3_END")
    c.valu("v_lshrrev_b32", "v6", 5, "v1")
    c.valu("v_and_b32", "v7", 31, "v1")
    c.valu("v_lshlrev_b32", "v6", 10, "v6")
    c.valu("v_lshl_add_u32", "v6", "v7", 4, "v6")
    c.raw("    s_waitcnt lgkmcnt(0)")
    make_srd(c, 28, 20, 0, 1792 * 512 * 2)
    c.salu("s_sub_u32", "s9", "s8", 28)
    c.salu("s_mul_i32", "s9", "s9", 448)
    c.salu("s_mul_i32", "s10", "s3", 56)
    c.salu("s_add_u32", "s9", "s9", "s10")
    c.salu("s_lshl_b32", "s9", "s9", 10)
    c.salu("s_lshl_b32", "s10", "s5", 9)
    c.salu("s_add_u32", "s9", "s9", "s10")
    for n in range(28):
        c.salu("s_add_u32", "s10", "s9", n * 2048)
        c.bload(4, V(8 + 4 * n, 4), "v6", S(28, 4), "s10", 0)
    c.wait_vm0()
    c.label("K3_END")
    c.raw("    s_endpgm")
    return a.text() + b.text() + c.text() + kernel_desc(name, nv), name, K3_LDS, 256, 768


K4_LDS = 131072


def gen_k4():
    a = Asm()
    name = "k4_mlp2_kernel"
    kernel_header(a, name)
    a.scmp("s_cmp_ge_u32", "s2", 256)
    a.raw("    s_cbranch_scc1 K4_END")
    a.raw("    s_load_dwordx4 s[16:19], s[0:1], 48")
    a.raw("    s_load_dwordx2 s[20:21], s[0:1], 64")
    a.raw("    s_load_dwordx2 s[22:23], s[0:1], 80")
    lane_setup(a)
    map_8x4(a)
    a.valu("v_lshlrev_b32", "v4", 4, "v1")
    a.salu("s_and_b32", "s9", "s3", 3)
    a.salu("s_lshl_b32", "s10", "s9", 15)
    a.salu("s_lshr_b32", "s12", "s3", 1)
    a.salu("s_lshl_b32", "s12", "s12", 4)
    a.salu("s_lshl_b32", "s13", "s6", 6)
    a.salu("s_add_u32", "s12", "s12", "s13")
    a.valu("v_add_u32", "v12", "s12", "v2")
    a.valu("v_lshlrev_b32", "v13", 10, "v12")
    a.valu("v_lshl_add_u32", "v13", "v3", 3, "v13")
    a.valu("v_lshlrev_b32", "v14", 3, "v3")
    a.salu("s_and_b32", "s13", "s3", 1)
    a.salu("s_lshl_b32", "s14", "s7", 1)
    a.salu("s_add_u32", "s13", "s13", "s14")
    a.salu("s_lshl_b32", "s14", "s13", 6)
    a.raw("    s_waitcnt lgkmcnt(0)")
    make_srd(a, 32, 22, HF_OFF, 2 << 20)
    make_srd(a, 36, 18, 0, 512 * 2)
    make_srd(a, 40, 20, 0, 2048 * 512 * 2)
    a.salu("s_mov_b32", "s52", "0xffff0000")
    HR = 16
    B2R = 20
    a.salu("s_add_u32", "s15", "s12", "s13")
    a.salu("s_lshl_b32", "s15", "s15", 10)
    a.scmp("s_cmp_ge_u32", "s3", 4)
    a.branch("s_cbranch_scc1", "K4_LOADER")
    a.bload(4, V(HR, 4), "v4", S(32, 4), "s15", 0, tag="E")
    for t in range(2):
        a.bload(2, V(B2R + 2 * t, 2), "v14", S(36, 4), "s14", t * 32, tag="E")
    a.valu("v_add_u32", "v5", "s10", "v4")
    w128_tr_base(a, "v8", "v6", "v7")
    a.valu("v_add_u32", "v8", "s10", "v8")
    for t in range(1, 4):
        a.valu("v_xor_b32", V(8 + t), t << 5, "v8")
    FR = 24
    ACC = 88
    TM = 152

    def reads(n):
        sl = (n % 4) * 8192
        bb = n & 1
        for t in range(4):
            for hh in range(2):
                a.ds_read("ds_read_b64_tr_b16", V(FR + (bb * 8 + 4 + t) * 4 + 2 * hh, 2), V(8 + t),
                          sl + 4096 + hh * 2048, tag=("R", n))
        for m in range(4):
            a.ds_read("ds_read_b128", V(FR + (bb * 8 + m) * 4, 4), "v5", sl + m * 1024, tag=("R", n))

    a.stamp()
    a.barrier()
    a.stamp()
    reads(0)
    for n in range(14):
        bb = n & 1
        if n + 1 < 14:
            a.wait_lg(("R", n))
            a.barrier()
            reads(n + 1)
        else:
            a.wait_lg(("R", n))
        for t in range(4):
            for m in range(4):
                d = V(ACC + (m * 4 + t) * 4, 4)
                a.mfma(d, V(FR + (bb * 8 + 4 + t) * 4, 4), V(FR + (bb * 8 + m) * 4, 4), d if n else 0)
    a.stamp()
    for q in range(16):
        a.ds_write("ds_write_b128", "v5", V(ACC + 4 * q, 4), q * 1024, tag="W")
    a.wait_lg0()
    a.branch("s_branch", "K4_FINAL")

    b = sub_asm(a)
    b.label("K4_LOADER")
    w128_dma_voff(b, "v5", "v6", "v7", 1024, False)
    make_srd(b, 24, 22, H1F_OFF, 7 << 20)
    make_srd(b, 28, 16, 0, 1792 * 512 * 2)
    b.salu("s_mul_i32", "s11", "s6", 4 * 56)
    b.salu("s_mul_i32", "s53", "s9", 14)
    b.salu("s_add_u32", "s11", "s11", "s53")
    b.salu("s_lshl_b32", "s11", "s11", 10)
    b.salu("s_lshl_b32", "s53", "s53", 15)
    b.salu("s_lshl_b32", "s54", "s7", 7)
    b.salu("s_add_u32", "s53", "s53", "s54")

    def issue(n):
        sl = (n % 4) * 8192
        for u in range(4):
            b.salu("s_add_u32", "s54", "s53", (32 * n + 8 * u) * 1024)
            b.salu("s_add_u32", "m0", "s10", sl + 4096 + u * 1024)
            b.dma("v5", S(28, 4), "s54", tag=("L", n))
        for m in range(4):
            b.salu("s_add_u32", "s54", "s11", (m * 56 + n) * 1024)
            b.salu("s_add_u32", "m0", "s10", sl + m * 1024)
            b.dma("v4", S(24, 4), "s54", tag=("L", n))

    b.stamp()
    for n in range(4):
        issue(n)
    b.stamp()
    for n in range(14):
        b.wait_vm(("L", n))
        b.barrier()
        if 1 <= n and n + 3 < 14:
            issue(n + 3)
        if n == 10:
            b.bload(4, V(HR, 4), "v4", S(32, 4), "s15", 0, tag="E")
            for t in range(2):
                b.bload(2, V(B2R + 2 * t, 2), "v14", S(36, 4), "s14", t * 32, tag="E")
    b.stamp()
    b.label("K4_FINAL")
    b.nstamp = 3
    b.barrier()
    RB = 24
    b.salu("s_lshl_b32", "s9", "s3", 11)
    b.valu("v_add_u32", V(TM), "s9", "v4")
    b.valu("v_add_u32", V(TM + 1), HI, V(TM))
    for w in range(4):
        for t in range(2):
            r, o = lref((V(TM), V(TM + 1)), w * 32768 + t * 1024)
            b.ds_read("ds_read_b128", V(RB + w * 8 + 4 * t, 4), r, o, tag=("X", w >> 1))
    b.wait_vm0()
    BS = RB + 32
    XS = RB + 40
    for j in range(4):
        unpack2(b, V(BS + 2 * j), V(BS + 2 * j + 1), V(B2R + j), "s52")
        unpack2(b, V(XS + 2 * j), V(XS + 2 * j + 1), V(HR + j), "s52")
    b.wait_lg(("X", 0))
    for j in range(8):
        b.valu("v_add_f32", V(RB + j), V(RB + j), V(RB + 8 + j))
    b.wait_lg(("X", 1))
    for j in range(8):
        b.valu("v_add_f32", V(RB + 16 + j), V(RB + 16 + j), V(RB + 24 + j))
    for j in range(8):
        b.valu("v_add_f32", V(RB + j), V(RB + j), V(RB + 16 + j))
    for j in range(4):
        bf16_round_pair(b, V(RB + 2 * j), V(RB + 2 * j + 1), V(TM + 2), "s52")
    for j in range(8):
        b.valu("v_add_f32", V(RB + j), V(RB + j), V(BS + j))
    for j in range(4):
        bf16_round_pair(b, V(RB + 2 * j), V(RB + 2 * j + 1), V(TM + 2), "s52")
    for j in range(8):
        b.valu("v_add_f32", V(RB + j), V(RB + j), V(XS + j))
    for j in range(4):
        b.valu("v_cvt_pk_bf16_f32", V(HR + j), V(RB + 2 * j), V(RB + 2 * j + 1))
    for t in range(2):
        b.bstore(2, V(HR + 2 * t, 2), "v13", S(40, 4), "s14", t * 32)
    b.stamp()
    b.dump_stamps(22, 3)
    b.label("K4_END")
    b.raw("    s_endpgm")
    return a.text() + b.text() + kernel_desc(name, TM + 8), name, K4_LDS, 256, 512


HEADER = """; Kernarg layout for this problem (88 bytes, ptrs only, base s[0:1]):
"""


def main():
    ks = [gen_k1(), gen_k2(), gen_k3(), gen_k4()]
    out = HEADER
    for (_, name, lds, grid, blk) in ks:
        out += f"; @launch kernel={name} grid=({grid},1,1) block=({blk},1,1) lds={lds}\n"
    out += '.amdgcn_target "amdgcn-amd-amdhsa--gfx950"\n.text\n'
    for k in ks:
        out += k[0]
    path = sys.argv[1] if len(sys.argv) > 1 else f"cdna_kernels/{NAME}.s"
    open(path, "w").write(out)
    print("wrote", path, len(out), "bytes")


if __name__ == "__main__":
    main()
```

```python
import re


def R(prefix, lo, n=1):
    if n == 1:
        return f"{prefix}{lo}"
    return f"{prefix}[{lo}:{lo + n - 1}]"


def V(lo, n=1):
    return R("v", lo, n)


def A(lo, n=1):
    return R("a", lo, n)


def S(lo, n=1):
    return R("s", lo, n)


_re_rng = re.compile(r"^([vas])\[(\d+):(\d+)\]$")
_re_one = re.compile(r"^([vas])(\d+)$")


def expand(op):
    if op is None:
        return []
    if isinstance(op, (int, float)):
        return []
    op = op.strip()
    if op.startswith("-"):
        op = op[1:]
    if op.startswith("abs(") and op.endswith(")"):
        op = op[4:-1]
    if op.startswith("|") and op.endswith("|"):
        op = op[1:-1]
    m = _re_rng.match(op)
    if m:
        return [f"{m.group(1)}{i}" for i in range(int(m.group(2)), int(m.group(3)) + 1)]
    m = _re_one.match(op)
    if m:
        return [op]
    if op == "vcc":
        return ["vcc"]
    if op in ("m0", "exec", "scc"):
        return [op]
    return []


class Ins:
    __slots__ = ("kind", "wr", "rd", "srcc", "ab", "states", "sub")

    def __init__(self, kind, wr=(), rd=(), srcc=(), ab=(), states=1, sub=None):
        self.kind = kind
        self.wr = set(wr)
        self.rd = set(rd)
        self.srcc = tuple(srcc)
        self.ab = set(ab)
        self.states = states
        self.sub = sub


VALU_KINDS = ("valu", "trans", "dot", "rdlane", "perml")


class Asm:
    def __init__(self):
        self.lines = []
        self.hist = []
        self.vmq = []
        self.lgq = []
        self.nops = 0

    def raw(self, text):
        self.lines.append(text)

    def comment(self, text):
        self.lines.append("    ; " + text)

    def label(self, name):
        self.flush()
        self.lines.append(name + ":")

    def flush(self):
        need = 0
        dist = 0
        for p in reversed(self.hist):
            req = 0
            if p.kind == "mfma":
                req = 8
            elif p.kind in VALU_KINDS:
                req = 5 if any(r[0] == "s" or r == "vcc" for r in p.wr) else 3
            elif p.kind == "wstore":
                req = 2
            elif p.kind == "salu" and "m0" in p.wr:
                req = 1
            need = max(need, req - dist)
            dist += p.states
        self._nop(need)
        self.hist = []

    def _nop(self, n):
        while n > 0:
            k = min(n, 16)
            self.lines.append(f"    s_nop {k - 1}")
            self.hist.append(Ins("nop", states=k))
            self.nops += 1
            n -= k

    def _required(self, p, c):
        req = 0
        pw = p.wr
        if p.kind in ("valu", "trans", "rdlane", "perml"):
            common_rd = pw & c.rd
            if c.kind == "mfma" and common_rd:
                req = max(req, 2)
            if p.kind == "trans" and c.kind in ("valu", "dot", "rdlane", "perml") and common_rd:
                req = max(req, 1)
            sg = {r for r in pw if r[0] == "s" or r == "vcc"}
            if sg & c.rd:
                if c.kind in VALU_KINDS:
                    req = max(req, 4 if c.kind == "rdlane" else 2)
                elif c.kind in ("vmem", "wstore", "dma"):
                    req = max(req, 5)
            if c.kind == "rdlane" and common_rd:
                req = max(req, 1)
            if c.kind == "perml" and common_rd:
                req = max(req, 2)
        if p.kind == "dot":
            touched = pw & (c.rd | c.wr)
            if touched:
                if c.kind == "dot" and c.sub == p.sub and not (pw & c.ab):
                    req = max(req, 0)
                else:
                    req = max(req, 3)
        if p.kind == "mfma":
            if c.kind == "mfma":
                if pw & c.ab:
                    req = max(req, 8)
                ov = pw & set(c.srcc)
                if ov:
                    if tuple(sorted(pw, key=_rk)) == tuple(sorted(c.srcc, key=_rk)):
                        req = max(req, 0)
                    else:
                        req = max(req, 6)
                elif pw & c.wr:
                    req = max(req, 8)
            else:
                if pw & (c.rd | c.wr):
                    req = max(req, 8)
                if c.kind in VALU_KINDS and (set(p.srcc) & c.wr):
                    req = max(req, 3)
        if p.kind == "salu" and "m0" in pw and c.kind == "dma":
            req = max(req, 1)
        if p.kind == "wstore":
            if p.rd & c.wr:
                req = max(req, 2 if c.kind in VALU_KINDS else 1)
        return req

    def ins(self, text, ins):
        need = 0
        dist = 0
        for p in reversed(self.hist):
            r = self._required(p, ins)
            if r - dist > need:
                need = r - dist
            dist += p.states
            if dist > 24:
                break
        self._nop(need)
        self.lines.append("    " + text)
        self.hist.append(ins)
        if len(self.hist) > 40:
            self.hist = self.hist[-40:]

    def valu(self, op, dst, *srcs, kind="valu", extra_wr=(), extra_rd=(), mods=""):
        wr = expand(dst) + [r for e in extra_wr for r in expand(e)]
        rd = [r for s in srcs for r in expand(s)] + [r for e in extra_rd for r in expand(e)]
        txt = f"{op} {dst}, " + ", ".join(str(s) for s in srcs) + mods
        self.ins(txt, Ins(kind, wr, rd))

    def trans(self, op, dst, src):
        self.valu(op, dst, src, kind="trans")

    def salu(self, op, dst, *srcs):
        wr = expand(dst)
        rd = [r for s in srcs for r in expand(s)]
        txt = f"{op} {dst}" + "".join(f", {s}" for s in srcs)
        self.ins(txt, Ins("salu", wr, rd))

    def scmp(self, op, a, b):
        self.ins(f"{op} {a}, {b}", Ins("salu", ["scc"], expand(a) + expand(b)))

    def branch(self, op, label):
        self.flush()
        self.lines.append(f"    {op} {label}")

    abl = set()

    def dot2(self, dst, a, b, c):
        if "nodots" in self.abl:
            return
        self.ins(
            f"v_dot2_f32_bf16 {dst}, {a}, {b}, {c}",
            Ins("dot", expand(dst), expand(a) + expand(b) + expand(c), ab=expand(a) + expand(b), sub="dot2"),
        )

    def mfma(self, d, a, b, c):
        if "nomfma" in self.abl:
            return
        cs = expand(c)
        self.ins(
            f"v_mfma_f32_16x16x32_bf16 {d}, {a}, {b}, {c}",
            Ins("mfma", expand(d), expand(a) + expand(b) + cs, srcc=cs, ab=expand(a) + expand(b)),
        )

    def mfma16(self, d, a, b, c):
        cs = expand(c)
        self.ins(
            f"v_mfma_f32_16x16x16_bf16 {d}, {a}, {b}, {c}",
            Ins("mfma", expand(d), expand(a) + expand(b) + cs, srcc=cs, ab=expand(a) + expand(b)),
        )

    def pk(self, op, dst, *srcs, sel=None, selhi=None, neglo=None, neghi=None):
        mods = ""
        if sel:
            mods += " op_sel:[" + ",".join(map(str, sel)) + "]"
        if selhi:
            mods += " op_sel_hi:[" + ",".join(map(str, selhi)) + "]"
        if neglo:
            mods += " neg_lo:[" + ",".join(map(str, neglo)) + "]"
        if neghi:
            mods += " neg_hi:[" + ",".join(map(str, neghi)) + "]"
        self.valu(op, dst, *srcs, mods=mods)

    def permswap(self, n, x, y):
        self.ins(f"v_permlane{n}_swap_b32 {x}, {y}", Ins("perml", expand(x) + expand(y), expand(x) + expand(y)))

    def rfl(self, sdst, vsrc):
        self.ins(f"v_readfirstlane_b32 {sdst}, {vsrc}", Ins("rdlane", expand(sdst), expand(vsrc)))

    def acc_read(self, vdst, asrc):
        self.valu("v_accvgpr_read_b32", vdst, asrc)

    def dpp_add(self, dst, src, ctrl):
        txt = f"v_add_f32_dpp {dst}, {src}, {src} {ctrl} row_mask:0xf bank_mask:0xf"
        self.ins(txt, Ins("perml", expand(dst), expand(src)))

    def cmp(self, op, sdst, a, b):
        self.valu(op, sdst, a, b)

    def cndmask(self, dst, f, t, mask):
        self.valu("v_cndmask_b32", dst, f, t, mask)

    def bload(self, n, dst, voff, srd, soff=0, off=0, tag=None, flags=""):
        op = {1: "buffer_load_dword", 2: "buffer_load_dwordx2", 4: "buffer_load_dwordx4"}[n]
        txt = f"{op} {dst}, {voff}, {srd}, {soff} offen" + (f" offset:{off}" if off else "") + (" " + flags if flags else "")
        self.ins(txt, Ins("vmem", expand(dst), expand(voff) + expand(srd) + expand(soff)))
        self.vmq.append(tag)

    def bstore(self, n, src, voff, srd, soff=0, off=0, tag=None, flags=""):
        op = {1: "buffer_store_dword", 2: "buffer_store_dwordx2", 4: "buffer_store_dwordx4"}[n]
        txt = f"{op} {src}, {voff}, {srd}, {soff} offen" + (f" offset:{off}" if off else "") + (" " + flags if flags else "")
        kind = "wstore" if n == 4 else "vmem"
        self.ins(txt, Ins(kind, [], expand(src) + expand(voff) + expand(srd) + expand(soff)))
        self.vmq.append(tag)

    def dma(self, voff, srd, soff, tag=None, flags=""):
        txt = f"buffer_load_dwordx4 {voff}, {srd}, {soff} offen lds" + (" " + flags if flags else "")
        self.ins(txt, Ins("dma", [], expand(voff) + expand(srd) + expand(soff) + ["m0"]))
        self.vmq.append(tag)

    def batomic_add_ret(self, vdata, voff, srd, tag=None):
        txt = f"buffer_atomic_add {vdata}, {voff}, {srd}, 0 offen sc0"
        self.ins(txt, Ins("vmem", expand(vdata), expand(vdata) + expand(voff) + expand(srd)))
        self.vmq.append(tag)

    def batomic_f32(self, vdata, voff, srd, soff, off=0, tag=None):
        txt = f"buffer_atomic_add_f32 {vdata}, {voff}, {srd}, {soff} offen" + (f" offset:{off}" if off else "")
        self.ins(txt, Ins("vmem", [], expand(vdata) + expand(voff) + expand(srd) + expand(soff)))
        self.vmq.append(tag)

    def ds_read2st64(self, dst, addr, o0, o1, tag=None):
        self.ins(f"ds_read2st64_b32 {dst}, {addr} offset0:{o0} offset1:{o1}", Ins("ds", expand(dst), expand(addr)))
        self.lgq.append(tag)

    def ds_read(self, op, dst, addr, off=0, tag=None):
        if "notr" in self.abl and "tr" in op:
            return
        txt = f"{op} {dst}, {addr}" + (f" offset:{off}" if off else "")
        self.ins(txt, Ins("ds", expand(dst), expand(addr)))
        self.lgq.append(tag)

    def ds_write(self, op, addr, src, off=0, tag=None):
        txt = f"{op} {addr}, {src}" + (f" offset:{off}" if off else "")
        self.ins(txt, Ins("ds", [], expand(addr) + expand(src)))
        self.lgq.append(tag)

    def bperm(self, dst, addr, src, tag=None):
        self.ins(f"ds_bpermute_b32 {dst}, {addr}, {src}", Ins("ds", expand(dst), expand(addr) + expand(src)))
        self.lgq.append(tag)

    def _count_after(self, q, tags):
        if not isinstance(tags, list):
            tags = [tags]
        last = -1
        for i, t in enumerate(q):
            if t in tags:
                last = i
        if last < 0:
            return None
        return len(q) - 1 - last

    def wait_vm(self, tags):
        n = self._count_after(self.vmq, tags)
        if n is None:
            return
        assert n <= 63, n
        self.ins(f"s_waitcnt vmcnt({n})", Ins("wait"))
        self.vmq = self.vmq[len(self.vmq) - n :] if n else []

    def wait_lg(self, tags):
        n = self._count_after(self.lgq, tags)
        if n is None:
            return
        assert n <= 15, n
        self.ins(f"s_waitcnt lgkmcnt({n})", Ins("wait"))
        self.lgq = self.lgq[len(self.lgq) - n :] if n else []

    def wait_vm0(self):
        self.ins("s_waitcnt vmcnt(0)", Ins("wait"))
        self.vmq = []

    def wait_lg0(self):
        self.ins("s_waitcnt lgkmcnt(0)", Ins("wait"))
        self.lgq = []

    def barrier(self):
        self.ins("s_barrier", Ins("wait"))

    stamps = False
    nstamp = 0

    def stamp(self):
        if not self.stamps:
            return
        self.ins(("s_memrealtime" if self.stamps == 2 else "s_memtime") + " s[98:99]", Ins("salu", ["s98", "s99"]))
        self.wait_lg0()
        self.salu("s_mov_b32", f"s{70 + self.nstamp}", "s98")
        self.nstamp += 1

    def dump_stamps(self, ws_lo, kidx):
        if not self.stamps:
            return
        self.salu("s_add_u32", "s64", f"s{ws_lo}", (16 << 20) + kidx * (1 << 20))
        self.salu("s_addc_u32", "s65", f"s{ws_lo + 1}", 0)
        self.salu("s_and_b32", "s65", "s65", "0xffff")
        self.salu("s_mov_b32", "s66", 1 << 20)
        self.salu("s_mov_b32", "s67", "0x20000")
        self.salu("s_lshl_b32", "s68", "s2", 4)
        self.salu("s_add_u32", "s68", "s68", "s3")
        self.salu("s_lshl_b32", "s68", "s68", 7)
        self.salu("s_mov_b64", "exec", 1)
        self.valu("v_mov_b32", "v1", 0)
        for i in range(self.nstamp):
            self.valu("v_mov_b32", f"v{2 + i}", f"s{70 + i}")
            self.bstore(1, f"v{2 + i}", "v1", "s[64:67]", "s68", i * 4)

    def text(self):
        return "\n".join(self.lines) + "\n"


def _rk(r):
    return (r[0], int(r[1:]) if r[1:].isdigit() else 0)
```

```python
import sys, os, math
sys.path.insert(0, os.path.dirname(__file__))
from asmlib import Asm, V, A, S
Asm.abl = set(os.environ.get('ABL', '').split(','))
if os.environ.get('STAMPS'):
    Asm.stamps = int(os.environ.get('STAMPS'))

NAME = "sequential_preLN__linear_attn_block__mixer_channel_mlp__prompt"

PQF_OFF = 0
HF_OFF = 2 << 20
H1F_OFF = 4 << 20
KVP_OFF = 12 << 20
ZP_OFF = 13 << 20
KVF_OFF = (13 << 20) + (512 << 10)
ST_OFF = 14 << 20
HI = 65536

LOG2E = 1.4426950408889634


def f32bits(x):
    import struct
    return "0x%08x" % struct.unpack("<I", struct.pack("<f", x))[0]


def make_srd(a, sd, sb, off, nbytes):
    if off:
        a.salu("s_add_u32", S(sd), S(sb), off)
        a.salu("s_addc_u32", S(sd + 1), S(sb + 1), 0)
        a.salu("s_and_b32", S(sd + 1), S(sd + 1), "0xffff")
    else:
        a.salu("s_mov_b32", S(sd), S(sb))
        a.salu("s_and_b32", S(sd + 1), S(sb + 1), "0xffff")
    a.salu("s_mov_b32", S(sd + 2), nbytes)
    a.salu("s_mov_b32", S(sd + 3), "0x20000")


def lane_setup(a):
    a.valu("v_lshrrev_b32", "v4", 6, "v0")
    a.valu("v_and_b32", "v1", 63, "v0")
    a.rfl("s3", "v4")
    a.valu("v_and_b32", "v2", 15, "v1")
    a.valu("v_lshrrev_b32", "v3", 4, "v1")
    a.salu("s_bfe_u32", "s4", "s2", "0x20001")
    a.salu("s_and_b32", "s5", "s2", 1)
    a.salu("s_lshr_b32", "s8", "s2", 3)


def map_8x4(a):
    a.salu("s_and_b32", "s6", "s8", 7)
    a.salu("s_lshl_b32", "s9", "s4", 3)
    a.salu("s_add_u32", "s6", "s6", "s9")
    a.salu("s_lshr_b32", "s7", "s8", 3)
    a.salu("s_lshl_b32", "s9", "s5", 2)
    a.salu("s_add_u32", "s7", "s7", "s9")


def lref(regs, off):
    if off >= HI:
        assert off - HI < 65536
        return regs[1], off - HI
    return regs[0], off


def bf16_round_pair(a, x0, x1, tmp, smask):
    a.valu("v_cvt_pk_bf16_f32", tmp, x0, x1)
    a.valu("v_lshlrev_b32", x0, 16, tmp)
    a.valu("v_and_b32", x1, smask, tmp)


def bf16_round1(a, x, tmp):
    a.valu("v_cvt_pk_bf16_f32", tmp, x, x)
    a.valu("v_lshlrev_b32", x, 16, tmp)


def unpack2(a, lo, hi, src, smask):
    a.valu("v_lshlrev_b32", lo, 16, src)
    a.valu("v_and_b32", hi, smask, src)


def ln_scalars(a, s1, s2, tmp, tmp2):
    a.valu("v_mul_f32", tmp, f32bits(1.0 / 512), s1)
    a.valu("v_mul_f32", tmp2, f32bits(1.0 / 512), s2)
    a.valu("v_fma_f32", tmp2, "-" + tmp, tmp, tmp2)
    a.valu("v_max_f32", tmp2, 0, tmp2)
    a.valu("v_cvt_pk_bf16_f32", s1, tmp, tmp2)
    a.valu("v_and_b32", s2, "0xffff0000", s1)
    a.valu("v_lshlrev_b32", s1, 16, s1)
    a.valu("v_add_f32", s2, f32bits(1e-5), s2)
    a.valu("v_cvt_pk_bf16_f32", s2, s2, s2)
    a.valu("v_lshlrev_b32", s2, 16, s2)
    a.trans("v_sqrt_f32", s2, s2)
    a.valu("v_cvt_pk_bf16_f32", s2, s2, s2)
    a.valu("v_lshlrev_b32", s2, 16, s2)


def gsum(a, x, t):
    a.valu("v_mov_b32", t, x)
    a.permswap(16, x, t)
    a.valu("v_add_f32", x, x, t)
    a.valu("v_mov_b32", t, x)
    a.permswap(32, x, t)
    a.valu("v_add_f32", x, x, t)


def interleave(ms, rs, first=1):
    n = len(ms)
    slots = max(1, n - first)
    per = -(-len(rs) // slots)
    ri = 0
    for i, m in enumerate(ms):
        m()
        if i + 1 >= first:
            for _ in range(per):
                if ri < len(rs):
                    rs[ri]()
                    ri += 1
    while ri < len(rs):
        rs[ri]()
        ri += 1


def kernel_header(a, name):
    a.raw(f".globl {name}")
    a.raw(".p2align 8")
    a.raw(f".type {name},@function")
    a.raw(f"{name}:")


def kernel_desc(name, nvgpr, nsgpr=102):
    nv = (nvgpr + 7) // 8 * 8
    return f""".section .rodata,"a"
.p2align 6
.amdhsa_kernel {name}
  .amdhsa_next_free_vgpr {nv}
  .amdhsa_next_free_sgpr {nsgpr}
  .amdhsa_accum_offset {nv}
  .amdhsa_group_segment_fixed_size 0
  .amdhsa_kernarg_size 88
  .amdhsa_user_sgpr_count 2
  .amdhsa_user_sgpr_kernarg_segment_ptr 1
  .amdhsa_system_sgpr_workgroup_id_x 1
.end_amdhsa_kernel
.text
"""


def sub_asm(a):
    b = Asm()
    b.nstamp = 0
    return b


def w128_dma_voff(a, dst, t0, t1, pitch, perm):
    if perm:
        a.valu("v_bfe_u32", dst, "v1", 3, 2)
        a.valu("v_lshrrev_b32", t0, 5, "v1")
        a.valu("v_lshl_add_u32", dst, t0, 3, dst)
    else:
        a.valu("v_lshrrev_b32", dst, 3, "v1")
    a.valu("v_mul_u32_u24", dst, pitch, dst)
    a.valu("v_bfe_u32", t0, "v1", 1, 2)
    a.valu("v_bfe_u32", t1, "v1", 4, 2)
    a.valu("v_xor_b32", t0, t0, t1)
    a.valu("v_lshl_add_u32", dst, t0, 5, dst)
    a.valu("v_and_b32", t0, 1, "v1")
    a.valu("v_lshl_add_u32", dst, t0, 4, dst)


def w128_tr_base(a, dst, t0, t1):
    a.valu("v_lshrrev_b32", t0, 2, "v2")
    a.valu("v_lshl_add_u32", dst, "v3", 2, t0)
    a.valu("v_bfe_u32", t1, dst, 1, 2)
    a.valu("v_lshlrev_b32", dst, 7, dst)
    a.valu("v_lshl_add_u32", dst, t1, 5, dst)
    a.valu("v_and_b32", t1, 3, "v1")
    a.valu("v_lshl_add_u32", dst, t1, 3, dst)


K1_WB = 65536
K1_AUX = K1_WB + 5 * 16384
K1_LDS = K1_AUX + 1088


def gen_k1():
    a = Asm()
    name = "k1_qkv_kernel"
    kernel_header(a, name)
    a.scmp("s_cmp_ge_u32", "s2", 256)
    a.raw("    s_cbranch_scc1 K1_END")
    a.raw("    s_load_dwordx4 s[16:19], s[0:1], 0")
    a.raw("    s_load_dwordx4 s[20:23], s[0:1], 72")
    a.raw("    s_load_dwordx2 s[48:49], s[0:1], 16")
    a.raw("    s_load_dwordx2 s[50:51], s[0:1], 32")
    lane_setup(a)
    map_8x4(a)
    a.scmp("s_cmp_ge_u32", "s3", 4)
    a.branch("s_cbranch_scc1", "K1_LOADER")

    a.valu("v_and_b32", "v4", 7, "v2")
    a.valu("v_xor_b32", "v4", "v4", "v3")
    a.valu("v_lshlrev_b32", "v5", 7, "v2")
    a.valu("v_lshl_add_u32", "v5", "v4", 4, "v5")
    a.valu("v_xor_b32", "v6", 64, "v5")
    a.salu("s_lshl_b32", "s9", "s3", 11)
    a.valu("v_add_u32", "v7", "s9", "v5")
    a.valu("v_add_u32", "v8", "s9", "v6")
    w128_tr_base(a, "v9", "v4", "v10")
    a.salu("s_lshl_b32", "s9", "s3", 5)
    a.valu("v_xor_b32", "v9", "s9", "v9")
    a.valu("v_add_u32", "v9", K1_WB, "v9")
    a.valu("v_add_u32", "v10", HI, "v9")
    WRD = ("v9", "v10")
    ONES = 12
    for i in range(4):
        a.valu("v_mov_b32", V(ONES + i), "0x3f803f80")
    a.raw("    s_waitcnt lgkmcnt(0)")
    make_srd(a, 32, 22, PQF_OFF, 2 << 20)
    make_srd(a, 40, 22, KVF_OFF, 34816)
    make_srd(a, 44, 20, 0, 256)
    a.salu("s_mov_b32", "s52", "0xffff0000")
    a.salu("s_mov_b32", "s62", 1)
    a.salu("s_lshl_b32", "s63", "s7", 5)
    a.scmp("s_cmp_lg_u32", "s3", 0)
    a.branch("s_cbranch_scc1", "K1_NOEL0")
    a.valu("v_mov_b32", "v4", "s63")
    a.valu("v_mov_b32", "v11", 1)
    a.salu("s_mov_b64", "exec", 1)
    a.batomic_add_ret("v11", "v4", S(44, 4))
    a.salu("s_mov_b64", "exec", -1)
    a.label("K1_NOEL0")
    a.vmq = []
    FB = 16
    ACK = 72
    ACV = 88
    CSK = 104
    CSV = 108
    RS = 112
    GR = 116
    ACQ = 120
    CSQ = 136
    T = 140

    def fr(buf, idx):
        return FB + (buf * 7 + idx) * 4

    def reads1(ks):
        buf = ks & 1
        s, sub = ks >> 1, ks & 1
        ar = "v5" if sub == 0 else "v6"
        xr = "v7" if sub == 0 else "v8"
        sl = (s % 5) * 16384
        L = []
        for part in range(2):
            for hh in range(2):
                r, o = lref(WRD, sl + part * 8192 + sub * 4096 + hh * 2048)
                L.append(lambda part=part, hh=hh, r=r, o=o: a.ds_read(
                    "ds_read_b64_tr_b16", V(fr(buf, 5 + part) + 2 * hh, 2), r, o, tag=("R", ks)))
        for m in range(4):
            L.append(lambda m=m: a.ds_read("ds_read_b128", V(fr(buf, m), 4), ar, s * 8192 + m * 2048, tag=("R", ks)))
        L.append(lambda: a.ds_read("ds_read_b128", V(fr(buf, 4), 4), xr, s * 8192, tag=("R", ks)))
        return L

    a.stamp()
    a.barrier()
    a.stamp()
    for f in reads1(0):
        f()
    for ks in range(16):
        buf = ks & 1
        a.wait_lg(("R", ks))
        if ks + 1 < 16 and (ks + 1) % 2 == 0:
            a.barrier()
        K, Vv = V(fr(buf, 5), 4), V(fr(buf, 6), 4)
        XA = V(fr(buf, 4), 4)
        M = []
        for m in range(4):
            M.append(lambda m=m: a.mfma(V(ACK + 4 * m, 4), V(fr(buf, m), 4), K, V(ACK + 4 * m, 4) if ks else 0))
            M.append(lambda m=m: a.mfma(V(ACV + 4 * m, 4), V(fr(buf, m), 4), Vv, V(ACV + 4 * m, 4) if ks else 0))
        M.append(lambda: a.mfma(V(CSK, 4), V(ONES, 4), K, V(CSK, 4) if ks else 0))
        M.append(lambda: a.mfma(V(CSV, 4), V(ONES, 4), Vv, V(CSV, 4) if ks else 0))
        M.append(lambda: a.mfma(V(RS, 4), XA, V(ONES, 4), V(RS, 4) if ks else 0))
        M.append(lambda: a.mfma(V(GR, 4), XA, XA, V(GR, 4) if ks else 0))
        interleave(M, reads1(ks + 1) if ks + 1 < 16 else [])
        if ks == 4:
            a.scmp("s_cmp_lg_u32", "s3", 0)
            a.branch("s_cbranch_scc1", "K1_NOEL1")
            a.wait_vm0()
            a.rfl("s62", "v11")
            a.scmp("s_cmp_lg_u32", "s62", 0)
            a.branch("s_cbranch_scc1", "K1_NOEL1")
            for r in range(4):
                a.valu("v_mov_b32", V(T + r), 0)
            a.valu("v_lshlrev_b32", "v4", 4, "v1")
            a.salu("s_lshl_b32", "s9", "s7", 12)
            for u in range(4):
                a.bstore(4, V(T, 4), "v4", S(40, 4), "s9", u * 1024, flags="sc1")
            a.salu("s_lshl_b32", "s9", "s7", 8)
            a.salu("s_add_u32", "s9", "s9", 32768)
            a.salu("s_mov_b64", "exec", "0xffff")
            a.bstore(4, V(T, 4), "v4", S(40, 4), "s9", 0, flags="sc1")
            a.salu("s_mov_b64", "exec", -1)
            a.label("K1_NOEL1")
            a.vmq = []
        if ks == 9:
            a.scmp("s_cmp_lg_u32", "s62", 0)
            a.branch("s_cbranch_scc1", "K1_NOEL2")
            a.wait_vm0()
            a.valu("v_mov_b32", "v4", "s63")
            a.valu("v_mov_b32", "v11", 1)
            a.salu("s_mov_b64", "exec", 1)
            a.bstore(1, "v11", "v4", S(44, 4), 0, 4, flags="sc1")
            a.salu("s_mov_b64", "exec", -1)
            a.label("K1_NOEL2")
            a.vmq = []
    a.stamp()
    a.valu("v_and_b32", V(T), 3, "v2")
    a.cmp("v_cmp_eq_u32", S(54, 2), 1, V(T))
    a.cmp("v_cmp_eq_u32", S(56, 2), 2, V(T))
    a.cmp("v_cmp_eq_u32", S(58, 2), 3, V(T))
    a.valu("v_lshrrev_b32", V(T + 1), 2, "v2")
    a.cmp("v_cmp_eq_u32", S(60, 2), V(T + 1), "v3")
    for base in (RS, GR):
        a.cndmask(V(base), V(base), V(base + 1), S(54, 2))
        a.cndmask(V(base), V(base), V(base + 2), S(56, 2))
        a.cndmask(V(base), V(base), V(base + 3), S(58, 2))
    a.valu("v_mov_b32", V(RS + 1), V(GR))
    ln_scalars(a, V(RS), V(RS + 1), V(T + 2), V(T + 3))
    a.trans("v_rcp_f32", V(RS + 1), V(RS + 1))
    a.salu("s_lshl_b32", "s9", "s3", 6)
    a.salu("s_add_u32", "s9", "s9", K1_AUX)
    a.valu("v_lshl_add_u32", V(T + 4), "v2", 2, "s9")
    a.salu("s_lshl_b32", "s9", "s3", 7)
    a.salu("s_add_u32", "s9", "s9", K1_AUX + 512)
    a.valu("v_lshl_add_u32", V(T + 5), "v2", 3, "s9")
    a.salu("s_mov_b64", "exec", S(60, 2))
    a.ds_write("ds_write_b32", V(T + 4), V(RS), 0, tag="W")
    a.ds_write("ds_write_b32", V(T + 4), V(RS + 1), 256, tag="W")
    a.ds_write("ds_write_b64", V(T + 5), V(RS, 2), 0, tag="W")
    a.salu("s_mov_b64", "exec", -1)
    a.wait_lg0()
    a.barrier()
    MN = T + 8
    RD = T + 24
    PR = T + 40
    a.salu("s_mov_b32", "s9", K1_AUX)
    a.valu("v_lshl_add_u32", V(T + 4), "v3", 4, "s9")
    a.valu("v_lshl_add_u32", V(T + 5), "v2", 3, "s9")
    for m in range(4):
        a.ds_read("ds_read_b128", V(MN + 4 * m, 4), V(T + 4), m * 64, tag="S1")
        a.ds_read("ds_read_b128", V(RD + 4 * m, 4), V(T + 4), 256 + m * 64, tag="S1")
    for m in range(4):
        a.ds_read("ds_read_b64", V(PR + 2 * m, 2), V(T + 5), 512 + m * 128, tag="S2")

    def reads2(ks):
        buf = ks & 1
        s, sub = ks >> 1, ks & 1
        ar = "v5" if sub == 0 else "v6"
        sl = ((8 + (ks >> 2)) % 5) * 16384
        L = []
        for hh in range(2):
            r, o = lref(WRD, sl + ((ks >> 1) & 1) * 8192 + sub * 4096 + hh * 2048)
            L.append(lambda hh=hh, r=r, o=o: a.ds_read(
                "ds_read_b64_tr_b16", V(fr(buf, 5) + 2 * hh, 2), r, o, tag=("R2", ks)))
        for m in range(4):
            L.append(lambda m=m: a.ds_read("ds_read_b128", V(fr(buf, m), 4), ar, s * 8192 + m * 2048, tag=("R2", ks)))
        return L

    EPSP = T + 48
    L2P = T + 50
    a.valu("v_mov_b32", V(EPSP), f32bits(1e-6))
    a.valu("v_mov_b32", V(EPSP + 1), f32bits(1e-6))
    a.valu("v_mov_b32", V(L2P), f32bits(LOG2E))
    a.valu("v_mov_b32", V(L2P + 1), f32bits(LOG2E))
    a.salu("s_mov_b32", "s53", f32bits(1e-6))
    U = T + 52
    PKO = T + 56
    KVD = T + 72

    def phi4(x, out):
        for h in range(2):
            a.pk("v_pk_mul_f32", V(U + 2 * h, 2), V(x + 2 * h, 2), V(L2P, 2))
        for r in range(4):
            a.valu("v_min_f32", V(U + r), 0, V(U + r))
        for r in range(4):
            a.trans("v_exp_f32", V(U + r), V(U + r))
        for r in range(4):
            a.valu("v_max_f32", V(x + r), "s53", V(x + r))
        for h in range(2):
            a.pk("v_pk_add_f32", V(x + 2 * h, 2), V(x + 2 * h, 2), V(U + 2 * h, 2))
        for h in range(2):
            a.valu("v_cvt_pk_bf16_f32", V(out + h), V(x + 2 * h), V(x + 2 * h + 1))

    a.wait_lg("S1")
    for m in range(4):
        x = ACK + 4 * m
        for h in range(2):
            a.pk("v_pk_fma_f32", V(x + 2 * h, 2), V(MN + 4 * m + 2 * h, 2), V(CSK, 2), V(x + 2 * h, 2),
                 neglo=[1, 0, 0], neghi=[1, 0, 0])
        for h in range(2):
            a.pk("v_pk_fma_f32", V(x + 2 * h, 2), V(x + 2 * h, 2), V(RD + 4 * m + 2 * h, 2), V(EPSP, 2))
        phi4(x, PKO + 2 * m)
        x = ACV + 4 * m
        for h in range(2):
            a.pk("v_pk_fma_f32", V(x + 2 * h, 2), V(MN + 4 * m + 2 * h, 2), V(CSV, 2), V(x + 2 * h, 2),
                 neglo=[1, 0, 0], neghi=[1, 0, 0])
        for h in range(2):
            a.pk("v_pk_mul_f32", V(x + 2 * h, 2), V(x + 2 * h, 2), V(RD + 4 * m + 2 * h, 2))
        for h in range(2):
            a.valu("v_cvt_pk_bf16_f32", V(PKO + 8 + 2 * m + h), V(x + 2 * h), V(x + 2 * h + 1))
    for f in reads2(0):
        f()
    a.mfma(V(KVD, 4), V(PKO, 4), V(PKO + 8, 4), 0)
    a.mfma(V(KVD + 4, 4), V(PKO, 4), V(ONES, 4), 0)
    a.mfma(V(KVD, 4), V(PKO + 4, 4), V(PKO + 12, 4), V(KVD, 4))
    a.mfma(V(KVD + 4, 4), V(PKO + 4, 4), V(ONES, 4), V(KVD + 4, 4))
    a.salu("s_lshl_b32", "s10", "s7", 2)
    a.salu("s_add_u32", "s10", "s10", "s3")
    a.salu("s_lshl_b32", "s12", "s10", 10)
    a.salu("s_lshl_b32", "s13", "s10", 6)
    a.salu("s_add_u32", "s13", "s13", 32768)
    LN16 = T + 6
    G16 = T + 7
    a.valu("v_lshlrev_b32", V(T + 4), 2, "v1")
    a.valu("v_lshlrev_b32", V(G16), 4, "v3")
    a.valu("v_lshl_add_u32", V(G16), "v2", 2, V(G16))
    a.valu("v_lshlrev_b32", V(LN16), 4, "v1")
    a.cmp("v_cmp_gt_u32", S(14, 2), 4, "v2")
    for r in range(4):
        a.batomic_f32(V(KVD + r), V(T + 4), S(40, 4), "s12", r * 256)
    zb = KVD + 4
    a.cndmask(V(zb), V(zb), V(zb + 1), S(54, 2))
    a.cndmask(V(zb), V(zb), V(zb + 2), S(56, 2))
    a.cndmask(V(zb), V(zb), V(zb + 3), S(58, 2))
    a.salu("s_mov_b64", "exec", S(14, 2))
    a.batomic_f32(V(zb), V(G16), S(40, 4), "s13", 0)
    a.salu("s_mov_b64", "exec", -1)
    a.stamp()
    for ks in range(16):
        buf = ks & 1
        a.wait_lg(("R2", ks))
        Q = V(fr(buf, 5), 4)
        M = []
        for m in range(4):
            M.append(lambda m=m: a.mfma(V(ACQ + 4 * m, 4), Q, V(fr(buf, m), 4), V(ACQ + 4 * m, 4) if ks else 0))
        M.append(lambda: a.mfma(V(CSQ, 4), Q, V(ONES, 4), V(CSQ, 4) if ks else 0))
        interleave(M, reads2(ks + 1) if ks + 1 < 16 else [])
    a.stamp()
    a.wait_lg0()
    a.salu("s_and_b32", "s13", "s3", 1)
    a.salu("s_lshl_b32", "s13", "s13", 3)
    a.valu("v_add_u32", V(T + 5), "s13", V(LN16))
    a.salu("s_lshl_b32", "s13", "s6", 4)
    a.salu("s_lshr_b32", "s14", "s10", 1)
    a.salu("s_add_u32", "s13", "s13", "s14")
    a.salu("s_lshl_b32", "s13", "s13", 12)
    QO = PKO
    for m in range(4):
        x = ACQ + 4 * m
        for h in range(2):
            a.pk("v_pk_fma_f32", V(x + 2 * h, 2), V(PR + 2 * m, 2), V(CSQ + 2 * h, 2), V(x + 2 * h, 2),
                 sel=[0, 0, 0], selhi=[0, 1, 1], neglo=[1, 0, 0], neghi=[1, 0, 0])
        for h in range(2):
            a.pk("v_pk_fma_f32", V(x + 2 * h, 2), V(x + 2 * h, 2), V(PR + 2 * m, 2), V(EPSP, 2),
                 sel=[0, 1, 0], selhi=[1, 1, 1])
        phi4(x, QO + 2 * m)
        a.bstore(2, V(QO + 2 * m, 2), V(T + 5), S(32, 4), "s13", m * 1024)
    a.stamp()
    a.dump_stamps(22, 0)
    a.raw("    s_endpgm")
    nv = T + 80

    b = sub_asm(a)
    b.label("K1_LOADER")
    b.salu("s_sub_u32", "s9", "s3", 4)
    b.valu("v_lshrrev_b32", "v4", 3, "v1")
    b.valu("v_and_b32", "v5", 7, "v1")
    b.valu("v_xor_b32", "v5", "v5", "v4")
    b.valu("v_lshlrev_b32", "v4", 10, "v4")
    b.valu("v_lshl_add_u32", "v4", "v5", 4, "v4")
    w128_dma_voff(b, "v5", "v6", "v7", 3072, True)
    b.raw("    s_waitcnt lgkmcnt(0)")
    make_srd(b, 24, 16, 0, 2048 * 512 * 2)
    make_srd(b, 28, 18, 0, 512 * 1536 * 2)
    make_srd(b, 32, 48, 0, 512 * 512 * 2)
    b.salu("s_lshl_b32", "s10", "s6", 6)
    b.salu("s_lshl_b32", "s11", "s9", 4)
    b.salu("s_add_u32", "s10", "s10", "s11")
    b.salu("s_lshl_b32", "s10", "s10", 10)
    b.salu("s_lshl_b32", "s11", "s9", 11)
    b.salu("s_and_b32", "s12", "s9", 1)
    b.salu("s_mul_i32", "s12", "s12", 32 * 3072)
    b.salu("s_lshl_b32", "s15", "s7", 7)
    b.salu("s_add_u32", "s12", "s12", "s15")
    b.salu("s_lshr_b32", "s15", "s9", 1)
    b.salu("s_mul_i32", "s13", "s15", 64 * 3072)
    b.salu("s_add_u32", "s13", "s13", "s12")
    b.salu("s_lshl_b32", "s15", "s15", 10)
    b.salu("s_add_u32", "s12", "s12", "s15")
    b.salu("s_add_u32", "s12", "s12", 1024)
    b.salu("s_lshl_b32", "s14", "s9", 12)
    b.salu("s_add_u32", "s14", "s14", K1_WB)

    def issue(t):
        sl = (t % 5) * 16384
        if t < 8:
            for u in range(2):
                b.salu("s_add_u32", "s15", "s10", u * 8192 + t * 128)
                b.salu("s_add_u32", "m0", "s11", t * 8192 + u * 1024)
                b.dma("v4", S(24, 4), "s15", tag=("L", t))
        for u in range(4):
            k0 = 16 * (u & 1) + 4 * (u >> 1)
            if t < 8:
                b.salu("s_add_u32", "s15", "s12", (64 * t + k0) * 3072)
            else:
                b.salu("s_add_u32", "s15", "s13", (128 * (t - 8) + k0) * 3072)
            b.salu("s_add_u32", "m0", "s14", sl + u * 1024)
            b.dma("v5", S(28, 4), "s15", tag=("L", t))

    D1 = int(os.environ.get("D1", "3"))
    b.stamp()
    nxt = 0
    for t in range(2):
        issue(t)
        nxt += 1
    b.stamp()
    for s_ in range(8):
        b.wait_vm(("L", s_))
        b.barrier()
        while nxt <= min(s_ + D1, s_ + 4, 11):
            issue(nxt)
            nxt += 1
    while nxt < 12:
        issue(nxt)
        nxt += 1
    make_srd(b, 44, 20, 0, 256)
    b.salu("s_lshl_b32", "s14", "s7", 5)
    b.valu("v_mov_b32", "v10", "s14")
    b.label("K1_POLL")
    b.bload(1, "v11", "v10", S(44, 4), 0, 4, flags="sc1")
    b.wait_vm0()
    b.rfl("s15", "v11")
    b.scmp("s_cmp_eq_u32", "s15", 0)
    b.branch("s_cbranch_scc1", "K1_POLL")
    b.barrier()
    b.stamp()
    b.valu("v_lshlrev_b32", "v8", 4, "v1")
    make_srd(b, 24, 50, 0, 512 * 1792 * 2)
    b.valu("v_lshrrev_b32", "v6", 5, "v1")
    b.valu("v_and_b32", "v7", 31, "v1")
    b.valu("v_lshlrev_b32", "v6", 10, "v6")
    b.valu("v_lshl_add_u32", "v6", "v7", 4, "v6")
    b.salu("s_lshl_b32", "s10", "s8", 4)
    b.salu("s_lshl_b32", "s11", "s9", 2)
    b.salu("s_add_u32", "s10", "s10", "s11")
    b.salu("s_lshl_b32", "s11", "s10", 10)
    b.salu("s_lshl_b32", "s13", "s5", 9)
    b.salu("s_add_u32", "s11", "s11", "s13")
    for u in range(2):
        b.bload(4, V(12 + 4 * u, 4), "v6", S(32, 4), "s11", u * 2048)
    b.salu("s_mul_i32", "s10", "s10", 3584)
    b.salu("s_mul_i32", "s13", "s5", 1792)
    b.salu("s_add_u32", "s10", "s10", "s13")
    for n in range(0 if os.environ.get("NOPF1") else 4):
        b.salu("s_add_u32", "s13", "s10", n * 3584)
        for u in range(2):
            b.bload(4, V(24 + 8 * n + 4 * u, 4), "v8", S(24, 4), "s13", u * 1024)
    b.wait_vm0()
    b.stamp()
    b.dump_stamps(22, 0)
    b.label("K1_END")
    b.raw("    s_endpgm")
    return a.text() + b.text() + kernel_desc(name, nv), name, K1_LDS, 256, 512


K2_RED = 65536
K2_KV = 65536
K2_LDS = 131072


def gen_k2():
    a = Asm()
    name = "k2_attn_kernel"
    kernel_header(a, name)
    a.scmp("s_cmp_ge_u32", "s2", 256)
    a.raw("    s_cbranch_scc1 K2_END")
    a.raw("    s_load_dwordx2 s[16:17], s[0:1], 0")
    a.raw("    s_load_dwordx2 s[18:19], s[0:1], 16")
    a.raw("    s_load_dwordx2 s[20:21], s[0:1], 32")
    a.raw("    s_load_dwordx2 s[22:23], s[0:1], 80")
    lane_setup(a)
    map_8x4(a)
    a.salu("s_and_b32", "s10", "s3", 3)
    a.salu("s_lshr_b32", "s11", "s3", 2)
    a.valu("v_lshlrev_b32", "v4", 4, "v1")
    w128_dma_voff(a, "v5", "v6", "v7", 1024, False)
    w128_tr_base(a, "v8", "v6", "v7")
    a.salu("s_lshl_b32", "s9", "s10", 14)
    a.valu("v_add_u32", "v8", "s9", "v8")
    for t in range(1, 4):
        a.valu("v_xor_b32", V(8 + t), t << 5, "v8")
    a.salu("s_lshr_b32", "s12", "s3", 1)
    a.salu("s_lshl_b32", "s12", "s12", 4)
    a.salu("s_lshl_b32", "s13", "s6", 6)
    a.salu("s_add_u32", "s12", "s12", "s13")
    a.valu("v_add_u32", "v12", "s12", "v2")
    a.valu("v_lshlrev_b32", "v13", 10, "v12")
    a.valu("v_lshl_add_u32", "v13", "v3", 3, "v13")
    a.salu("s_and_b32", "s13", "s3", 1)
    a.salu("s_lshl_b32", "s14", "s7", 1)
    a.salu("s_add_u32", "s13", "s13", "s14")
    a.salu("s_lshl_b32", "s14", "s13", 6)
    a.raw("    s_waitcnt lgkmcnt(0)")
    make_srd(a, 24, 16, 0, 2048 * 512 * 2)
    make_srd(a, 28, 18, 0, 512 * 512 * 2)
    make_srd(a, 32, 22, PQF_OFF, 2 << 20)
    make_srd(a, 36, 22, HF_OFF, 2 << 20)
    make_srd(a, 40, 22, KVF_OFF, 34816)
    make_srd(a, 44, 22, ST_OFF, 256 << 10)
    a.salu("s_mov_b32", "s52", "0xffff0000")
    KV = 16
    PQ = 48
    XR = 80
    PF = 84
    OF = 100
    WF = 132
    ACC = 164
    ND = 196
    TM = 228
    a.stamp()
    a.scmp("s_cmp_ge_u32", "s3", 2)
    a.branch("s_cbranch_scc1", "K2_NOZ")
    a.salu("s_lshl_b32", "s15", "s3", 10)
    a.salu("s_add_u32", "s53", "s15", 32768)
    a.salu("s_add_u32", "m0", "s15", K2_KV + 32768)
    a.dma("v4", S(40, 4), "s53")
    a.label("K2_NOZ")
    a.vmq = []
    a.salu("s_lshl_b32", "s15", "s3", 12)
    for u in range(4):
        a.salu("s_add_u32", "s53", "s15", u * 1024)
        a.salu("s_add_u32", "m0", "s15", K2_KV + u * 1024)
        a.dma("v4", S(40, 4), "s53", tag="KV")
    a.salu("s_lshl_b32", "s15", "s6", 4)
    a.salu("s_lshl_b32", "s9", "s10", 2)
    a.salu("s_add_u32", "s15", "s15", "s9")
    a.salu("s_lshl_b32", "s15", "s15", 2)
    a.salu("s_lshl_b32", "s9", "s11", 1)
    a.salu("s_add_u32", "s15", "s15", "s9")
    a.salu("s_lshl_b32", "s15", "s15", 10)
    for p in range(4):
        for mm in range(2):
            a.bload(4, V(PQ + (2 * p + mm) * 4, 4), "v4", S(32, 4), "s15", mm * 1024, tag=("Q", p))
        if p < 3:
            a.salu("s_add_u32", "s15", "s15", 4096)
    a.wait_vm("KV")
    a.barrier()
    a.salu("s_lshl_b32", "s9", "s10", 13)
    a.salu("s_add_u32", "s9", "s9", K2_KV)
    a.valu("v_lshl_add_u32", V(TM), "v1", 2, "s9")
    a.salu("s_lshl_b32", "s9", "s10", 9)
    a.salu("s_add_u32", "s9", "s9", K2_KV + 32768)
    a.valu("v_lshl_add_u32", V(TM + 1), "v3", 4, "s9")
    KT = OF
    for hd in range(8):
        a.ds_read2st64(V(KT + 8 * hd, 2), V(TM), 4 * hd, 4 * hd + 1, tag=("KVR", hd >> 2))
        a.ds_read2st64(V(KT + 8 * hd + 2, 2), V(TM), 4 * hd + 2, 4 * hd + 3, tag=("KVR", hd >> 2))
        a.ds_read("ds_read_b128", V(KT + 8 * hd + 4, 4), V(TM + 1), hd * 64, tag=("KVR", hd >> 2))
    a.salu("s_lshl_b32", "s15", "s10", 7)
    a.salu("s_lshl_b32", "s9", "s11", 6)
    a.salu("s_add_u32", "s15", "s15", "s9")
    a.salu("s_lshl_b32", "s9", "s15", 7)
    a.salu("s_lshl_b32", "s15", "s15", 10)
    a.salu("s_lshl_b32", "s53", "s7", 7)
    a.salu("s_add_u32", "s15", "s15", "s53")
    for u in range(8):
        a.salu("s_add_u32", "s53", "s15", u * 8192)
        a.salu("s_add_u32", "m0", "s9", u * 1024)
        a.dma("v5", S(28, 4), "s53", tag="B")
    for t in range(2):
        a.bload(2, V(XR + 2 * t, 2), "v13", S(24, 4), "s14", t * 32, tag="X")
    a.stamp()
    for hd in range(8):
        if hd % 4 == 0:
            a.wait_lg(("KVR", hd >> 2))
        for j in range(4):
            a.valu("v_cvt_pk_bf16_f32", V(KV + 4 * hd + j), V(KT + 8 * hd + 2 * j), V(KT + 8 * hd + 2 * j + 1))
    a.salu("s_mov_b32", "s53", f32bits(1e-6))
    units = [(p, mm) for p in range(4) for mm in range(2)]

    def o_mfma(u):
        p, mm = units[u]
        if mm == 0:
            a.wait_vm(("Q", p))
        q = PQ + (2 * p + mm) * 4
        nd = ND + 16 * (u & 1)
        for hd in range(2):
            kv = KV + 4 * (2 * p + hd)
            a.mfma16(V(nd + 8 * hd + 4, 4), V(kv + 2, 2), V(q + 2 * hd, 2), 0)
            a.mfma16(V(nd + 8 * hd, 4), V(kv, 2), V(q + 2 * hd, 2), 0)

    def o_valu(u):
        p, mm = units[u]
        nd = ND + 16 * (u & 1)
        for hd in range(2):
            den = V(nd + 8 * hd + 4)
            a.valu("v_add_f32", den, "s53", den)
            a.trans("v_rcp_f32", den, den)
        for hd in range(2):
            den = V(nd + 8 * hd + 4)
            for r in range(4):
                a.valu("v_mul_f32", V(nd + 8 * hd + r), V(nd + 8 * hd + r), den)
            o = OF + (2 * p + mm) * 4 + 2 * hd
            a.valu("v_cvt_pk_bf16_f32", V(o), V(nd + 8 * hd), V(nd + 8 * hd + 1))
            a.valu("v_cvt_pk_bf16_f32", V(o + 1), V(nd + 8 * hd + 2), V(nd + 8 * hd + 3))

    o_mfma(0)
    for u in range(8):
        if u + 1 < 8:
            o_mfma(u + 1)
        o_valu(u)
    a.stamp()
    a.wait_vm("B")
    a.barrier()

    def wreads(p):
        for t in range(4):
            for hh in range(2):
                a.ds_read("ds_read_b64_tr_b16", V(WF + ((p & 1) * 4 + t) * 4 + 2 * hh, 2), V(8 + t),
                          p * 4096 + hh * 2048, tag=("R", p))
    wreads(0)
    for p in range(4):
        if p < 3:
            wreads(p + 1)
        a.wait_lg(("R", p))
        for t in range(4):
            for mm in range(2):
                d = V(ACC + (mm * 4 + t) * 4, 4)
                a.mfma(d, V(WF + ((p & 1) * 4 + t) * 4, 4), V(OF + (2 * p + mm) * 4, 4), d if p else 0)
    a.stamp()
    a.salu("s_lshl_b32", "s9", "s10", 14)
    a.salu("s_lshl_b32", "s15", "s11", 13)
    a.salu("s_add_u32", "s9", "s9", "s15")
    a.salu("s_add_u32", "s9", "s9", K2_RED)
    a.valu("v_add_u32", V(TM), "s9", "v4")
    for mm in range(2):
        for t in range(4):
            a.ds_write("ds_write_b128", V(TM), V(ACC + (mm * 4 + t) * 4, 4), (mm * 4 + t) * 1024, tag="W")
    a.salu("s_lshl_b32", "s9", "s3", 11)
    a.salu("s_add_u32", "s9", "s9", K2_RED)
    a.valu("v_add_u32", V(TM), "s9", "v4")
    a.wait_lg0()
    a.barrier()
    RB = 16
    for hg in range(4):
        for t in range(2):
            a.ds_read("ds_read_b128", V(RB + hg * 8 + 4 * t, 4), V(TM), hg * 16384 + t * 1024, tag=("X", hg >> 1))
    a.wait_lg(("X", 0))
    for j in range(8):
        a.valu("v_add_f32", V(RB + j), V(RB + j), V(RB + 8 + j))
    a.wait_lg(("X", 1))
    for j in range(8):
        a.valu("v_add_f32", V(RB + 16 + j), V(RB + 16 + j), V(RB + 24 + j))
    for j in range(8):
        a.valu("v_add_f32", V(RB + j), V(RB + j), V(RB + 16 + j))
    a.wait_vm("X")
    XS = RB + 8
    for j in range(4):
        bf16_round_pair(a, V(RB + 2 * j), V(RB + 2 * j + 1), V(TM + 1), "s52")
    for j in range(4):
        unpack2(a, V(XS + 2 * j), V(XS + 2 * j + 1), V(XR + j), "s52")
    for j in range(8):
        a.valu("v_add_f32", V(RB + j), V(RB + j), V(XS + j))
    HO = RB + 16
    for j in range(4):
        a.valu("v_cvt_pk_bf16_f32", V(HO + j), V(RB + 2 * j), V(RB + 2 * j + 1))
    a.salu("s_add_u32", "s9", "s12", "s13")
    a.salu("s_lshl_b32", "s9", "s9", 10)
    a.bstore(4, V(HO, 4), "v4", S(36, 4), "s9", 0)
    for j in range(4):
        unpack2(a, V(RB + 2 * j), V(RB + 2 * j + 1), V(HO + j), "s52")
    S1, S2 = RB + 24, RB + 25
    a.valu("v_add_f32", V(S1), V(RB), V(RB + 1))
    a.valu("v_mul_f32", V(S2), V(RB), V(RB))
    a.valu("v_fmac_f32", V(S2), V(RB + 1), V(RB + 1))
    for j in range(2, 8):
        a.valu("v_add_f32", V(S1), V(S1), V(RB + j))
        a.valu("v_fmac_f32", V(S2), V(RB + j), V(RB + j))
    gsum(a, V(S1), V(TM + 1))
    gsum(a, V(S2), V(TM + 2))
    a.valu("v_lshlrev_b32", V(TM + 3), 7, "v12")
    a.salu("s_lshl_b32", "s9", "s13", 3)
    a.salu("s_mov_b64", "exec", "0xffff")
    a.bstore(2, V(S1, 2), V(TM + 3), S(44, 4), "s9", 0)
    a.salu("s_mov_b64", "exec", -1)
    a.stamp()
    a.wait_vm0()
    a.dump_stamps(22, 1)
    a.label("K2_END")
    a.raw("    s_endpgm")
    return a.text() + kernel_desc(name, TM + 8), name, K2_LDS, 256, 512


K3_AUX = 131072
K3_LDS = 131072 + 1024


def gen_k3():
    a = Asm()
    name = "k3_mlp1_kernel"
    kernel_header(a, name)
    a.scmp("s_cmp_ge_u32", "s2", 256)
    a.raw("    s_cbranch_scc1 K3_END")
    a.raw("    s_load_dwordx4 s[16:19], s[0:1], 32")
    a.raw("    s_load_dwordx2 s[20:21], s[0:1], 48")
    a.raw("    s_load_dwordx2 s[22:23], s[0:1], 80")
    lane_setup(a)
    a.valu("v_lshlrev_b32", "v4", 4, "v1")
    a.scmp("s_cmp_ge_u32", "s8", 28)
    a.branch("s_cbranch_scc1", "K3_PF")
    a.salu("s_and_b32", "s6", "s8", 3)
    a.salu("s_lshl_b32", "s9", "s4", 2)
    a.salu("s_add_u32", "s6", "s6", "s9")
    a.salu("s_lshr_b32", "s7", "s8", 2)
    a.salu("s_mul_i32", "s9", "s5", 7)
    a.salu("s_add_u32", "s7", "s7", "s9")
    a.scmp("s_cmp_ge_u32", "s3", 8)
    a.branch("s_cbranch_scc1", "K3_LOADER")
    a.salu("s_and_b32", "s10", "s3", 1)
    a.salu("s_lshr_b32", "s11", "s3", 1)
    a.salu("s_lshl_b32", "s9", "s10", 12)
    a.valu("v_add_u32", "v5", "s9", "v4")
    a.valu("v_add_u32", "v6", HI, "v5")
    a.valu("v_lshrrev_b32", "v7", 2, "v2")
    a.valu("v_lshl_add_u32", "v7", "v3", 2, "v7")
    a.valu("v_and_b32", "v8", 7, "v7")
    a.valu("v_lshlrev_b32", "v7", 8, "v7")
    a.valu("v_lshl_add_u32", "v7", "v8", 5, "v7")
    a.valu("v_and_b32", "v8", 3, "v1")
    a.valu("v_lshl_add_u32", "v7", "v8", 3, "v7")
    a.valu("v_add_u32", "v7", 8192, "v7")
    a.salu("s_lshl_b32", "s9", "s11", 6)
    a.valu("v_xor_b32", "v7", "s9", "v7")
    a.valu("v_add_u32", "v8", HI, "v7")
    a.valu("v_xor_b32", "v9", 32, "v7")
    a.valu("v_add_u32", "v10", HI, "v9")
    WRD = [("v7", "v8"), ("v9", "v10")]
    ARD = ("v5", "v6")
    ONES = 12
    for i in range(4):
        a.valu("v_mov_b32", V(ONES + i), "0x3f803f80")
    a.salu("s_lshl_b32", "s12", "s6", 7)
    a.salu("s_lshl_b32", "s9", "s10", 6)
    a.salu("s_add_u32", "s12", "s12", "s9")
    a.valu("v_lshlrev_b32", "v11", 7, "v2")
    a.valu("v_lshl_add_u32", "v11", "v3", 5, "v11")
    a.salu("s_lshl_b32", "s13", "s11", 4)
    a.salu("s_add_u32", "s13", "s13", "s12")
    a.salu("s_lshl_b32", "s13", "s13", 7)
    a.raw("    s_waitcnt lgkmcnt(0)")
    make_srd(a, 32, 22, H1F_OFF, 7 << 20)
    make_srd(a, 36, 18, 0, 1792 * 2)
    make_srd(a, 44, 22, ST_OFF, 256 << 10)
    FB = 16
    ACC = 64
    CS = 96
    STT = 104
    B1R = 112
    T = 116
    for h in range(2):
        a.bload(4, V(STT + 4 * h, 4), "v11", S(44, 4), "s13", h * 16, tag="ST")
    a.valu("v_lshlrev_b32", V(T), 3, "v3")
    a.salu("s_lshl_b32", "s13", "s7", 8)
    a.salu("s_lshl_b32", "s9", "s11", 6)
    a.salu("s_add_u32", "s13", "s13", "s9")
    for t in range(2):
        a.bload(2, V(B1R + 2 * t, 2), V(T), S(36, 4), "s13", t * 32, tag="B1")
    a.stamp()
    a.wait_vm("ST")
    b0 = STT
    for j in (2, 4, 6):
        a.valu("v_add_f32", V(b0), V(b0), V(b0 + j))
        a.valu("v_add_f32", V(b0 + 1), V(b0 + 1), V(b0 + j + 1))
    gsum(a, V(b0), V(b0 + 2))
    gsum(a, V(b0 + 1), V(b0 + 3))
    m1, s1 = V(b0), V(b0 + 1)
    mean, var, t0, t1 = V(b0 + 2), V(b0 + 3), V(b0 + 4), V(b0 + 5)
    ln_scalars(a, m1, s1, mean, var)
    a.trans("v_rcp_f32", t0, s1)
    a.valu("v_sub_f32", mean, mean, m1)
    a.valu("v_mul_f32", mean, mean, t0)
    a.valu("v_mul_f32", var, var, t0)
    a.valu("v_mul_f32", var, var, t0)
    a.valu("v_cvt_pk_bf16_f32", t1, mean, var)
    a.valu("v_and_b32", var, "0xffff0000", t1)
    a.valu("v_lshlrev_b32", mean, 16, t1)
    a.valu("v_add_f32", var, f32bits(1e-5), var)
    bf16_round1(a, var, t1)
    a.trans("v_sqrt_f32", var, var)
    bf16_round1(a, var, t1)
    a.valu("v_fma_f32", m1, mean, s1, m1)
    a.trans("v_rcp_f32", var, var)
    a.valu("v_mul_f32", s1, t0, var)
    a.salu("s_lshl_b32", "s9", "s10", 2)
    a.salu("s_add_u32", "s9", "s9", "s11")
    a.salu("s_lshl_b32", "s9", "s9", 7)
    a.salu("s_add_u32", "s9", "s9", K3_AUX)
    a.valu("v_lshl_add_u32", V(T + 1), "v2", 3, "s9")
    a.ds_write("ds_write_b64", V(T + 1), V(b0, 2), 0)
    a.salu("s_lshl_b32", "s9", "s10", 9)
    a.salu("s_add_u32", "s9", "s9", K3_AUX)
    a.valu("v_lshl_add_u32", V(T + 1), "v2", 3, "s9")
    a.wait_lg0()

    def fr(buf, idx):
        return FB + (buf * 6 + idx) * 4

    def reads(ks):
        buf = ks & 1
        sl = (ks % 8) * 16384
        L = []
        for t in range(2):
            for hh in range(2):
                r, o = lref(WRD[t], sl + hh * 4096)
                L.append(lambda t=t, hh=hh, r=r, o=o: a.ds_read(
                    "ds_read_b64_tr_b16", V(fr(buf, 4 + t) + 2 * hh, 2), r, o, tag=("R", ks)))
        for m in range(4):
            r, o = lref(ARD, sl + m * 1024)
            L.append(lambda m=m, r=r, o=o: a.ds_read("ds_read_b128", V(fr(buf, m), 4), r, o, tag=("R", ks)))
        return L

    a.barrier()
    a.stamp()
    for f in reads(0):
        f()
    for m in range(4):
        a.ds_read("ds_read_b64", V(STT + 2 * m, 2), V(T + 1), m * 128, tag="SR")
    for ks in range(16):
        buf = ks & 1
        a.wait_lg(("R", ks))
        if ks + 1 < 16:
            a.barrier()
        M = []
        for t in range(2):
            W = V(fr(buf, 4 + t), 4)
            for m in range(4):
                d = V(ACC + (m * 2 + t) * 4, 4)
                M.append(lambda d=d, W=W, m=m: a.mfma(d, W, V(fr(buf, m), 4), d if ks else 0))
            M.append(lambda t=t, W=W: a.mfma(V(CS + 4 * t, 4), W, V(ONES, 4), V(CS + 4 * t, 4) if ks else 0))
        interleave(M, reads(ks + 1) if ks + 1 < 16 else [])
    a.stamp()
    C0 = 2.0 * math.sqrt(2.0 / math.pi) * LOG2E
    C1 = C0 * 0.044715
    a.salu("s_mov_b32", "s50", f32bits(-C1))
    a.salu("s_mov_b32", "s52", "0xffff0000")
    BB = T
    NC0 = T + 8
    E = T + 12
    O = T + 16
    a.valu("v_mov_b32", V(NC0), f32bits(-C0))
    a.wait_vm("B1")
    for t in range(2):
        unpack2(a, V(BB + 4 * t), V(BB + 4 * t + 1), V(B1R + 2 * t), "s52")
        unpack2(a, V(BB + 4 * t + 2), V(BB + 4 * t + 3), V(B1R + 2 * t + 1), "s52")
    a.salu("s_lshr_b32", "s13", "s12", 4)
    a.salu("s_mul_i32", "s13", "s13", 56)
    a.salu("s_lshl_b32", "s9", "s7", 2)
    a.salu("s_add_u32", "s13", "s13", "s9")
    a.salu("s_add_u32", "s13", "s13", "s11")
    a.salu("s_lshl_b32", "s13", "s13", 10)
    for m in range(4):
        M1, SC = V(STT + 2 * m), V(STT + 2 * m + 1)
        o = O + 4 * (m & 1)
        for t in range(2):
            x = ACC + (m * 2 + t) * 4
            for r in range(4):
                a.valu("v_fma_f32", V(x + r), "-" + M1, V(CS + 4 * t + r), V(x + r))
            for r in range(4):
                a.valu("v_fma_f32", V(x + r), V(x + r), SC, V(BB + 4 * t + r))
            for r in range(4):
                a.valu("v_mul_f32", V(E + r), V(x + r), V(x + r))
            for r in range(4):
                a.valu("v_fma_f32", V(E + r), V(E + r), "s50", V(NC0))
            for r in range(4):
                a.valu("v_mul_f32", V(E + r), V(E + r), V(x + r))
            for r in range(4):
                a.trans("v_exp_f32", V(E + r), V(E + r))
            for r in range(4):
                a.valu("v_add_f32", V(E + r), 1.0, V(E + r))
            for r in range(4):
                a.trans("v_rcp_f32", V(E + r), V(E + r))
            for r in range(4):
                a.valu("v_mul_f32", V(x + r), V(x + r), V(E + r))
            a.valu("v_cvt_pk_bf16_f32", V(o + 2 * t), V(x), V(x + 1))
            a.valu("v_cvt_pk_bf16_f32", V(o + 2 * t + 1), V(x + 2), V(x + 3))
        a.bstore(4, V(o, 4), "v4", S(32, 4), "s13", 0)
        if m < 3:
            a.salu("s_add_u32", "s13", "s13", 56 * 1024)
    a.stamp()
    a.dump_stamps(22, 2)
    a.raw("    s_endpgm")
    nv = T + 24

    b = sub_asm(a)
    b.label("K3_LOADER")
    b.salu("s_sub_u32", "s9", "s3", 8)
    b.valu("v_mul_u32_u24", "v5", 3584, "v3")
    b.valu("v_and_b32", "v6", 1, "v1")
    b.valu("v_lshl_add_u32", "v5", "v6", 4, "v5")
    b.valu("v_bfe_u32", "v6", "v1", 1, 3)
    b.valu("v_xor_b32", "v6", "v6", "v3")
    b.valu("v_xor_b32", "v7", 4, "v6")
    b.valu("v_lshl_add_u32", "v6", "v6", 5, "v5")
    b.valu("v_lshl_add_u32", "v7", "v7", 5, "v5")
    b.raw("    s_waitcnt lgkmcnt(0)")
    make_srd(b, 24, 22, HF_OFF, 2 << 20)
    make_srd(b, 28, 16, 0, 512 * 1792 * 2)
    b.salu("s_lshl_b32", "s10", "s6", 3)
    b.salu("s_lshl_b32", "s11", "s9", 1)
    b.salu("s_add_u32", "s10", "s10", "s11")
    b.salu("s_lshl_b32", "s10", "s10", 14)
    b.salu("s_lshl_b32", "s11", "s9", 11)
    b.salu("s_mul_i32", "s12", "s9", 8 * 3584)
    b.salu("s_lshl_b32", "s13", "s7", 8)
    b.salu("s_add_u32", "s12", "s12", "s13")

    def issue(ks):
        sl = (ks % 8) * 16384
        for u in range(2):
            b.salu("s_add_u32", "s15", "s12", (32 * ks + 4 * u) * 3584)
            b.salu("s_add_u32", "m0", "s11", sl + 8192 + u * 1024)
            b.dma("v6" if u % 2 == 0 else "v7", S(28, 4), "s15", tag=("L", ks))
        for mm in range(2):
            b.salu("s_add_u32", "s15", "s10", mm * 16384 + ks * 1024)
            b.salu("s_add_u32", "m0", "s11", sl + mm * 1024)
            b.dma("v4", S(24, 4), "s15", tag=("L", ks))

    D3 = int(os.environ.get("D3", "3"))
    b.stamp()
    nxt = 0
    for ks in range(D3):
        issue(ks)
        nxt += 1
    b.stamp()
    for ks in range(16):
        b.wait_vm(("L", ks))
        b.barrier()
        while nxt <= min(ks + D3, 15):
            issue(nxt)
            nxt += 1
    b.stamp()
    b.dump_stamps(22, 2)
    b.raw("    s_endpgm")

    c = sub_asm(a)
    c.label("K3_PF")
    c.scmp("s_cmp_ge_u32", "s3", 8)
    c.branch("s_cbranch_scc1", "K3_END")
    c.valu("v_lshrrev_b32", "v6", 5, "v1")
    c.valu("v_and_b32", "v7", 31, "v1")
    c.valu("v_lshlrev_b32", "v6", 10, "v6")
    c.valu("v_lshl_add_u32", "v6", "v7", 4, "v6")
    c.raw("    s_waitcnt lgkmcnt(0)")
    make_srd(c, 28, 20, 0, 1792 * 512 * 2)
    c.salu("s_sub_u32", "s9", "s8", 28)
    c.salu("s_mul_i32", "s9", "s9", 448)
    c.salu("s_mul_i32", "s10", "s3", 56)
    c.salu("s_add_u32", "s9", "s9", "s10")
    c.salu("s_lshl_b32", "s9", "s9", 10)
    c.salu("s_lshl_b32", "s10", "s5", 9)
    c.salu("s_add_u32", "s9", "s9", "s10")
    for n in range(0 if os.environ.get("NOPF2") else 28):
        c.salu("s_add_u32", "s10", "s9", n * 2048)
        c.bload(4, V(8 + 4 * n, 4), "v6", S(28, 4), "s10", 0)
    c.wait_vm0()
    c.label("K3_END")
    c.raw("    s_endpgm")
    return a.text() + b.text() + c.text() + kernel_desc(name, nv), name, K3_LDS, 256, 768


K4_LDS = 131072


def gen_k4():
    a = Asm()
    name = "k4_mlp2_kernel"
    kernel_header(a, name)
    a.scmp("s_cmp_ge_u32", "s2", 256)
    a.raw("    s_cbranch_scc1 K4_END")
    a.raw("    s_load_dwordx4 s[16:19], s[0:1], 48")
    a.raw("    s_load_dwordx2 s[20:21], s[0:1], 64")
    a.raw("    s_load_dwordx2 s[22:23], s[0:1], 80")
    lane_setup(a)
    map_8x4(a)
    a.valu("v_lshlrev_b32", "v4", 4, "v1")
    a.salu("s_and_b32", "s9", "s3", 3)
    a.salu("s_lshl_b32", "s10", "s9", 15)
    a.salu("s_lshr_b32", "s12", "s3", 1)
    a.salu("s_lshl_b32", "s12", "s12", 4)
    a.salu("s_lshl_b32", "s13", "s6", 6)
    a.salu("s_add_u32", "s12", "s12", "s13")
    a.valu("v_add_u32", "v12", "s12", "v2")
    a.valu("v_lshlrev_b32", "v13", 10, "v12")
    a.valu("v_lshl_add_u32", "v13", "v3", 3, "v13")
    a.valu("v_lshlrev_b32", "v14", 3, "v3")
    a.salu("s_and_b32", "s13", "s3", 1)
    a.salu("s_lshl_b32", "s14", "s7", 1)
    a.salu("s_add_u32", "s13", "s13", "s14")
    a.salu("s_lshl_b32", "s14", "s13", 6)
    a.raw("    s_waitcnt lgkmcnt(0)")
    make_srd(a, 32, 22, HF_OFF, 2 << 20)
    make_srd(a, 36, 18, 0, 512 * 2)
    make_srd(a, 40, 20, 0, 2048 * 512 * 2)
    a.salu("s_mov_b32", "s52", "0xffff0000")
    HR = 16
    B2R = 20
    a.salu("s_add_u32", "s15", "s12", "s13")
    a.salu("s_lshl_b32", "s15", "s15", 10)
    a.scmp("s_cmp_ge_u32", "s3", 4)
    a.branch("s_cbranch_scc1", "K4_LOADER")
    a.bload(4, V(HR, 4), "v4", S(32, 4), "s15", 0, tag="E")
    for t in range(2):
        a.bload(2, V(B2R + 2 * t, 2), "v14", S(36, 4), "s14", t * 32, tag="E")
    a.valu("v_add_u32", "v5", "s10", "v4")
    w128_tr_base(a, "v8", "v6", "v7")
    a.valu("v_add_u32", "v8", "s10", "v8")
    for t in range(1, 4):
        a.valu("v_xor_b32", V(8 + t), t << 5, "v8")
    FR = 24
    ACC = 88
    TM = 152

    def reads(n):
        sl = (n % 4) * 8192
        bb = n & 1
        L = []
        for t in range(4):
            for hh in range(2):
                L.append(lambda t=t, hh=hh: a.ds_read(
                    "ds_read_b64_tr_b16", V(FR + (bb * 8 + 4 + t) * 4 + 2 * hh, 2), V(8 + t),
                    sl + 4096 + hh * 2048, tag=("R", n)))
        for m in range(4):
            L.append(lambda m=m: a.ds_read("ds_read_b128", V(FR + (bb * 8 + m) * 4, 4), "v5", sl + m * 1024, tag=("R", n)))
        return L

    a.stamp()
    a.barrier()
    a.stamp()
    for f in reads(0):
        f()
    for n in range(14):
        bb = n & 1
        a.wait_lg(("R", n))
        if n + 1 < 14:
            a.barrier()
        M = []
        for t in range(4):
            for m in range(4):
                d = V(ACC + (m * 4 + t) * 4, 4)
                M.append(lambda d=d, t=t, m=m: a.mfma(d, V(FR + (bb * 8 + 4 + t) * 4, 4), V(FR + (bb * 8 + m) * 4, 4), d if n else 0))
        interleave(M, reads(n + 1) if n + 1 < 14 else [])
    a.stamp()
    for q in range(16):
        a.ds_write("ds_write_b128", "v5", V(ACC + 4 * q, 4), q * 1024, tag="W")
    a.wait_lg0()
    a.branch("s_branch", "K4_FINAL")

    b = sub_asm(a)
    b.label("K4_LOADER")
    w128_dma_voff(b, "v5", "v6", "v7", 1024, False)
    make_srd(b, 24, 22, H1F_OFF, 7 << 20)
    make_srd(b, 28, 16, 0, 1792 * 512 * 2)
    b.salu("s_mul_i32", "s11", "s6", 4 * 56)
    b.salu("s_mul_i32", "s53", "s9", 14)
    b.salu("s_add_u32", "s11", "s11", "s53")
    b.salu("s_lshl_b32", "s11", "s11", 10)
    b.salu("s_lshl_b32", "s53", "s53", 15)
    b.salu("s_lshl_b32", "s54", "s7", 7)
    b.salu("s_add_u32", "s53", "s53", "s54")

    def issue(n):
        sl = (n % 4) * 8192
        for u in range(4):
            b.salu("s_add_u32", "s54", "s53", (32 * n + 8 * u) * 1024)
            b.salu("s_add_u32", "m0", "s10", sl + 4096 + u * 1024)
            b.dma("v5", S(28, 4), "s54", tag=("L", n))
        for m in range(4):
            b.salu("s_add_u32", "s54", "s11", (m * 56 + n) * 1024)
            b.salu("s_add_u32", "m0", "s10", sl + m * 1024)
            b.dma("v4", S(24, 4), "s54", tag=("L", n))

    D4 = int(os.environ.get("D4", "3"))
    b.stamp()
    nxt = 0
    for n in range(D4):
        issue(n)
        nxt += 1
    b.stamp()
    for n in range(14):
        b.wait_vm(("L", n))
        b.barrier()
        while nxt <= min(n + D4, 13):
            issue(nxt)
            nxt += 1
        if n == 10:
            b.bload(4, V(HR, 4), "v4", S(32, 4), "s15", 0, tag="E")
            for t in range(2):
                b.bload(2, V(B2R + 2 * t, 2), "v14", S(36, 4), "s14", t * 32, tag="E")
    b.stamp()
    b.label("K4_FINAL")
    b.nstamp = 3
    b.barrier()
    RB = 24
    b.salu("s_lshl_b32", "s9", "s3", 11)
    b.valu("v_add_u32", V(TM), "s9", "v4")
    b.valu("v_add_u32", V(TM + 1), HI, V(TM))
    for w in range(4):
        for t in range(2):
            r, o = lref((V(TM), V(TM + 1)), w * 32768 + t * 1024)
            b.ds_read("ds_read_b128", V(RB + w * 8 + 4 * t, 4), r, o, tag=("X", w >> 1))
    b.wait_vm0()
    BS = RB + 32
    XS = RB + 40
    for j in range(4):
        unpack2(b, V(BS + 2 * j), V(BS + 2 * j + 1), V(B2R + j), "s52")
        unpack2(b, V(XS + 2 * j), V(XS + 2 * j + 1), V(HR + j), "s52")
    b.wait_lg(("X", 0))
    for j in range(8):
        b.valu("v_add_f32", V(RB + j), V(RB + j), V(RB + 8 + j))
    b.wait_lg(("X", 1))
    for j in range(8):
        b.valu("v_add_f32", V(RB + 16 + j), V(RB + 16 + j), V(RB + 24 + j))
    for j in range(8):
        b.valu("v_add_f32", V(RB + j), V(RB + j), V(RB + 16 + j))
    for j in range(4):
        bf16_round_pair(b, V(RB + 2 * j), V(RB + 2 * j + 1), V(TM + 2), "s52")
    for j in range(8):
        b.valu("v_add_f32", V(RB + j), V(RB + j), V(BS + j))
    for j in range(4):
        bf16_round_pair(b, V(RB + 2 * j), V(RB + 2 * j + 1), V(TM + 2), "s52")
    for j in range(8):
        b.valu("v_add_f32", V(RB + j), V(RB + j), V(XS + j))
    for j in range(4):
        b.valu("v_cvt_pk_bf16_f32", V(HR + j), V(RB + 2 * j), V(RB + 2 * j + 1))
    for t in range(2):
        b.bstore(2, V(HR + 2 * t, 2), "v13", S(40, 4), "s14", t * 32)
    b.stamp()
    b.dump_stamps(22, 3)
    b.label("K4_END")
    b.raw("    s_endpgm")
    return a.text() + b.text() + kernel_desc(name, TM + 8), name, K4_LDS, 256, 512


HEADER = """; Kernarg layout for this problem (88 bytes, ptrs only, base s[0:1]):
"""


def main():
    ks = [gen_k1(), gen_k2(), gen_k3(), gen_k4()]
    out = HEADER
    for (_, name, lds, grid, blk) in ks:
        out += f"; @launch kernel={name} grid=({grid},1,1) block=({blk},1,1) lds={lds}\n"
    out += '.amdgcn_target "amdgcn-amd-amdhsa--gfx950"\n.text\n'
    for k in ks:
        out += k[0]
    path = sys.argv[1] if len(sys.argv) > 1 else f"cdna_kernels/{NAME}.s"
    open(path, "w").write(out)
    print("wrote", path, len(out), "bytes")


if __name__ == "__main__":
    main()
```

```python
import sys, os, math
sys.path.insert(0, os.path.dirname(__file__))
from asmlib import Asm, V, A, S
Asm.abl = set(os.environ.get('ABL', '').split(','))
if os.environ.get('STAMPS'):
    Asm.stamps = int(os.environ.get('STAMPS'))

NAME = "sequential_preLN__linear_attn_block__mixer_channel_mlp__prompt"

PQF_OFF = 0
HF_OFF = 2 << 20
H1F_OFF = 4 << 20
KVP_OFF = 12 << 20
ZP_OFF = 13 << 20
KVF_OFF = (13 << 20) + (512 << 10)
ST_OFF = 14 << 20
HI = 65536

LOG2E = 1.4426950408889634


def f32bits(x):
    import struct
    return "0x%08x" % struct.unpack("<I", struct.pack("<f", x))[0]


def make_srd(a, sd, sb, off, nbytes):
    if off:
        a.salu("s_add_u32", S(sd), S(sb), off)
        a.salu("s_addc_u32", S(sd + 1), S(sb + 1), 0)
        a.salu("s_and_b32", S(sd + 1), S(sd + 1), "0xffff")
    else:
        a.salu("s_mov_b32", S(sd), S(sb))
        a.salu("s_and_b32", S(sd + 1), S(sb + 1), "0xffff")
    a.salu("s_mov_b32", S(sd + 2), nbytes)
    a.salu("s_mov_b32", S(sd + 3), "0x20000")


def lane_setup(a):
    a.valu("v_lshrrev_b32", "v4", 6, "v0")
    a.valu("v_and_b32", "v1", 63, "v0")
    a.rfl("s3", "v4")
    a.valu("v_and_b32", "v2", 15, "v1")
    a.valu("v_lshrrev_b32", "v3", 4, "v1")
    a.salu("s_bfe_u32", "s4", "s2", "0x20001")
    a.salu("s_and_b32", "s5", "s2", 1)
    a.salu("s_lshr_b32", "s8", "s2", 3)


def map_8x4(a):
    a.salu("s_and_b32", "s6", "s8", 7)
    a.salu("s_lshl_b32", "s9", "s4", 3)
    a.salu("s_add_u32", "s6", "s6", "s9")
    a.salu("s_lshr_b32", "s7", "s8", 3)
    a.salu("s_lshl_b32", "s9", "s5", 2)
    a.salu("s_add_u32", "s7", "s7", "s9")


def lref(regs, off):
    if off >= HI:
        assert off - HI < 65536
        return regs[1], off - HI
    return regs[0], off


def bf16_round_pair(a, x0, x1, tmp, smask):
    a.valu("v_cvt_pk_bf16_f32", tmp, x0, x1)
    a.valu("v_lshlrev_b32", x0, 16, tmp)
    a.valu("v_and_b32", x1, smask, tmp)


def bf16_round1(a, x, tmp):
    a.valu("v_cvt_pk_bf16_f32", tmp, x, x)
    a.valu("v_lshlrev_b32", x, 16, tmp)


def unpack2(a, lo, hi, src, smask):
    a.valu("v_lshlrev_b32", lo, 16, src)
    a.valu("v_and_b32", hi, smask, src)


def ln_scalars(a, s1, s2, tmp, tmp2):
    a.valu("v_mul_f32", tmp, f32bits(1.0 / 512), s1)
    a.valu("v_mul_f32", tmp2, f32bits(1.0 / 512), s2)
    a.valu("v_fma_f32", tmp2, "-" + tmp, tmp, tmp2)
    a.valu("v_max_f32", tmp2, 0, tmp2)
    a.valu("v_cvt_pk_bf16_f32", s1, tmp, tmp2)
    a.valu("v_and_b32", s2, "0xffff0000", s1)
    a.valu("v_lshlrev_b32", s1, 16, s1)
    a.valu("v_add_f32", s2, f32bits(1e-5), s2)
    a.valu("v_cvt_pk_bf16_f32", s2, s2, s2)
    a.valu("v_lshlrev_b32", s2, 16, s2)
    a.trans("v_sqrt_f32", s2, s2)
    a.valu("v_cvt_pk_bf16_f32", s2, s2, s2)
    a.valu("v_lshlrev_b32", s2, 16, s2)


def gsum(a, x, t):
    a.valu("v_mov_b32", t, x)
    a.permswap(16, x, t)
    a.valu("v_add_f32", x, x, t)
    a.valu("v_mov_b32", t, x)
    a.permswap(32, x, t)
    a.valu("v_add_f32", x, x, t)


def interleave(ms, rs, first=1):
    n = len(ms)
    slots = max(1, n - first)
    per = max(int(os.environ.get("PER", "2")), -(-len(rs) // slots))
    ri = 0
    for i, m in enumerate(ms):
        m()
        if i + 1 >= first:
            for _ in range(per):
                if ri < len(rs):
                    rs[ri]()
                    ri += 1
    while ri < len(rs):
        rs[ri]()
        ri += 1


def kernel_header(a, name):
    a.raw(f".globl {name}")
    a.raw(".p2align 8")
    a.raw(f".type {name},@function")
    a.raw(f"{name}:")
    a.stamp()


def kernel_desc(name, nvgpr, nsgpr=102):
    nv = (nvgpr + 7) // 8 * 8
    return f""".section .rodata,"a"
.p2align 6
.amdhsa_kernel {name}
  .amdhsa_next_free_vgpr {nv}
  .amdhsa_next_free_sgpr {nsgpr}
  .amdhsa_accum_offset {nv}
  .amdhsa_group_segment_fixed_size 0
  .amdhsa_kernarg_size 88
  .amdhsa_user_sgpr_count 2
  .amdhsa_user_sgpr_kernarg_segment_ptr 1
  .amdhsa_system_sgpr_workgroup_id_x 1
.end_amdhsa_kernel
.text
"""


def sub_asm(a):
    b = Asm()
    b.nstamp = 1 if Asm.stamps else 0
    return b


def w128_dma_voff(a, dst, t0, t1, pitch, perm):
    if perm:
        a.valu("v_bfe_u32", dst, "v1", 3, 2)
        a.valu("v_lshrrev_b32", t0, 5, "v1")
        a.valu("v_lshl_add_u32", dst, t0, 3, dst)
    else:
        a.valu("v_lshrrev_b32", dst, 3, "v1")
    a.valu("v_mul_u32_u24", dst, pitch, dst)
    a.valu("v_bfe_u32", t0, "v1", 1, 2)
    a.valu("v_bfe_u32", t1, "v1", 4, 2)
    a.valu("v_xor_b32", t0, t0, t1)
    a.valu("v_lshl_add_u32", dst, t0, 5, dst)
    a.valu("v_and_b32", t0, 1, "v1")
    a.valu("v_lshl_add_u32", dst, t0, 4, dst)


def w128_tr_base(a, dst, t0, t1):
    a.valu("v_lshrrev_b32", t0, 2, "v2")
    a.valu("v_lshl_add_u32", dst, "v3", 2, t0)
    a.valu("v_bfe_u32", t1, dst, 1, 2)
    a.valu("v_lshlrev_b32", dst, 7, dst)
    a.valu("v_lshl_add_u32", dst, t1, 5, dst)
    a.valu("v_and_b32", t1, 3, "v1")
    a.valu("v_lshl_add_u32", dst, t1, 3, dst)


K1_WB = 65536
K1_AUX = K1_WB + 5 * 16384
K1_SEEN = K1_AUX + 1024
K1_LDS = K1_AUX + 1088


def gen_k1():
    a = Asm()
    name = "k1_qkv_kernel"
    kernel_header(a, name)
    a.scmp("s_cmp_ge_u32", "s2", 256)
    a.raw("    s_cbranch_scc1 K1_END")
    a.raw("    s_load_dwordx4 s[16:19], s[0:1], 0")
    a.raw("    s_load_dwordx4 s[20:23], s[0:1], 72")
    a.raw("    s_load_dwordx2 s[48:49], s[0:1], 16")
    a.raw("    s_load_dwordx2 s[50:51], s[0:1], 32")
    lane_setup(a)
    map_8x4(a)
    a.scmp("s_cmp_ge_u32", "s3", 4)
    a.branch("s_cbranch_scc1", "K1_LOADER")

    a.valu("v_and_b32", "v4", 7, "v2")
    a.valu("v_xor_b32", "v4", "v4", "v3")
    a.valu("v_lshlrev_b32", "v5", 7, "v2")
    a.valu("v_lshl_add_u32", "v5", "v4", 4, "v5")
    a.valu("v_xor_b32", "v6", 64, "v5")
    a.salu("s_lshl_b32", "s9", "s3", 11)
    a.valu("v_add_u32", "v7", "s9", "v5")
    a.valu("v_add_u32", "v8", "s9", "v6")
    w128_tr_base(a, "v9", "v4", "v10")
    a.salu("s_lshl_b32", "s9", "s3", 5)
    a.valu("v_xor_b32", "v9", "s9", "v9")
    a.valu("v_add_u32", "v9", K1_WB, "v9")
    a.valu("v_add_u32", "v10", HI, "v9")
    WRD = ("v9", "v10")
    ONES = 12
    for i in range(4):
        a.valu("v_mov_b32", V(ONES + i), "0x3f803f80")
    a.raw("    s_waitcnt lgkmcnt(0)")
    make_srd(a, 32, 22, PQF_OFF, 2 << 20)
    make_srd(a, 40, 22, KVF_OFF, 34816)
    make_srd(a, 44, 20, 0, 256)
    a.salu("s_mov_b32", "s52", "0xffff0000")
    EZ = 216
    a.salu("s_lshl_b32", "s63", "s7", 5)
    for r in range(4):
        a.valu("v_mov_b32", V(EZ + r), 0)
    a.valu("v_mov_b32", V(EZ + 4), "s63")
    a.valu("v_mov_b32", V(EZ + 5), 1)
    a.valu("v_mov_b32", V(EZ + 6), 1)
    a.valu("v_lshlrev_b32", V(EZ + 7), 4, "v1")
    a.valu("v_mov_b32", V(EZ + 8), K1_SEEN)
    a.salu("s_mov_b32", "s62", 99)
    a.scmp("s_cmp_lg_u32", "s3", 0)
    a.branch("s_cbranch_scc1", "K1_EL0")
    a.salu("s_mov_b32", "s62", 0)
    a.salu("s_mov_b64", "exec", 1)
    a.batomic_add_ret(V(EZ + 5), V(EZ + 4), S(44, 4))
    a.salu("s_mov_b64", "exec", -1)
    a.label("K1_EL0")
    a.vmq = []
    if not os.environ.get("NOPF0"):
        make_srd(a, 24, 16, 0, 2048 * 512 * 2)
        make_srd(a, 28, 18, 0, 512 * 1536 * 2)
        PD = 228
        a.salu("s_and_b32", "s9", "s8", 7)
        a.salu("s_mul_i32", "s9", "s9", 8 * 3072)
        a.salu("s_lshl_b32", "s10", "s7", 7)
        a.salu("s_add_u32", "s9", "s9", "s10")
        a.valu("v_lshrrev_b32", V(PD + 6), 3, "v1")
        a.valu("v_and_b32", V(PD + 5), 7, "v1")
        a.valu("v_mul_u32_u24", V(PD + 4), 3072, V(PD + 6))
        a.valu("v_lshl_add_u32", V(PD + 4), V(PD + 5), 4, V(PD + 4))
        a.scmp("s_cmp_ge_u32", "s3", 2)
        a.branch("s_cbranch_scc1", "K1_PFX")
        a.salu("s_lshl_b32", "s10", "s3", 10)
        a.salu("s_add_u32", "s10", "s10", "s9")
        for st in range(2, 8):
            a.salu("s_add_u32", "s11", "s10", 1024 + st * 64 * 3072)
            a.bload(4, V(PD, 4), V(PD + 4), S(28, 4), "s11", 0)
        a.branch("s_branch", "K1_PFQ")
        a.label("K1_PFX")
        a.valu("v_lshlrev_b32", V(PD + 6), 10, V(PD + 6))
        a.valu("v_lshl_add_u32", V(PD + 5), V(PD + 5), 4, V(PD + 6))
        a.salu("s_lshl_b32", "s10", "s6", 6)
        a.salu("s_lshr_b32", "s11", "s8", 3)
        a.salu("s_lshl_b32", "s11", "s11", 4)
        a.salu("s_add_u32", "s10", "s10", "s11")
        a.salu("s_lshl_b32", "s11", "s3", 3)
        a.salu("s_add_u32", "s10", "s10", "s11")
        a.salu("s_sub_u32", "s10", "s10", 16)
        a.salu("s_lshl_b32", "s10", "s10", 10)
        for st in range(2, 8):
            a.bload(4, V(PD, 4), V(PD + 5), S(24, 4), "s10", st * 128)
        a.label("K1_PFQ")
        a.salu("s_mul_i32", "s10", "s3", 128 * 3072)
        a.salu("s_add_u32", "s10", "s10", "s9")
        a.bload(4, V(PD, 4), V(PD + 4), S(28, 4), "s10", 0)
        a.salu("s_add_u32", "s10", "s10", 64 * 3072)
        a.bload(4, V(PD, 4), V(PD + 4), S(28, 4), "s10", 0)
        a.vmq = []

    def zero_stores():
        a.salu("s_lshl_b32", "s61", "s7", 12)
        for u in range(4):
            a.bstore(4, V(EZ, 4), V(EZ + 7), S(40, 4), "s61", u * 1024, flags="sc1")
        a.salu("s_lshl_b32", "s61", "s7", 8)
        a.salu("s_add_u32", "s61", "s61", 32768)
        a.salu("s_mov_b64", "exec", "0xffff")
        a.bstore(4, V(EZ, 4), V(EZ + 7), S(40, 4), "s61", 0, flags="sc1")
        a.salu("s_mov_b64", "exec", -1)

    def flag_store():
        a.wait_vm0()
        a.salu("s_mov_b64", "exec", 1)
        a.bstore(1, V(EZ + 6), V(EZ + 4), S(44, 4), 0, 4, flags="sc1")
        a.salu("s_mov_b64", "exec", -1)
        a.salu("s_mov_b32", "s62", 99)

    def checkpoint(c):
        if c >= 2:
            a.scmp("s_cmp_lg_u32", "s62", c - 1)
            a.branch("s_cbranch_scc1", f"K1_CPA{c}")
            flag_store()
            a.label(f"K1_CPA{c}")
        a.scmp("s_cmp_lg_u32", "s62", 0)
        a.branch("s_cbranch_scc1", f"K1_CPB{c}")
        a.rfl("s61", V(EZ + 5))
        a.scmp("s_cmp_lg_u32", "s61", 0)
        a.branch("s_cbranch_scc1", f"K1_CPB{c}")
        zero_stores()
        a.salu("s_mov_b32", "s62", c + 1)
        a.label(f"K1_CPB{c}")
        a.vmq = []

    FB = 16
    ACK = 72
    ACV = 88
    CSK = 104
    CSV = 108
    RS = 112
    GR = 116
    ACQ = 120
    CSQ = 136
    T = 140

    def fr(buf, idx):
        return FB + (buf * 7 + idx) * 4

    def reads1(ks):
        buf = ks & 1
        s, sub = ks >> 1, ks & 1
        ar = "v5" if sub == 0 else "v6"
        xr = "v7" if sub == 0 else "v8"
        sl = (s % 5) * 16384
        L = []
        for part in range(2):
            for hh in range(2):
                r, o = lref(WRD, sl + part * 8192 + sub * 4096 + hh * 2048)
                L.append(lambda part=part, hh=hh, r=r, o=o: a.ds_read(
                    "ds_read_b64_tr_b16", V(fr(buf, 5 + part) + 2 * hh, 2), r, o, tag=("R", ks)))
        for m in range(4):
            L.append(lambda m=m: a.ds_read("ds_read_b128", V(fr(buf, m), 4), ar, s * 8192 + m * 2048, tag=("R", ks)))
        L.append(lambda: a.ds_read("ds_read_b128", V(fr(buf, 4), 4), xr, s * 8192, tag=("R", ks)))
        return L

    a.stamp()
    a.barrier()
    a.stamp()
    for f in reads1(0):
        f()
    for ks in range(16):
        buf = ks & 1
        a.wait_lg(("R", ks))
        if ks + 1 < 16 and (ks + 1) % 2 == 0:
            a.barrier()
        K, Vv = V(fr(buf, 5), 4), V(fr(buf, 6), 4)
        XA = V(fr(buf, 4), 4)
        M = []
        for m in range(4):
            M.append(lambda m=m: a.mfma(V(ACK + 4 * m, 4), V(fr(buf, m), 4), K, V(ACK + 4 * m, 4) if ks else 0))
            M.append(lambda m=m: a.mfma(V(ACV + 4 * m, 4), V(fr(buf, m), 4), Vv, V(ACV + 4 * m, 4) if ks else 0))
        M.append(lambda: a.mfma(V(CSK, 4), V(ONES, 4), K, V(CSK, 4) if ks else 0))
        M.append(lambda: a.mfma(V(CSV, 4), V(ONES, 4), Vv, V(CSV, 4) if ks else 0))
        M.append(lambda: a.mfma(V(RS, 4), XA, V(ONES, 4), V(RS, 4) if ks else 0))
        M.append(lambda: a.mfma(V(GR, 4), XA, XA, V(GR, 4) if ks else 0))
        interleave(M, reads1(ks + 1) if ks + 1 < 16 else [])
        if ks % 2 == 0 and ks < 14:
            checkpoint(ks // 2)
    a.stamp()
    a.valu("v_and_b32", V(T), 3, "v2")
    a.cmp("v_cmp_eq_u32", S(54, 2), 1, V(T))
    a.cmp("v_cmp_eq_u32", S(56, 2), 2, V(T))
    a.cmp("v_cmp_eq_u32", S(58, 2), 3, V(T))
    a.valu("v_lshrrev_b32", V(T + 1), 2, "v2")
    a.cmp("v_cmp_eq_u32", S(60, 2), V(T + 1), "v3")
    for base in (RS, GR):
        a.cndmask(V(base), V(base), V(base + 1), S(54, 2))
        a.cndmask(V(base), V(base), V(base + 2), S(56, 2))
        a.cndmask(V(base), V(base), V(base + 3), S(58, 2))
    a.valu("v_mov_b32", V(RS + 1), V(GR))
    ln_scalars(a, V(RS), V(RS + 1), V(T + 2), V(T + 3))
    a.trans("v_rcp_f32", V(RS + 1), V(RS + 1))
    a.salu("s_lshl_b32", "s9", "s3", 6)
    a.salu("s_add_u32", "s9", "s9", K1_AUX)
    a.valu("v_lshl_add_u32", V(T + 4), "v2", 2, "s9")
    a.salu("s_lshl_b32", "s9", "s3", 7)
    a.salu("s_add_u32", "s9", "s9", K1_AUX + 512)
    a.valu("v_lshl_add_u32", V(T + 5), "v2", 3, "s9")
    a.salu("s_mov_b64", "exec", S(60, 2))
    a.ds_write("ds_write_b32", V(T + 4), V(RS), 0, tag="W")
    a.ds_write("ds_write_b32", V(T + 4), V(RS + 1), 256, tag="W")
    a.ds_write("ds_write_b64", V(T + 5), V(RS, 2), 0, tag="W")
    a.salu("s_mov_b64", "exec", -1)
    a.wait_lg0()
    a.scmp("s_cmp_lg_u32", "s3", 0)
    a.branch("s_cbranch_scc1", "K1_RES2")
    a.scmp("s_cmp_eq_u32", "s62", 0)
    a.branch("s_cbranch_scc1", "K1_RES1")
    a.scmp("s_cmp_eq_u32", "s62", 99)
    a.branch("s_cbranch_scc1", "K1_RES2")
    flag_store()
    a.branch("s_branch", "K1_RES2")
    a.label("K1_RES1")
    a.rfl("s61", V(EZ + 5))
    a.scmp("s_cmp_lg_u32", "s61", 0)
    a.branch("s_cbranch_scc1", "K1_RES3")
    zero_stores()
    flag_store()
    a.branch("s_branch", "K1_RES2")
    a.label("K1_RES3")
    a.ds_read("ds_read_b32", V(EZ + 9), V(EZ + 8), 0)
    a.wait_lg0()
    a.rfl("s61", V(EZ + 9))
    a.scmp("s_cmp_eq_u32", "s61", 0)
    a.branch("s_cbranch_scc1", "K1_RES1")
    a.label("K1_RES2")
    a.vmq = []
    a.barrier()
    MN = T + 8
    RD = T + 24
    PR = T + 40
    a.salu("s_mov_b32", "s9", K1_AUX)
    a.valu("v_lshl_add_u32", V(T + 4), "v3", 4, "s9")
    a.valu("v_lshl_add_u32", V(T + 5), "v2", 3, "s9")
    for m in range(4):
        a.ds_read("ds_read_b128", V(MN + 4 * m, 4), V(T + 4), m * 64, tag="S1")
        a.ds_read("ds_read_b128", V(RD + 4 * m, 4), V(T + 4), 256 + m * 64, tag="S1")
    for m in range(4):
        a.ds_read("ds_read_b64", V(PR + 2 * m, 2), V(T + 5), 512 + m * 128, tag="S2")

    def reads2(ks):
        buf = ks & 1
        s, sub = ks >> 1, ks & 1
        ar = "v5" if sub == 0 else "v6"
        sl = ((8 + (ks >> 2)) % 5) * 16384
        L = []
        for hh in range(2):
            r, o = lref(WRD, sl + ((ks >> 1) & 1) * 8192 + sub * 4096 + hh * 2048)
            L.append(lambda hh=hh, r=r, o=o: a.ds_read(
                "ds_read_b64_tr_b16", V(fr(buf, 5) + 2 * hh, 2), r, o, tag=("R2", ks)))
        for m in range(4):
            L.append(lambda m=m: a.ds_read("ds_read_b128", V(fr(buf, m), 4), ar, s * 8192 + m * 2048, tag=("R2", ks)))
        return L

    EPSP = T + 48
    L2P = T + 50
    a.valu("v_mov_b32", V(EPSP), f32bits(1e-6))
    a.valu("v_mov_b32", V(EPSP + 1), f32bits(1e-6))
    a.valu("v_mov_b32", V(L2P), f32bits(LOG2E))
    a.valu("v_mov_b32", V(L2P + 1), f32bits(LOG2E))
    a.salu("s_mov_b32", "s53", f32bits(1e-6))
    U = T + 52
    PKO = T + 56
    KVD = T + 72

    def phi4(x, out):
        for h in range(2):
            a.pk("v_pk_mul_f32", V(U + 2 * h, 2), V(x + 2 * h, 2), V(L2P, 2))
        for r in range(4):
            a.valu("v_min_f32", V(U + r), 0, V(U + r))
        for r in range(4):
            a.trans("v_exp_f32", V(U + r), V(U + r))
        for r in range(4):
            a.valu("v_max_f32", V(x + r), "s53", V(x + r))
        for h in range(2):
            a.pk("v_pk_add_f32", V(x + 2 * h, 2), V(x + 2 * h, 2), V(U + 2 * h, 2))
        for h in range(2):
            a.valu("v_cvt_pk_bf16_f32", V(out + h), V(x + 2 * h), V(x + 2 * h + 1))

    a.wait_lg("S1")
    for m in range(4):
        x = ACK + 4 * m
        for h in range(2):
            a.pk("v_pk_fma_f32", V(x + 2 * h, 2), V(MN + 4 * m + 2 * h, 2), V(CSK, 2), V(x + 2 * h, 2),
                 neglo=[1, 0, 0], neghi=[1, 0, 0])
        for h in range(2):
            a.pk("v_pk_fma_f32", V(x + 2 * h, 2), V(x + 2 * h, 2), V(RD + 4 * m + 2 * h, 2), V(EPSP, 2))
        phi4(x, PKO + 2 * m)
        x = ACV + 4 * m
        for h in range(2):
            a.pk("v_pk_fma_f32", V(x + 2 * h, 2), V(MN + 4 * m + 2 * h, 2), V(CSV, 2), V(x + 2 * h, 2),
                 neglo=[1, 0, 0], neghi=[1, 0, 0])
        for h in range(2):
            a.pk("v_pk_mul_f32", V(x + 2 * h, 2), V(x + 2 * h, 2), V(RD + 4 * m + 2 * h, 2))
        for h in range(2):
            a.valu("v_cvt_pk_bf16_f32", V(PKO + 8 + 2 * m + h), V(x + 2 * h), V(x + 2 * h + 1))
    for f in reads2(0):
        f()
    a.mfma(V(KVD, 4), V(PKO, 4), V(PKO + 8, 4), 0)
    a.mfma(V(KVD + 4, 4), V(PKO, 4), V(ONES, 4), 0)
    a.mfma(V(KVD, 4), V(PKO + 4, 4), V(PKO + 12, 4), V(KVD, 4))
    a.mfma(V(KVD + 4, 4), V(PKO + 4, 4), V(ONES, 4), V(KVD + 4, 4))
    a.salu("s_lshl_b32", "s10", "s7", 2)
    a.salu("s_add_u32", "s10", "s10", "s3")
    a.salu("s_lshl_b32", "s12", "s10", 10)
    a.salu("s_lshl_b32", "s13", "s10", 6)
    a.salu("s_add_u32", "s13", "s13", 32768)
    LN16 = T + 6
    G16 = T + 7
    a.valu("v_lshlrev_b32", V(T + 4), 2, "v1")
    a.valu("v_lshlrev_b32", V(G16), 4, "v3")
    a.valu("v_lshl_add_u32", V(G16), "v2", 2, V(G16))
    a.valu("v_lshlrev_b32", V(LN16), 4, "v1")
    a.cmp("v_cmp_gt_u32", S(14, 2), 4, "v2")
    for r in range(4):
        a.batomic_f32(V(KVD + r), V(T + 4), S(40, 4), "s12", r * 256)
    zb = KVD + 4
    a.cndmask(V(zb), V(zb), V(zb + 1), S(54, 2))
    a.cndmask(V(zb), V(zb), V(zb + 2), S(56, 2))
    a.cndmask(V(zb), V(zb), V(zb + 3), S(58, 2))
    a.salu("s_mov_b64", "exec", S(14, 2))
    a.batomic_f32(V(zb), V(G16), S(40, 4), "s13", 0)
    a.salu("s_mov_b64", "exec", -1)
    a.stamp()
    for ks in range(16):
        buf = ks & 1
        a.wait_lg(("R2", ks))
        Q = V(fr(buf, 5), 4)
        M = []
        for m in range(4):
            M.append(lambda m=m: a.mfma(V(ACQ + 4 * m, 4), Q, V(fr(buf, m), 4), V(ACQ + 4 * m, 4) if ks else 0))
        M.append(lambda: a.mfma(V(CSQ, 4), Q, V(ONES, 4), V(CSQ, 4) if ks else 0))
        interleave(M, reads2(ks + 1) if ks + 1 < 16 else [])
    a.stamp()
    a.wait_lg0()
    a.salu("s_and_b32", "s13", "s3", 1)
    a.salu("s_lshl_b32", "s13", "s13", 3)
    a.valu("v_add_u32", V(T + 5), "s13", V(LN16))
    a.salu("s_lshl_b32", "s13", "s6", 4)
    a.salu("s_lshr_b32", "s14", "s10", 1)
    a.salu("s_add_u32", "s13", "s13", "s14")
    a.salu("s_lshl_b32", "s13", "s13", 12)
    QO = PKO
    for m in range(4):
        x = ACQ + 4 * m
        for h in range(2):
            a.pk("v_pk_fma_f32", V(x + 2 * h, 2), V(PR + 2 * m, 2), V(CSQ + 2 * h, 2), V(x + 2 * h, 2),
                 sel=[0, 0, 0], selhi=[0, 1, 1], neglo=[1, 0, 0], neghi=[1, 0, 0])
        for h in range(2):
            a.pk("v_pk_fma_f32", V(x + 2 * h, 2), V(x + 2 * h, 2), V(PR + 2 * m, 2), V(EPSP, 2),
                 sel=[0, 1, 0], selhi=[1, 1, 1])
        phi4(x, QO + 2 * m)
        a.bstore(2, V(QO + 2 * m, 2), V(T + 5), S(32, 4), "s13", m * 1024)
    a.stamp()
    a.dump_stamps(22, 0)
    a.raw("    s_endpgm")
    nv = 236

    b = sub_asm(a)
    b.label("K1_LOADER")
    b.salu("s_sub_u32", "s9", "s3", 4)
    b.valu("v_lshrrev_b32", "v4", 3, "v1")
    b.valu("v_and_b32", "v5", 7, "v1")
    b.valu("v_xor_b32", "v5", "v5", "v4")
    b.valu("v_lshlrev_b32", "v4", 10, "v4")
    b.valu("v_lshl_add_u32", "v4", "v5", 4, "v4")
    w128_dma_voff(b, "v5", "v6", "v7", 3072, True)
    b.raw("    s_waitcnt lgkmcnt(0)")
    make_srd(b, 24, 16, 0, 2048 * 512 * 2)
    make_srd(b, 28, 18, 0, 512 * 1536 * 2)
    make_srd(b, 32, 48, 0, 512 * 512 * 2)
    b.salu("s_lshl_b32", "s10", "s6", 6)
    b.salu("s_lshl_b32", "s11", "s9", 4)
    b.salu("s_add_u32", "s10", "s10", "s11")
    b.salu("s_lshl_b32", "s10", "s10", 10)
    b.salu("s_lshl_b32", "s11", "s9", 11)
    b.salu("s_and_b32", "s12", "s9", 1)
    b.salu("s_mul_i32", "s12", "s12", 32 * 3072)
    b.salu("s_lshl_b32", "s15", "s7", 7)
    b.salu("s_add_u32", "s12", "s12", "s15")
    b.salu("s_lshr_b32", "s15", "s9", 1)
    b.salu("s_mul_i32", "s13", "s15", 64 * 3072)
    b.salu("s_add_u32", "s13", "s13", "s12")
    b.salu("s_lshl_b32", "s15", "s15", 10)
    b.salu("s_add_u32", "s12", "s12", "s15")
    b.salu("s_add_u32", "s12", "s12", 1024)
    b.salu("s_lshl_b32", "s14", "s9", 12)
    b.salu("s_add_u32", "s14", "s14", K1_WB)

    def issue(t):
        sl = (t % 5) * 16384
        if t < 8:
            for u in range(2):
                b.salu("s_add_u32", "s15", "s10", u * 8192 + t * 128)
                b.salu("s_add_u32", "m0", "s11", t * 8192 + u * 1024)
                b.dma("v4", S(24, 4), "s15", tag=("L", t))
        for u in range(4):
            k0 = 16 * (u & 1) + 4 * (u >> 1)
            if t < 8:
                b.salu("s_add_u32", "s15", "s12", (64 * t + k0) * 3072)
            else:
                b.salu("s_add_u32", "s15", "s13", (128 * (t - 8) + k0) * 3072)
            b.salu("s_add_u32", "m0", "s14", sl + u * 1024)
            b.dma("v5", S(28, 4), "s15", tag=("L", t))

    D1 = int(os.environ.get("D1", "3"))
    make_srd(b, 44, 20, 0, 256)
    b.salu("s_lshl_b32", "s63", "s7", 5)
    b.valu("v_mov_b32", "v10", "s63")
    b.valu("v_lshlrev_b32", "v8", 4, "v1")
    b.valu("v_mov_b32", "v12", K1_SEEN)
    b.valu("v_mov_b32", "v13", 0)
    b.ds_write("ds_write_b32", "v12", "v13", 0)
    b.stamp()
    nxt = 0
    for t in range(int(os.environ.get("INIT1", "2"))):
        issue(t)
        nxt += 1
    b.stamp()
    b.wait_lg0()
    for s_ in range(8):
        b.wait_vm(("L", s_))
        b.barrier()
        while nxt <= min(s_ + D1, s_ + 4, 11):
            issue(nxt)
            nxt += 1
    while nxt < 12:
        issue(nxt)
        nxt += 1
    b.label("K1_POLL")
    b.bload(1, "v11", "v10", S(44, 4), 0, 4, flags="sc1")
    b.wait_vm0()
    b.rfl("s15", "v11")
    b.scmp("s_cmp_eq_u32", "s15", 0)
    b.branch("s_cbranch_scc1", "K1_POLL")
    b.ds_write("ds_write_b32", "v12", "v11", 0)
    b.wait_lg0()
    b.barrier()
    b.stamp()
    make_srd(b, 24, 50, 0, 512 * 1792 * 2)
    b.valu("v_lshrrev_b32", "v6", 5, "v1")
    b.valu("v_and_b32", "v7", 31, "v1")
    b.valu("v_lshlrev_b32", "v6", 10, "v6")
    b.valu("v_lshl_add_u32", "v6", "v7", 4, "v6")
    b.salu("s_lshl_b32", "s10", "s8", 4)
    b.salu("s_lshl_b32", "s11", "s9", 2)
    b.salu("s_add_u32", "s10", "s10", "s11")
    b.salu("s_lshl_b32", "s11", "s10", 10)
    b.salu("s_lshl_b32", "s13", "s5", 9)
    b.salu("s_add_u32", "s11", "s11", "s13")
    for u in range(2):
        b.bload(4, V(16 + 4 * u, 4), "v6", S(32, 4), "s11", u * 2048)
    b.salu("s_mul_i32", "s10", "s10", 3584)
    b.salu("s_mul_i32", "s13", "s5", 1792)
    b.salu("s_add_u32", "s10", "s10", "s13")
    for n in range(0 if os.environ.get("NOPF1") else 4):
        b.salu("s_add_u32", "s13", "s10", n * 3584)
        for u in range(2):
            b.bload(4, V(24 + 8 * n + 4 * u, 4), "v8", S(24, 4), "s13", u * 1024)
    b.wait_vm0()
    b.stamp()
    b.dump_stamps(22, 0)
    b.label("K1_END")
    b.raw("    s_endpgm")
    return a.text() + b.text() + kernel_desc(name, nv), name, K1_LDS, 256, 512


K2_RED = 65536
K2_KV = 65536
K2_LDS = 131072


def gen_k2():
    a = Asm()
    name = "k2_attn_kernel"
    kernel_header(a, name)
    a.scmp("s_cmp_ge_u32", "s2", 256)
    a.raw("    s_cbranch_scc1 K2_END")
    if os.environ.get("SLEEP2"):
        a.raw("    s_sleep " + os.environ.get("SLEEP2"))
    a.raw("    s_load_dwordx2 s[16:17], s[0:1], 0")
    a.raw("    s_load_dwordx2 s[18:19], s[0:1], 16")
    a.raw("    s_load_dwordx2 s[20:21], s[0:1], 32")
    a.raw("    s_load_dwordx2 s[22:23], s[0:1], 80")
    lane_setup(a)
    map_8x4(a)
    a.salu("s_and_b32", "s10", "s3", 3)
    a.salu("s_lshr_b32", "s11", "s3", 2)
    a.valu("v_lshlrev_b32", "v4", 4, "v1")
    w128_dma_voff(a, "v5", "v6", "v7", 1024, False)
    w128_tr_base(a, "v8", "v6", "v7")
    a.salu("s_lshl_b32", "s9", "s10", 14)
    a.valu("v_add_u32", "v8", "s9", "v8")
    for t in range(1, 4):
        a.valu("v_xor_b32", V(8 + t), t << 5, "v8")
    a.salu("s_lshr_b32", "s12", "s3", 1)
    a.salu("s_lshl_b32", "s12", "s12", 4)
    a.salu("s_lshl_b32", "s13", "s6", 6)
    a.salu("s_add_u32", "s12", "s12", "s13")
    a.valu("v_add_u32", "v12", "s12", "v2")
    a.valu("v_lshlrev_b32", "v13", 10, "v12")
    a.valu("v_lshl_add_u32", "v13", "v3", 3, "v13")
    a.salu("s_and_b32", "s13", "s3", 1)
    a.salu("s_lshl_b32", "s14", "s7", 1)
    a.salu("s_add_u32", "s13", "s13", "s14")
    a.salu("s_lshl_b32", "s14", "s13", 6)
    a.raw("    s_waitcnt lgkmcnt(0)")
    make_srd(a, 24, 16, 0, 2048 * 512 * 2)
    make_srd(a, 28, 18, 0, 512 * 512 * 2)
    make_srd(a, 32, 22, PQF_OFF, 2 << 20)
    make_srd(a, 36, 22, HF_OFF, 2 << 20)
    make_srd(a, 40, 22, KVF_OFF, 34816)
    make_srd(a, 44, 22, ST_OFF, 256 << 10)
    a.salu("s_mov_b32", "s52", "0xffff0000")
    KV = 16
    PQ = 48
    XR = 80
    PF = 84
    OF = 100
    WF = 132
    ACC = 164
    ND = 196
    TM = 228
    a.stamp()
    a.scmp("s_cmp_ge_u32", "s3", 2)
    a.branch("s_cbranch_scc1", "K2_NOZ")
    a.salu("s_lshl_b32", "s15", "s3", 10)
    a.salu("s_add_u32", "s53", "s15", 32768)
    a.salu("s_add_u32", "m0", "s15", K2_KV + 32768)
    a.dma("v4", S(40, 4), "s53")
    a.label("K2_NOZ")
    a.vmq = []
    a.salu("s_lshl_b32", "s15", "s3", 12)
    for u in range(4):
        a.salu("s_add_u32", "s53", "s15", u * 1024)
        a.salu("s_add_u32", "m0", "s15", K2_KV + u * 1024)
        a.dma("v4", S(40, 4), "s53", tag="KV")
    a.salu("s_lshl_b32", "s15", "s6", 4)
    a.salu("s_lshl_b32", "s9", "s10", 2)
    a.salu("s_add_u32", "s15", "s15", "s9")
    a.salu("s_lshl_b32", "s15", "s15", 2)
    a.salu("s_lshl_b32", "s9", "s11", 1)
    a.salu("s_add_u32", "s15", "s15", "s9")
    a.salu("s_lshl_b32", "s15", "s15", 10)
    a.salu("s_mov_b32", "s55", "s15")

    def pq_load(p):
        a.salu("s_add_u32", "s56", "s55", p * 4096)
        for mm in range(2):
            a.bload(4, V(PQ + (2 * p + mm) * 4, 4), "v4", S(32, 4), "s56", mm * 1024, tag=("Q", p))

    NPRE = int(os.environ.get("NPRE", "4"))
    for p in range(NPRE):
        pq_load(p)
    a.stamp()
    a.wait_vm("KV")
    a.stamp()
    a.barrier()
    a.stamp()
    a.salu("s_lshl_b32", "s9", "s10", 13)
    a.salu("s_add_u32", "s9", "s9", K2_KV)
    a.valu("v_lshl_add_u32", V(TM), "v1", 2, "s9")
    a.salu("s_lshl_b32", "s9", "s10", 9)
    a.salu("s_add_u32", "s9", "s9", K2_KV + 32768)
    a.valu("v_lshl_add_u32", V(TM + 1), "v3", 4, "s9")
    KT = OF
    for hd in range(8):
        a.ds_read2st64(V(KT + 8 * hd, 2), V(TM), 4 * hd, 4 * hd + 1, tag=("KVR", hd >> 2))
        a.ds_read2st64(V(KT + 8 * hd + 2, 2), V(TM), 4 * hd + 2, 4 * hd + 3, tag=("KVR", hd >> 2))
        a.ds_read("ds_read_b128", V(KT + 8 * hd + 4, 4), V(TM + 1), hd * 64, tag=("KVR", hd >> 2))
    a.salu("s_lshl_b32", "s15", "s10", 7)
    a.salu("s_lshl_b32", "s9", "s11", 6)
    a.salu("s_add_u32", "s15", "s15", "s9")
    a.salu("s_lshl_b32", "s9", "s15", 7)
    a.salu("s_lshl_b32", "s15", "s15", 10)
    a.salu("s_lshl_b32", "s53", "s7", 7)
    a.salu("s_add_u32", "s15", "s15", "s53")

    def wo_dma(u):
        a.salu("s_add_u32", "s54", "s15", u * 8192)
        a.salu("s_add_u32", "m0", "s9", u * 1024)
        a.dma("v5", S(28, 4), "s54", tag="B")

    for p in range(NPRE, 4):
        pq_load(p)
    wo_dma(0)
    wo_dma(1)
    a.stamp()
    for hd in range(8):
        if hd % 4 == 0:
            a.wait_lg(("KVR", hd >> 2))
        for j in range(4):
            a.valu("v_cvt_pk_bf16_f32", V(KV + 4 * hd + j), V(KT + 8 * hd + 2 * j), V(KT + 8 * hd + 2 * j + 1))
    a.salu("s_mov_b32", "s53", f32bits(1e-6))
    units = [(p, mm) for p in range(4) for mm in range(2)]

    def o_mfma(u):
        p, mm = units[u]
        if mm == 0:
            a.wait_vm(("Q", p))
        q = PQ + (2 * p + mm) * 4
        nd = ND + 16 * (u & 1)
        for hd in range(2):
            kv = KV + 4 * (2 * p + hd)
            a.mfma16(V(nd + 8 * hd + 4, 4), V(kv + 2, 2), V(q + 2 * hd, 2), 0)
            a.mfma16(V(nd + 8 * hd, 4), V(kv, 2), V(q + 2 * hd, 2), 0)

    def o_valu(u):
        p, mm = units[u]
        nd = ND + 16 * (u & 1)
        for hd in range(2):
            den = V(nd + 8 * hd + 4)
            a.valu("v_add_f32", den, "s53", den)
            a.trans("v_rcp_f32", den, den)
        for hd in range(2):
            den = V(nd + 8 * hd + 4)
            for r in range(4):
                a.valu("v_mul_f32", V(nd + 8 * hd + r), V(nd + 8 * hd + r), den)
            o = OF + (2 * p + mm) * 4 + 2 * hd
            a.valu("v_cvt_pk_bf16_f32", V(o), V(nd + 8 * hd), V(nd + 8 * hd + 1))
            a.valu("v_cvt_pk_bf16_f32", V(o + 1), V(nd + 8 * hd + 2), V(nd + 8 * hd + 3))

    o_mfma(0)
    for u in range(8):
        if u + 1 < 8:
            o_mfma(u + 1)
        if u < 6:
            wo_dma(u + 2)
        if u == 6:
            for t in range(2):
                a.bload(2, V(XR + 2 * t, 2), "v13", S(24, 4), "s14", t * 32, tag="X")
        o_valu(u)
    a.stamp()
    a.wait_vm("B")
    a.barrier()

    def wreads(p):
        for t in range(4):
            for hh in range(2):
                a.ds_read("ds_read_b64_tr_b16", V(WF + ((p & 1) * 4 + t) * 4 + 2 * hh, 2), V(8 + t),
                          p * 4096 + hh * 2048, tag=("R", p))
    wreads(0)
    for p in range(4):
        if p < 3:
            wreads(p + 1)
        a.wait_lg(("R", p))
        for t in range(4):
            for mm in range(2):
                d = V(ACC + (mm * 4 + t) * 4, 4)
                a.mfma(d, V(WF + ((p & 1) * 4 + t) * 4, 4), V(OF + (2 * p + mm) * 4, 4), d if p else 0)
    a.stamp()
    a.salu("s_lshl_b32", "s9", "s10", 14)
    a.salu("s_lshl_b32", "s15", "s11", 13)
    a.salu("s_add_u32", "s9", "s9", "s15")
    a.salu("s_add_u32", "s9", "s9", K2_RED)
    a.valu("v_add_u32", V(TM), "s9", "v4")
    for mm in range(2):
        for t in range(4):
            a.ds_write("ds_write_b128", V(TM), V(ACC + (mm * 4 + t) * 4, 4), (mm * 4 + t) * 1024, tag="W")
    a.salu("s_lshl_b32", "s9", "s3", 11)
    a.salu("s_add_u32", "s9", "s9", K2_RED)
    a.valu("v_add_u32", V(TM), "s9", "v4")
    a.wait_lg0()
    a.barrier()
    RB = 16
    for hg in range(4):
        for t in range(2):
            a.ds_read("ds_read_b128", V(RB + hg * 8 + 4 * t, 4), V(TM), hg * 16384 + t * 1024, tag=("X", hg >> 1))
    a.wait_lg(("X", 0))
    for j in range(8):
        a.valu("v_add_f32", V(RB + j), V(RB + j), V(RB + 8 + j))
    a.wait_lg(("X", 1))
    for j in range(8):
        a.valu("v_add_f32", V(RB + 16 + j), V(RB + 16 + j), V(RB + 24 + j))
    for j in range(8):
        a.valu("v_add_f32", V(RB + j), V(RB + j), V(RB + 16 + j))
    a.wait_vm("X")
    XS = RB + 8
    for j in range(4):
        bf16_round_pair(a, V(RB + 2 * j), V(RB + 2 * j + 1), V(TM + 1), "s52")
    for j in range(4):
        unpack2(a, V(XS + 2 * j), V(XS + 2 * j + 1), V(XR + j), "s52")
    for j in range(8):
        a.valu("v_add_f32", V(RB + j), V(RB + j), V(XS + j))
    HO = RB + 16
    for j in range(4):
        a.valu("v_cvt_pk_bf16_f32", V(HO + j), V(RB + 2 * j), V(RB + 2 * j + 1))
    a.salu("s_add_u32", "s9", "s12", "s13")
    a.salu("s_lshl_b32", "s9", "s9", 10)
    a.bstore(4, V(HO, 4), "v4", S(36, 4), "s9", 0)
    for j in range(4):
        unpack2(a, V(RB + 2 * j), V(RB + 2 * j + 1), V(HO + j), "s52")
    S1, S2 = RB + 24, RB + 25
    a.valu("v_add_f32", V(S1), V(RB), V(RB + 1))
    a.valu("v_mul_f32", V(S2), V(RB), V(RB))
    a.valu("v_fmac_f32", V(S2), V(RB + 1), V(RB + 1))
    for j in range(2, 8):
        a.valu("v_add_f32", V(S1), V(S1), V(RB + j))
        a.valu("v_fmac_f32", V(S2), V(RB + j), V(RB + j))
    gsum(a, V(S1), V(TM + 1))
    gsum(a, V(S2), V(TM + 2))
    a.valu("v_lshlrev_b32", V(TM + 3), 7, "v12")
    a.salu("s_lshl_b32", "s9", "s13", 3)
    a.salu("s_mov_b64", "exec", "0xffff")
    a.bstore(2, V(S1, 2), V(TM + 3), S(44, 4), "s9", 0)
    a.salu("s_mov_b64", "exec", -1)
    a.stamp()
    a.wait_vm0()
    a.dump_stamps(22, 1)
    a.label("K2_END")
    a.raw("    s_endpgm")
    return a.text() + kernel_desc(name, TM + 8), name, K2_LDS, 256, 512


K3_AUX = 131072
K3_LDS = 131072 + 1024


def gen_k3():
    a = Asm()
    name = "k3_mlp1_kernel"
    kernel_header(a, name)
    a.scmp("s_cmp_ge_u32", "s2", 256)
    a.raw("    s_cbranch_scc1 K3_END")
    a.raw("    s_load_dwordx4 s[16:19], s[0:1], 32")
    a.raw("    s_load_dwordx2 s[20:21], s[0:1], 48")
    a.raw("    s_load_dwordx2 s[22:23], s[0:1], 80")
    lane_setup(a)
    a.valu("v_lshlrev_b32", "v4", 4, "v1")
    a.scmp("s_cmp_ge_u32", "s8", 28)
    a.branch("s_cbranch_scc1", "K3_PF")
    a.salu("s_and_b32", "s6", "s8", 3)
    a.salu("s_lshl_b32", "s9", "s4", 2)
    a.salu("s_add_u32", "s6", "s6", "s9")
    a.salu("s_lshr_b32", "s7", "s8", 2)
    a.salu("s_mul_i32", "s9", "s5", 7)
    a.salu("s_add_u32", "s7", "s7", "s9")
    a.scmp("s_cmp_ge_u32", "s3", 8)
    a.branch("s_cbranch_scc1", "K3_LOADER")
    a.salu("s_and_b32", "s10", "s3", 1)
    a.salu("s_lshr_b32", "s11", "s3", 1)
    a.salu("s_lshl_b32", "s9", "s10", 12)
    a.valu("v_add_u32", "v5", "s9", "v4")
    a.valu("v_add_u32", "v6", HI, "v5")
    a.valu("v_lshrrev_b32", "v7", 2, "v2")
    a.valu("v_lshl_add_u32", "v7", "v3", 2, "v7")
    a.valu("v_and_b32", "v8", 7, "v7")
    a.valu("v_lshlrev_b32", "v7", 8, "v7")
    a.valu("v_lshl_add_u32", "v7", "v8", 5, "v7")
    a.valu("v_and_b32", "v8", 3, "v1")
    a.valu("v_lshl_add_u32", "v7", "v8", 3, "v7")
    a.valu("v_add_u32", "v7", 8192, "v7")
    a.salu("s_lshl_b32", "s9", "s11", 6)
    a.valu("v_xor_b32", "v7", "s9", "v7")
    a.valu("v_add_u32", "v8", HI, "v7")
    a.valu("v_xor_b32", "v9", 32, "v7")
    a.valu("v_add_u32", "v10", HI, "v9")
    WRD = [("v7", "v8"), ("v9", "v10")]
    ARD = ("v5", "v6")
    ONES = 12
    for i in range(4):
        a.valu("v_mov_b32", V(ONES + i), "0x3f803f80")
    a.salu("s_lshl_b32", "s12", "s6", 7)
    a.salu("s_lshl_b32", "s9", "s10", 6)
    a.salu("s_add_u32", "s12", "s12", "s9")
    a.valu("v_lshlrev_b32", "v11", 7, "v2")
    a.valu("v_lshl_add_u32", "v11", "v3", 5, "v11")
    a.salu("s_lshl_b32", "s13", "s11", 4)
    a.salu("s_add_u32", "s13", "s13", "s12")
    a.salu("s_lshl_b32", "s13", "s13", 7)
    a.raw("    s_waitcnt lgkmcnt(0)")
    make_srd(a, 32, 22, H1F_OFF, 7 << 20)
    make_srd(a, 36, 18, 0, 1792 * 2)
    make_srd(a, 44, 22, ST_OFF, 256 << 10)
    FB = 16
    ACC = 64
    CS = 96
    STT = 104
    B1R = 112
    T = 116
    for h in range(2):
        a.bload(4, V(STT + 4 * h, 4), "v11", S(44, 4), "s13", h * 16, tag="ST")
    a.valu("v_lshlrev_b32", V(T), 3, "v3")
    a.salu("s_lshl_b32", "s13", "s7", 8)
    a.salu("s_lshl_b32", "s9", "s11", 6)
    a.salu("s_add_u32", "s13", "s13", "s9")
    for t in range(2):
        a.bload(2, V(B1R + 2 * t, 2), V(T), S(36, 4), "s13", t * 32, tag="B1")
    a.stamp()

    def fr(buf, idx):
        return FB + (buf * 6 + idx) * 4

    def reads(ks):
        buf = ks & 1
        sl = (ks % 8) * 16384
        L = []
        for t in range(2):
            for hh in range(2):
                r, o = lref(WRD[t], sl + hh * 4096)
                L.append(lambda t=t, hh=hh, r=r, o=o: a.ds_read(
                    "ds_read_b64_tr_b16", V(fr(buf, 4 + t) + 2 * hh, 2), r, o, tag=("R", ks)))
        for m in range(4):
            r, o = lref(ARD, sl + m * 1024)
            L.append(lambda m=m, r=r, o=o: a.ds_read("ds_read_b128", V(fr(buf, m), 4), r, o, tag=("R", ks)))
        return L


    def stats_chain():
        a.wait_vm("ST")
        b0 = STT
        for j in (2, 4, 6):
            a.valu("v_add_f32", V(b0), V(b0), V(b0 + j))
            a.valu("v_add_f32", V(b0 + 1), V(b0 + 1), V(b0 + j + 1))
        gsum(a, V(b0), V(b0 + 2))
        gsum(a, V(b0 + 1), V(b0 + 3))
        m1, s1 = V(b0), V(b0 + 1)
        mean, var, t0, t1 = V(b0 + 2), V(b0 + 3), V(b0 + 4), V(b0 + 5)
        ln_scalars(a, m1, s1, mean, var)
        a.trans("v_rcp_f32", t0, s1)
        a.valu("v_sub_f32", mean, mean, m1)
        a.valu("v_mul_f32", mean, mean, t0)
        a.valu("v_mul_f32", var, var, t0)
        a.valu("v_mul_f32", var, var, t0)
        a.valu("v_cvt_pk_bf16_f32", t1, mean, var)
        a.valu("v_and_b32", var, "0xffff0000", t1)
        a.valu("v_lshlrev_b32", mean, 16, t1)
        a.valu("v_add_f32", var, f32bits(1e-5), var)
        bf16_round1(a, var, t1)
        a.trans("v_sqrt_f32", var, var)
        bf16_round1(a, var, t1)
        a.valu("v_fma_f32", m1, mean, s1, m1)
        a.trans("v_rcp_f32", var, var)
        a.valu("v_mul_f32", s1, t0, var)
        a.salu("s_lshl_b32", "s9", "s10", 2)
        a.salu("s_add_u32", "s9", "s9", "s11")
        a.salu("s_lshl_b32", "s9", "s9", 7)
        a.salu("s_add_u32", "s9", "s9", K3_AUX)
        a.valu("v_lshl_add_u32", V(T + 1), "v2", 3, "s9")
        a.ds_write("ds_write_b64", V(T + 1), V(b0, 2), 0)
        a.salu("s_lshl_b32", "s9", "s10", 9)
        a.salu("s_add_u32", "s9", "s9", K3_AUX)
        a.valu("v_lshl_add_u32", V(T + 1), "v2", 3, "s9")


    stats_chain()
    a.barrier()
    a.stamp()
    for f in reads(0):
        f()

    for ks in range(16):
        buf = ks & 1
        a.wait_lg(("R", ks))
        if ks + 1 < 16:
            a.barrier()
        M = []
        for t in range(2):
            W = V(fr(buf, 4 + t), 4)
            for m in range(4):
                d = V(ACC + (m * 2 + t) * 4, 4)
                M.append(lambda d=d, W=W, m=m: a.mfma(d, W, V(fr(buf, m), 4), d if ks else 0))
            M.append(lambda t=t, W=W: a.mfma(V(CS + 4 * t, 4), W, V(ONES, 4), V(CS + 4 * t, 4) if ks else 0))
        interleave(M, reads(ks + 1) if ks + 1 < 16 else [])
        if ks == 8:
            for m in range(4):
                a.ds_read("ds_read_b64", V(STT + 2 * m, 2), V(T + 1), m * 128, tag="SR")
    a.stamp()
    C0 = 2.0 * math.sqrt(2.0 / math.pi) * LOG2E
    C1 = C0 * 0.044715
    a.salu("s_mov_b32", "s50", f32bits(-C1))
    a.salu("s_mov_b32", "s52", "0xffff0000")
    BB = T
    NC0 = T + 8
    E = T + 12
    O = T + 16
    a.valu("v_mov_b32", V(NC0), f32bits(-C0))
    a.wait_vm("B1")
    for t in range(2):
        unpack2(a, V(BB + 4 * t), V(BB + 4 * t + 1), V(B1R + 2 * t), "s52")
        unpack2(a, V(BB + 4 * t + 2), V(BB + 4 * t + 3), V(B1R + 2 * t + 1), "s52")
    a.salu("s_lshr_b32", "s13", "s12", 4)
    a.salu("s_mul_i32", "s13", "s13", 56)
    a.salu("s_lshl_b32", "s9", "s7", 2)
    a.salu("s_add_u32", "s13", "s13", "s9")
    a.salu("s_add_u32", "s13", "s13", "s11")
    a.salu("s_lshl_b32", "s13", "s13", 10)
    for m in range(4):
        M1, SC = V(STT + 2 * m), V(STT + 2 * m + 1)
        o = O + 4 * (m & 1)
        for t in range(2):
            x = ACC + (m * 2 + t) * 4
            for r in range(4):
                a.valu("v_fma_f32", V(x + r), "-" + M1, V(CS + 4 * t + r), V(x + r))
            for r in range(4):
                a.valu("v_fma_f32", V(x + r), V(x + r), SC, V(BB + 4 * t + r))
            for r in range(4):
                a.valu("v_mul_f32", V(E + r), V(x + r), V(x + r))
            for r in range(4):
                a.valu("v_fma_f32", V(E + r), V(E + r), "s50", V(NC0))
            for r in range(4):
                a.valu("v_mul_f32", V(E + r), V(E + r), V(x + r))
            for r in range(4):
                a.trans("v_exp_f32", V(E + r), V(E + r))
            for r in range(4):
                a.valu("v_add_f32", V(E + r), 1.0, V(E + r))
            for r in range(4):
                a.trans("v_rcp_f32", V(E + r), V(E + r))
            for r in range(4):
                a.valu("v_mul_f32", V(x + r), V(x + r), V(E + r))
            a.valu("v_cvt_pk_bf16_f32", V(o + 2 * t), V(x), V(x + 1))
            a.valu("v_cvt_pk_bf16_f32", V(o + 2 * t + 1), V(x + 2), V(x + 3))
        a.bstore(4, V(o, 4), "v4", S(32, 4), "s13", 0)
        if m < 3:
            a.salu("s_add_u32", "s13", "s13", 56 * 1024)
    a.stamp()
    a.dump_stamps(22, 2)
    a.raw("    s_endpgm")
    nv = T + 24

    b = sub_asm(a)
    b.label("K3_LOADER")
    b.salu("s_sub_u32", "s9", "s3", 8)
    b.valu("v_mul_u32_u24", "v5", 3584, "v3")
    b.valu("v_and_b32", "v6", 1, "v1")
    b.valu("v_lshl_add_u32", "v5", "v6", 4, "v5")
    b.valu("v_bfe_u32", "v6", "v1", 1, 3)
    b.valu("v_xor_b32", "v6", "v6", "v3")
    b.valu("v_xor_b32", "v7", 4, "v6")
    b.valu("v_lshl_add_u32", "v6", "v6", 5, "v5")
    b.valu("v_lshl_add_u32", "v7", "v7", 5, "v5")
    b.raw("    s_waitcnt lgkmcnt(0)")
    make_srd(b, 24, 22, HF_OFF, 2 << 20)
    make_srd(b, 28, 16, 0, 512 * 1792 * 2)
    b.salu("s_lshl_b32", "s10", "s6", 3)
    b.salu("s_lshl_b32", "s11", "s9", 1)
    b.salu("s_add_u32", "s10", "s10", "s11")
    b.salu("s_lshl_b32", "s10", "s10", 14)
    b.salu("s_lshl_b32", "s11", "s9", 11)
    b.salu("s_mul_i32", "s12", "s9", 8 * 3584)
    b.salu("s_lshl_b32", "s13", "s7", 8)
    b.salu("s_add_u32", "s12", "s12", "s13")

    b.salu("s_mul_i32", "s13", "s5", 256 * 3584)
    b.salu("s_sub_u32", "s54", "s12", "s13")
    b.salu("s_add_u32", "s12", "s12", "s13")
    b.salu("s_lshl_b32", "s13", "s5", 13)
    b.salu("s_sub_u32", "s55", "s10", "s13")
    b.salu("s_add_u32", "s10", "s10", "s13")

    def issue(ks):
        sl = (ks % 8) * 16384
        for u in range(2):
            b.salu("s_add_u32", "s15", "s12" if ks < 8 else "s54", (32 * ks + 4 * u) * 3584)
            b.salu("s_add_u32", "m0", "s11", sl + 8192 + u * 1024)
            b.dma("v6" if u % 2 == 0 else "v7", S(28, 4), "s15", tag=("L", ks))
        for mm in range(2):
            b.salu("s_add_u32", "s15", "s10" if ks < 8 else "s55", mm * 16384 + ks * 1024)
            b.salu("s_add_u32", "m0", "s11", sl + mm * 1024)
            b.dma("v4", S(24, 4), "s15", tag=("L", ks))

    D3 = int(os.environ.get("D3", "3"))
    I3 = int(os.environ.get("I3", "3"))
    R3 = int(os.environ.get("R3", "1"))
    b.stamp()
    nxt = 0
    for ks in range(I3):
        issue(ks)
        nxt += 1
    b.stamp()
    for ks in range(16):
        b.wait_vm(("L", ks))
        b.barrier()
        cnt = 0
        while nxt <= min(ks + D3, 15) and cnt < R3:
            issue(nxt)
            nxt += 1
            cnt += 1
    b.stamp()
    b.dump_stamps(22, 2)
    b.raw("    s_endpgm")

    c = sub_asm(a)
    c.label("K3_PF")
    c.scmp("s_cmp_ge_u32", "s3", 8)
    c.branch("s_cbranch_scc1", "K3_END")
    c.valu("v_lshrrev_b32", "v6", 5, "v1")
    c.valu("v_and_b32", "v7", 31, "v1")
    c.valu("v_lshlrev_b32", "v6", 10, "v6")
    c.valu("v_lshl_add_u32", "v6", "v7", 4, "v6")
    c.raw("    s_waitcnt lgkmcnt(0)")
    make_srd(c, 28, 20, 0, 1792 * 512 * 2)
    c.salu("s_sub_u32", "s9", "s8", 28)
    c.salu("s_mul_i32", "s9", "s9", 448)
    c.salu("s_mul_i32", "s10", "s3", 56)
    c.salu("s_add_u32", "s9", "s9", "s10")
    c.salu("s_lshl_b32", "s9", "s9", 10)
    c.salu("s_lshl_b32", "s10", "s5", 9)
    c.salu("s_add_u32", "s9", "s9", "s10")
    for n in range(0 if os.environ.get("NOPF2") else 28):
        c.salu("s_add_u32", "s10", "s9", n * 2048)
        c.bload(4, V(8 + 4 * n, 4), "v6", S(28, 4), "s10", 0)
    c.wait_vm0()
    c.label("K3_END")
    c.raw("    s_endpgm")
    return a.text() + b.text() + c.text() + kernel_desc(name, nv), name, K3_LDS, 256, 768


K4_LDS = 131072


def gen_k4():
    a = Asm()
    name = "k4_mlp2_kernel"
    kernel_header(a, name)
    a.scmp("s_cmp_ge_u32", "s2", 256)
    a.raw("    s_cbranch_scc1 K4_END")
    a.raw("    s_load_dwordx4 s[16:19], s[0:1], 48")
    a.raw("    s_load_dwordx2 s[20:21], s[0:1], 64")
    a.raw("    s_load_dwordx2 s[22:23], s[0:1], 80")
    lane_setup(a)
    map_8x4(a)
    a.valu("v_lshlrev_b32", "v4", 4, "v1")
    a.salu("s_and_b32", "s9", "s3", 3)
    a.salu("s_lshl_b32", "s10", "s9", 15)
    a.salu("s_lshr_b32", "s12", "s3", 1)
    a.salu("s_lshl_b32", "s12", "s12", 4)
    a.salu("s_lshl_b32", "s13", "s6", 6)
    a.salu("s_add_u32", "s12", "s12", "s13")
    a.valu("v_add_u32", "v12", "s12", "v2")
    a.valu("v_lshlrev_b32", "v13", 10, "v12")
    a.valu("v_lshl_add_u32", "v13", "v3", 3, "v13")
    a.valu("v_lshlrev_b32", "v14", 3, "v3")
    a.salu("s_and_b32", "s13", "s3", 1)
    a.salu("s_lshl_b32", "s14", "s7", 1)
    a.salu("s_add_u32", "s13", "s13", "s14")
    a.salu("s_lshl_b32", "s14", "s13", 6)
    a.raw("    s_waitcnt lgkmcnt(0)")
    make_srd(a, 32, 22, HF_OFF, 2 << 20)
    make_srd(a, 36, 18, 0, 512 * 2)
    make_srd(a, 40, 20, 0, 2048 * 512 * 2)
    a.salu("s_mov_b32", "s52", "0xffff0000")
    HR = 16
    B2R = 20
    a.salu("s_add_u32", "s15", "s12", "s13")
    a.salu("s_lshl_b32", "s15", "s15", 10)
    a.scmp("s_cmp_ge_u32", "s3", 4)
    a.branch("s_cbranch_scc1", "K4_LOADER")
    a.bload(4, V(HR, 4), "v4", S(32, 4), "s15", 0, tag="E")
    for t in range(2):
        a.bload(2, V(B2R + 2 * t, 2), "v14", S(36, 4), "s14", t * 32, tag="E")
    a.valu("v_add_u32", "v5", "s10", "v4")
    w128_tr_base(a, "v8", "v6", "v7")
    a.valu("v_add_u32", "v8", "s10", "v8")
    for t in range(1, 4):
        a.valu("v_xor_b32", V(8 + t), t << 5, "v8")
    FR = 24
    ACC = 88
    TM = 152

    def reads(n):
        sl = (n % 4) * 8192
        bb = n & 1
        L = []
        for t in range(4):
            for hh in range(2):
                L.append(lambda t=t, hh=hh: a.ds_read(
                    "ds_read_b64_tr_b16", V(FR + (bb * 8 + 4 + t) * 4 + 2 * hh, 2), V(8 + t),
                    sl + 4096 + hh * 2048, tag=("R", n)))
        for m in range(4):
            L.append(lambda m=m: a.ds_read("ds_read_b128", V(FR + (bb * 8 + m) * 4, 4), "v5", sl + m * 1024, tag=("R", n)))
        return L

    a.stamp()
    a.barrier()
    a.stamp()
    for f in reads(0):
        f()
    if os.environ.get("PF4"):
        make_srd(a, 24, 22, H1F_OFF, 7 << 20)
        a.salu("s_lshl_b32", "s11", "s6", 2)
        a.salu("s_add_u32", "s11", "s11", "s3")
        a.salu("s_mul_i32", "s11", "s11", 56)
        a.salu("s_xor_b32", "s53", "s5", 1)
        a.salu("s_mul_i32", "s53", "s53", 28)
        a.salu("s_add_u32", "s11", "s11", "s53")
        a.salu("s_lshr_b32", "s53", "s8", 3)
        a.salu("s_mul_i32", "s53", "s53", 7)
        a.salu("s_add_u32", "s11", "s11", "s53")
        a.salu("s_lshl_b32", "s11", "s11", 10)
        for u in range(7):
            a.salu("s_add_u32", "s53", "s11", u * 1024)
            a.bload(4, V(160, 4), "v4", S(24, 4), "s53", 0)
    for n in range(14):
        bb = n & 1
        a.wait_lg(("R", n))
        if n + 1 < 14:
            a.barrier()
        M = []
        for t in range(4):
            for m in range(4):
                d = V(ACC + (m * 4 + t) * 4, 4)
                M.append(lambda d=d, t=t, m=m: a.mfma(d, V(FR + (bb * 8 + 4 + t) * 4, 4), V(FR + (bb * 8 + m) * 4, 4), d if n else 0))
        interleave(M, reads(n + 1) if n + 1 < 14 else [])
    a.stamp()
    for q in range(16):
        a.ds_write("ds_write_b128", "v5", V(ACC + 4 * q, 4), q * 1024, tag="W")
    a.wait_lg0()
    a.branch("s_branch", "K4_FINAL")

    b = sub_asm(a)
    b.label("K4_LOADER")
    w128_dma_voff(b, "v5", "v6", "v7", 1024, False)
    make_srd(b, 24, 22, H1F_OFF, 7 << 20)
    make_srd(b, 28, 16, 0, 1792 * 512 * 2)
    b.salu("s_mul_i32", "s53", "s9", 7)
    b.salu("s_mul_i32", "s54", "s5", 28)
    b.salu("s_add_u32", "s55", "s53", "s54")
    b.salu("s_sub_u32", "s56", "s53", "s54")
    b.salu("s_add_u32", "s56", "s56", 21)
    b.salu("s_mul_i32", "s11", "s6", 4 * 56)
    b.salu("s_add_u32", "s57", "s11", "s56")
    b.salu("s_add_u32", "s11", "s11", "s55")
    b.salu("s_lshl_b32", "s11", "s11", 10)
    b.salu("s_lshl_b32", "s57", "s57", 10)
    b.salu("s_lshl_b32", "s54", "s7", 7)
    b.salu("s_lshl_b32", "s53", "s55", 15)
    b.salu("s_add_u32", "s53", "s53", "s54")
    b.salu("s_lshl_b32", "s56", "s56", 15)
    b.salu("s_add_u32", "s56", "s56", "s54")

    def issue(n):
        sl = (n % 4) * 8192
        for u in range(4):
            b.salu("s_add_u32", "s54", "s53" if n < 7 else "s56", (32 * n + 8 * u) * 1024)
            b.salu("s_add_u32", "m0", "s10", sl + 4096 + u * 1024)
            b.dma("v5", S(28, 4), "s54", tag=("L", n))
        for m in range(4):
            b.salu("s_add_u32", "s54", "s11" if n < 7 else "s57", (m * 56 + n) * 1024)
            b.salu("s_add_u32", "m0", "s10", sl + m * 1024)
            b.dma("v4", S(24, 4), "s54", tag=("L", n))

    D4 = int(os.environ.get("D4", "3"))
    b.stamp()
    nxt = 0
    for n in range(D4):
        issue(n)
        nxt += 1
    b.stamp()
    for n in range(14):
        b.wait_vm(("L", n))
        b.barrier()
        while nxt <= min(n + D4, 13):
            issue(nxt)
            nxt += 1
        if n == 10:
            b.bload(4, V(HR, 4), "v4", S(32, 4), "s15", 0, tag="E")
            for t in range(2):
                b.bload(2, V(B2R + 2 * t, 2), "v14", S(36, 4), "s14", t * 32, tag="E")
    b.stamp()
    b.label("K4_FINAL")
    b.nstamp = 4 if Asm.stamps else 0
    b.barrier()
    RB = 24
    b.salu("s_lshl_b32", "s9", "s3", 11)
    b.valu("v_add_u32", V(TM), "s9", "v4")
    b.valu("v_add_u32", V(TM + 1), HI, V(TM))
    for w in range(4):
        for t in range(2):
            r, o = lref((V(TM), V(TM + 1)), w * 32768 + t * 1024)
            b.ds_read("ds_read_b128", V(RB + w * 8 + 4 * t, 4), r, o, tag=("X", w >> 1))
    b.wait_vm0()
    BS = RB + 32
    XS = RB + 40
    for j in range(4):
        unpack2(b, V(BS + 2 * j), V(BS + 2 * j + 1), V(B2R + j), "s52")
        unpack2(b, V(XS + 2 * j), V(XS + 2 * j + 1), V(HR + j), "s52")
    b.wait_lg(("X", 0))
    for j in range(8):
        b.valu("v_add_f32", V(RB + j), V(RB + j), V(RB + 8 + j))
    b.wait_lg(("X", 1))
    for j in range(8):
        b.valu("v_add_f32", V(RB + 16 + j), V(RB + 16 + j), V(RB + 24 + j))
    for j in range(8):
        b.valu("v_add_f32", V(RB + j), V(RB + j), V(RB + 16 + j))
    for j in range(4):
        bf16_round_pair(b, V(RB + 2 * j), V(RB + 2 * j + 1), V(TM + 2), "s52")
    for j in range(8):
        b.valu("v_add_f32", V(RB + j), V(RB + j), V(BS + j))
    for j in range(4):
        bf16_round_pair(b, V(RB + 2 * j), V(RB + 2 * j + 1), V(TM + 2), "s52")
    for j in range(8):
        b.valu("v_add_f32", V(RB + j), V(RB + j), V(XS + j))
    for j in range(4):
        b.valu("v_cvt_pk_bf16_f32", V(HR + j), V(RB + 2 * j), V(RB + 2 * j + 1))
    for t in range(2):
        b.bstore(2, V(HR + 2 * t, 2), "v13", S(40, 4), "s14", t * 32)
    b.stamp()
    b.dump_stamps(22, 3)
    b.label("K4_END")
    b.raw("    s_endpgm")
    return a.text() + b.text() + kernel_desc(name, 168), name, K4_LDS, 256, 512


HEADER = """; Kernarg layout for this problem (88 bytes, ptrs only, base s[0:1]):
"""


def main():
    ks = [gen_k1(), gen_k2(), gen_k3(), gen_k4()]
    out = HEADER
    for (_, name, lds, grid, blk) in ks:
        out += f"; @launch kernel={name} grid=({grid},1,1) block=({blk},1,1) lds={lds}\n"
    out += '.amdgcn_target "amdgcn-amd-amdhsa--gfx950"\n.text\n'
    for k in ks:
        out += k[0]
    path = sys.argv[1] if len(sys.argv) > 1 else f"cdna_kernels/{NAME}.s"
    open(path, "w").write(out)
    print("wrote", path, len(out), "bytes")


if __name__ == "__main__":
    main()
```

```python
import re


def R(prefix, lo, n=1):
    if n == 1:
        return f"{prefix}{lo}"
    return f"{prefix}[{lo}:{lo + n - 1}]"


def V(lo, n=1):
    return R("v", lo, n)


def A(lo, n=1):
    return R("a", lo, n)


def S(lo, n=1):
    return R("s", lo, n)


_re_rng = re.compile(r"^([vas])\[(\d+):(\d+)\]$")
_re_one = re.compile(r"^([vas])(\d+)$")


def expand(op):
    if op is None:
        return []
    if isinstance(op, (int, float)):
        return []
    op = op.strip()
    if op.startswith("-"):
        op = op[1:]
    if op.startswith("abs(") and op.endswith(")"):
        op = op[4:-1]
    if op.startswith("|") and op.endswith("|"):
        op = op[1:-1]
    m = _re_rng.match(op)
    if m:
        return [f"{m.group(1)}{i}" for i in range(int(m.group(2)), int(m.group(3)) + 1)]
    m = _re_one.match(op)
    if m:
        return [op]
    if op == "vcc":
        return ["vcc"]
    if op in ("m0", "exec", "scc"):
        return [op]
    return []


class Ins:
    __slots__ = ("kind", "wr", "rd", "srcc", "ab", "states", "sub")

    def __init__(self, kind, wr=(), rd=(), srcc=(), ab=(), states=1, sub=None):
        self.kind = kind
        self.wr = set(wr)
        self.rd = set(rd)
        self.srcc = tuple(srcc)
        self.ab = set(ab)
        self.states = states
        self.sub = sub


VALU_KINDS = ("valu", "trans", "dot", "rdlane", "perml")


class Asm:
    def __init__(self):
        self.lines = []
        self.hist = []
        self.vmq = []
        self.lgq = []
        self.nops = 0

    def raw(self, text):
        self.lines.append(text)

    def comment(self, text):
        self.lines.append("    ; " + text)

    def label(self, name):
        self.flush()
        self.lines.append(name + ":")

    def flush(self):
        need = 0
        dist = 0
        for p in reversed(self.hist):
            req = 0
            if p.kind == "mfma":
                req = 8
            elif p.kind in VALU_KINDS:
                req = 5 if any(r[0] == "s" or r == "vcc" for r in p.wr) else 3
            elif p.kind == "wstore":
                req = 2
            elif p.kind == "salu" and "m0" in p.wr:
                req = 1
            need = max(need, req - dist)
            dist += p.states
        self._nop(need)
        self.hist = []

    def _nop(self, n):
        while n > 0:
            k = min(n, 16)
            self.lines.append(f"    s_nop {k - 1}")
            self.hist.append(Ins("nop", states=k))
            self.nops += 1
            n -= k

    def _required(self, p, c):
        req = 0
        pw = p.wr
        if p.kind in ("valu", "trans", "rdlane", "perml"):
            common_rd = pw & c.rd
            if c.kind == "mfma" and common_rd:
                req = max(req, 2)
            if p.kind == "trans" and c.kind in ("valu", "dot", "rdlane", "perml") and common_rd:
                req = max(req, 1)
            sg = {r for r in pw if r[0] == "s" or r == "vcc"}
            if sg & c.rd:
                if c.kind in VALU_KINDS:
                    req = max(req, 4 if c.kind == "rdlane" else 2)
                elif c.kind in ("vmem", "wstore", "dma"):
                    req = max(req, 5)
            if c.kind == "rdlane" and common_rd:
                req = max(req, 1)
            if c.kind == "perml" and common_rd:
                req = max(req, 2)
        if p.kind == "dot":
            touched = pw & (c.rd | c.wr)
            if touched:
                if c.kind == "dot" and c.sub == p.sub and not (pw & c.ab):
                    req = max(req, 0)
                else:
                    req = max(req, 3)
        if p.kind == "mfma":
            if c.kind == "mfma":
                if pw & c.ab:
                    req = max(req, 8)
                ov = pw & set(c.srcc)
                if ov:
                    if tuple(sorted(pw, key=_rk)) == tuple(sorted(c.srcc, key=_rk)):
                        req = max(req, 0)
                    else:
                        req = max(req, 6)
                elif pw & c.wr:
                    req = max(req, 8)
            else:
                if pw & (c.rd | c.wr):
                    req = max(req, 8)
                if c.kind in VALU_KINDS and (set(p.srcc) & c.wr):
                    req = max(req, 3)
        if p.kind == "salu" and "m0" in pw and c.kind == "dma":
            req = max(req, 1)
        if p.kind == "wstore":
            if p.rd & c.wr:
                req = max(req, 2 if c.kind in VALU_KINDS else 1)
        return req

    def ins(self, text, ins):
        need = 0
        dist = 0
        for p in reversed(self.hist):
            r = self._required(p, ins)
            if r - dist > need:
                need = r - dist
            dist += p.states
            if dist > 24:
                break
        self._nop(need)
        self.lines.append("    " + text)
        self.hist.append(ins)
        if len(self.hist) > 40:
            self.hist = self.hist[-40:]

    def valu(self, op, dst, *srcs, kind="valu", extra_wr=(), extra_rd=(), mods=""):
        wr = expand(dst) + [r for e in extra_wr for r in expand(e)]
        rd = [r for s in srcs for r in expand(s)] + [r for e in extra_rd for r in expand(e)]
        txt = f"{op} {dst}, " + ", ".join(str(s) for s in srcs) + mods
        self.ins(txt, Ins(kind, wr, rd))

    def trans(self, op, dst, src):
        self.valu(op, dst, src, kind="trans")

    def salu(self, op, dst, *srcs):
        wr = expand(dst)
        rd = [r for s in srcs for r in expand(s)]
        txt = f"{op} {dst}" + "".join(f", {s}" for s in srcs)
        self.ins(txt, Ins("salu", wr, rd))

    def scmp(self, op, a, b):
        self.ins(f"{op} {a}, {b}", Ins("salu", ["scc"], expand(a) + expand(b)))

    def branch(self, op, label):
        self.flush()
        self.lines.append(f"    {op} {label}")

    abl = set()

    def dot2(self, dst, a, b, c):
        if "nodots" in self.abl:
            return
        self.ins(
            f"v_dot2_f32_bf16 {dst}, {a}, {b}, {c}",
            Ins("dot", expand(dst), expand(a) + expand(b) + expand(c), ab=expand(a) + expand(b), sub="dot2"),
        )

    def mfma(self, d, a, b, c):
        if "nomfma" in self.abl:
            return
        cs = expand(c)
        self.ins(
            f"v_mfma_f32_16x16x32_bf16 {d}, {a}, {b}, {c}",
            Ins("mfma", expand(d), expand(a) + expand(b) + cs, srcc=cs, ab=expand(a) + expand(b)),
        )

    def mfma16(self, d, a, b, c):
        cs = expand(c)
        self.ins(
            f"v_mfma_f32_16x16x16_bf16 {d}, {a}, {b}, {c}",
            Ins("mfma", expand(d), expand(a) + expand(b) + cs, srcc=cs, ab=expand(a) + expand(b)),
        )

    nopk = False

    def pk(self, op, dst, *srcs, sel=None, selhi=None, neglo=None, neghi=None):
        if self.nopk:
            n = len(srcs)
            sel = sel or [0] * n
            selhi = selhi or [1] * n
            neglo = neglo or [0] * n
            neghi = neghi or [0] * n
            d = expand(dst)
            ss = [expand(x) for x in srcs]
            sop = op.replace("v_pk_", "v_")
            for h, (se, ne) in enumerate(((sel, neglo), (selhi, neghi))):
                self.valu(sop, d[h], *[("-" if ne[i] else "") + ss[i][se[i]] for i in range(n)])
            return
        mods = ""
        if sel:
            mods += " op_sel:[" + ",".join(map(str, sel)) + "]"
        if selhi:
            mods += " op_sel_hi:[" + ",".join(map(str, selhi)) + "]"
        if neglo:
            mods += " neg_lo:[" + ",".join(map(str, neglo)) + "]"
        if neghi:
            mods += " neg_hi:[" + ",".join(map(str, neghi)) + "]"
        self.valu(op, dst, *srcs, mods=mods)

    def permswap(self, n, x, y):
        self.ins(f"v_permlane{n}_swap_b32 {x}, {y}", Ins("perml", expand(x) + expand(y), expand(x) + expand(y)))

    def rfl(self, sdst, vsrc):
        self.ins(f"v_readfirstlane_b32 {sdst}, {vsrc}", Ins("rdlane", expand(sdst), expand(vsrc)))

    def acc_read(self, vdst, asrc):
        self.valu("v_accvgpr_read_b32", vdst, asrc)

    def dpp_add(self, dst, src, ctrl):
        txt = f"v_add_f32_dpp {dst}, {src}, {src} {ctrl} row_mask:0xf bank_mask:0xf"
        self.ins(txt, Ins("perml", expand(dst), expand(src)))

    def cmp(self, op, sdst, a, b):
        self.valu(op, sdst, a, b)

    def cndmask(self, dst, f, t, mask):
        self.valu("v_cndmask_b32", dst, f, t, mask)

    def bload(self, n, dst, voff, srd, soff=0, off=0, tag=None, flags=""):
        op = {1: "buffer_load_dword", 2: "buffer_load_dwordx2", 4: "buffer_load_dwordx4"}[n]
        txt = f"{op} {dst}, {voff}, {srd}, {soff} offen" + (f" offset:{off}" if off else "") + (" " + flags if flags else "")
        self.ins(txt, Ins("vmem", expand(dst), expand(voff) + expand(srd) + expand(soff)))
        self.vmq.append(tag)

    def bstore(self, n, src, voff, srd, soff=0, off=0, tag=None, flags=""):
        op = {1: "buffer_store_dword", 2: "buffer_store_dwordx2", 4: "buffer_store_dwordx4"}[n]
        txt = f"{op} {src}, {voff}, {srd}, {soff} offen" + (f" offset:{off}" if off else "") + (" " + flags if flags else "")
        kind = "wstore" if n == 4 else "vmem"
        self.ins(txt, Ins(kind, [], expand(src) + expand(voff) + expand(srd) + expand(soff)))
        self.vmq.append(tag)

    def dma(self, voff, srd, soff, tag=None, flags=""):
        txt = f"buffer_load_dwordx4 {voff}, {srd}, {soff} offen" + (" " + flags if flags else "") + " lds"
        self.ins(txt, Ins("dma", [], expand(voff) + expand(srd) + expand(soff) + ["m0"]))
        self.vmq.append(tag)

    def batomic_add_ret(self, vdata, voff, srd, tag=None):
        txt = f"buffer_atomic_add {vdata}, {voff}, {srd}, 0 offen sc0"
        self.ins(txt, Ins("vmem", expand(vdata), expand(vdata) + expand(voff) + expand(srd)))
        self.vmq.append(tag)

    def batomic_f32(self, vdata, voff, srd, soff, off=0, tag=None):
        txt = f"buffer_atomic_add_f32 {vdata}, {voff}, {srd}, {soff} offen" + (f" offset:{off}" if off else "")
        self.ins(txt, Ins("vmem", [], expand(vdata) + expand(voff) + expand(srd) + expand(soff)))
        self.vmq.append(tag)

    def ds_read2st64(self, dst, addr, o0, o1, tag=None):
        self.ins(f"ds_read2st64_b32 {dst}, {addr} offset0:{o0} offset1:{o1}", Ins("ds", expand(dst), expand(addr)))
        self.lgq.append(tag)

    def ds_read(self, op, dst, addr, off=0, tag=None):
        if "notr" in self.abl and "tr" in op:
            return
        txt = f"{op} {dst}, {addr}" + (f" offset:{off}" if off else "")
        self.ins(txt, Ins("ds", expand(dst), expand(addr)))
        self.lgq.append(tag)

    def ds_write(self, op, addr, src, off=0, tag=None):
        txt = f"{op} {addr}, {src}" + (f" offset:{off}" if off else "")
        self.ins(txt, Ins("ds", [], expand(addr) + expand(src)))
        self.lgq.append(tag)

    def bperm(self, dst, addr, src, tag=None):
        self.ins(f"ds_bpermute_b32 {dst}, {addr}, {src}", Ins("ds", expand(dst), expand(addr) + expand(src)))
        self.lgq.append(tag)

    def _count_after(self, q, tags):
        if not isinstance(tags, list):
            tags = [tags]
        last = -1
        for i, t in enumerate(q):
            if t in tags:
                last = i
        if last < 0:
            return None
        return len(q) - 1 - last

    def wait_vm(self, tags):
        n = self._count_after(self.vmq, tags)
        if n is None:
            return
        assert n <= 63, n
        self.ins(f"s_waitcnt vmcnt({n})", Ins("wait"))
        self.vmq = self.vmq[len(self.vmq) - n :] if n else []

    def wait_lg(self, tags):
        n = self._count_after(self.lgq, tags)
        if n is None:
            return
        assert n <= 15, n
        self.ins(f"s_waitcnt lgkmcnt({n})", Ins("wait"))
        self.lgq = self.lgq[len(self.lgq) - n :] if n else []

    def wait_vm0(self):
        self.ins("s_waitcnt vmcnt(0)", Ins("wait"))
        self.vmq = []

    def wait_lg0(self):
        self.ins("s_waitcnt lgkmcnt(0)", Ins("wait"))
        self.lgq = []

    def barrier(self):
        self.ins("s_barrier", Ins("wait"))

    stamps = False
    nstamp = 0

    def stamp(self):
        if not self.stamps:
            return
        self.ins(("s_memrealtime" if self.stamps == 2 else "s_memtime") + " s[98:99]", Ins("salu", ["s98", "s99"]))
        self.wait_lg0()
        self.salu("s_mov_b32", f"s{70 + self.nstamp}", "s98")
        self.nstamp += 1

    def dump_stamps(self, ws_lo, kidx):
        if not self.stamps:
            return
        self.salu("s_add_u32", "s64", f"s{ws_lo}", (16 << 20) + kidx * (1 << 20))
        self.salu("s_addc_u32", "s65", f"s{ws_lo + 1}", 0)
        self.salu("s_and_b32", "s65", "s65", "0xffff")
        self.salu("s_mov_b32", "s66", 1 << 20)
        self.salu("s_mov_b32", "s67", "0x20000")
        self.salu("s_lshl_b32", "s68", "s2", 4)
        self.salu("s_add_u32", "s68", "s68", "s3")
        self.salu("s_lshl_b32", "s68", "s68", 7)
        self.salu("s_mov_b64", "exec", 1)
        self.valu("v_mov_b32", "v1", 0)
        for i in range(self.nstamp):
            self.valu("v_mov_b32", f"v{2 + i}", f"s{70 + i}")
            self.bstore(1, f"v{2 + i}", "v1", "s[64:67]", "s68", i * 4)

    def text(self):
        return "\n".join(self.lines) + "\n"


def _rk(r):
    return (r[0], int(r[1:]) if r[1:].isdigit() else 0)
```

```python
import sys, os, math
sys.path.insert(0, os.path.dirname(__file__))
from asmlib import Asm, V, A, S, Ins
Asm.abl = set(os.environ.get('ABL', '').split(','))
if os.environ.get('STAMPS'):
    Asm.stamps = int(os.environ.get('STAMPS'))

if os.environ.get("NOPK"):
    Asm.nopk = True
NAME = "sequential_preLN__linear_attn_block__mixer_channel_mlp__prompt"

PQF_OFF = 0
HF_OFF = 2 << 20
H1F_OFF = 4 << 20
KVP_OFF = 12 << 20
ZP_OFF = 13 << 20
KVF_OFF = (13 << 20) + (512 << 10)
ST_OFF = 14 << 20
HI = 65536
SY_OFF = 15 << 20

LOG2E = 1.4426950408889634


def f32bits(x):
    import struct
    return "0x%08x" % struct.unpack("<I", struct.pack("<f", x))[0]


def make_srd(a, sd, sb, off, nbytes):
    if off:
        a.salu("s_add_u32", S(sd), S(sb), off)
        a.salu("s_addc_u32", S(sd + 1), S(sb + 1), 0)
        a.salu("s_and_b32", S(sd + 1), S(sd + 1), "0xffff")
    else:
        a.salu("s_mov_b32", S(sd), S(sb))
        a.salu("s_and_b32", S(sd + 1), S(sb + 1), "0xffff")
    a.salu("s_mov_b32", S(sd + 2), nbytes)
    a.salu("s_mov_b32", S(sd + 3), "0x20000")


def lane_setup(a):
    a.valu("v_lshrrev_b32", "v4", 6, "v0")
    a.valu("v_and_b32", "v1", 63, "v0")
    a.rfl("s3", "v4")
    a.valu("v_and_b32", "v2", 15, "v1")
    a.valu("v_lshrrev_b32", "v3", 4, "v1")
    a.salu("s_bfe_u32", "s4", "s2", "0x20001")
    a.salu("s_and_b32", "s5", "s2", 1)
    a.salu("s_lshr_b32", "s8", "s2", 3)


def map_8x4(a):
    a.salu("s_and_b32", "s6", "s8", 7)
    a.salu("s_lshl_b32", "s9", "s4", 3)
    a.salu("s_add_u32", "s6", "s6", "s9")
    a.salu("s_lshr_b32", "s7", "s8", 3)
    a.salu("s_lshl_b32", "s9", "s5", 2)
    a.salu("s_add_u32", "s7", "s7", "s9")


def lref(regs, off):
    if off >= HI:
        assert off - HI < 65536
        return regs[1], off - HI
    return regs[0], off


def bf16_round_pair(a, x0, x1, tmp, smask):
    a.valu("v_cvt_pk_bf16_f32", tmp, x0, x1)
    a.valu("v_lshlrev_b32", x0, 16, tmp)
    a.valu("v_and_b32", x1, smask, tmp)


def bf16_round1(a, x, tmp):
    a.valu("v_cvt_pk_bf16_f32", tmp, x, x)
    a.valu("v_lshlrev_b32", x, 16, tmp)


def unpack2(a, lo, hi, src, smask):
    a.valu("v_lshlrev_b32", lo, 16, src)
    a.valu("v_and_b32", hi, smask, src)


def ln_scalars(a, s1, s2, tmp, tmp2):
    a.valu("v_mul_f32", tmp, f32bits(1.0 / 512), s1)
    a.valu("v_mul_f32", tmp2, f32bits(1.0 / 512), s2)
    a.valu("v_fma_f32", tmp2, "-" + tmp, tmp, tmp2)
    a.valu("v_max_f32", tmp2, 0, tmp2)
    a.valu("v_cvt_pk_bf16_f32", s1, tmp, tmp2)
    a.valu("v_and_b32", s2, "0xffff0000", s1)
    a.valu("v_lshlrev_b32", s1, 16, s1)
    a.valu("v_add_f32", s2, f32bits(1e-5), s2)
    a.valu("v_cvt_pk_bf16_f32", s2, s2, s2)
    a.valu("v_lshlrev_b32", s2, 16, s2)
    a.trans("v_sqrt_f32", s2, s2)
    a.valu("v_cvt_pk_bf16_f32", s2, s2, s2)
    a.valu("v_lshlrev_b32", s2, 16, s2)


def gsum(a, x, t):
    a.valu("v_mov_b32", t, x)
    a.permswap(16, x, t)
    a.valu("v_add_f32", x, x, t)
    a.valu("v_mov_b32", t, x)
    a.permswap(32, x, t)
    a.valu("v_add_f32", x, x, t)


def interleave(ms, rs, first=1):
    n = len(ms)
    slots = max(1, n - first)
    per = max(int(os.environ.get("PER", "2")), -(-len(rs) // slots))
    ri = 0
    for i, m in enumerate(ms):
        m()
        if i + 1 >= first:
            for _ in range(per):
                if ri < len(rs):
                    rs[ri]()
                    ri += 1
    while ri < len(rs):
        rs[ri]()
        ri += 1


def kernel_header(a, name):
    a.raw(f".globl {name}")
    a.raw(".p2align 8")
    a.raw(f".type {name},@function")
    a.raw(f"{name}:")
    a.stamp()


def kernel_desc(name, nvgpr, nsgpr=102):
    nv = (nvgpr + 7) // 8 * 8
    return f""".section .rodata,"a"
.p2align 6
.amdhsa_kernel {name}
  .amdhsa_next_free_vgpr {nv}
  .amdhsa_next_free_sgpr {nsgpr}
  .amdhsa_accum_offset {nv}
  .amdhsa_group_segment_fixed_size 0
  .amdhsa_kernarg_size 88
  .amdhsa_user_sgpr_count 2
  .amdhsa_user_sgpr_kernarg_segment_ptr 1
  .amdhsa_system_sgpr_workgroup_id_x 1
.end_amdhsa_kernel
.text
"""


def sub_asm(a):
    b = Asm()
    b.nstamp = 1 if Asm.stamps else 0
    return b


def w128_dma_voff(a, dst, t0, t1, pitch, perm):
    if perm:
        a.valu("v_bfe_u32", dst, "v1", 3, 2)
        a.valu("v_lshrrev_b32", t0, 5, "v1")
        a.valu("v_lshl_add_u32", dst, t0, 3, dst)
    else:
        a.valu("v_lshrrev_b32", dst, 3, "v1")
    a.valu("v_mul_u32_u24", dst, pitch, dst)
    a.valu("v_bfe_u32", t0, "v1", 1, 2)
    a.valu("v_bfe_u32", t1, "v1", 4, 2)
    a.valu("v_xor_b32", t0, t0, t1)
    a.valu("v_lshl_add_u32", dst, t0, 5, dst)
    a.valu("v_and_b32", t0, 1, "v1")
    a.valu("v_lshl_add_u32", dst, t0, 4, dst)


def w128_tr_base(a, dst, t0, t1):
    a.valu("v_lshrrev_b32", t0, 2, "v2")
    a.valu("v_lshl_add_u32", dst, "v3", 2, t0)
    a.valu("v_bfe_u32", t1, dst, 1, 2)
    a.valu("v_lshlrev_b32", dst, 7, dst)
    a.valu("v_lshl_add_u32", dst, t1, 5, dst)
    a.valu("v_and_b32", t1, 3, "v1")
    a.valu("v_lshl_add_u32", dst, t1, 3, dst)


K1_WB = 65536
K1_AUX = K1_WB + 5 * 16384
K1_SEEN = K1_AUX + 1024
K1_LDS = K1_AUX + 1088


def gen_k1():
    a = Asm()
    name = "k1_qkv_kernel"
    kernel_header(a, name)
    a.scmp("s_cmp_ge_u32", "s2", 256)
    a.raw("    s_cbranch_scc1 K1_END")
    a.raw("    s_load_dwordx4 s[16:19], s[0:1], 0")
    a.raw("    s_load_dwordx4 s[20:23], s[0:1], 72")
    a.raw("    s_load_dwordx2 s[48:49], s[0:1], 16")
    a.raw("    s_load_dwordx2 s[50:51], s[0:1], 32")
    a.raw("    s_load_dwordx2 s[64:65], s[0:1], 48")
    lane_setup(a)
    map_8x4(a)
    a.scmp("s_cmp_ge_u32", "s3", 4)
    a.branch("s_cbranch_scc1", "K1_LOADER")

    a.valu("v_and_b32", "v4", 7, "v2")
    a.valu("v_xor_b32", "v4", "v4", "v3")
    a.valu("v_lshlrev_b32", "v5", 7, "v2")
    a.valu("v_lshl_add_u32", "v5", "v4", 4, "v5")
    a.valu("v_xor_b32", "v6", 64, "v5")
    a.salu("s_lshl_b32", "s9", "s3", 11)
    a.valu("v_add_u32", "v7", "s9", "v5")
    a.valu("v_add_u32", "v8", "s9", "v6")
    w128_tr_base(a, "v9", "v4", "v10")
    a.salu("s_lshl_b32", "s9", "s3", 5)
    a.valu("v_xor_b32", "v9", "s9", "v9")
    a.valu("v_add_u32", "v9", K1_WB, "v9")
    a.valu("v_add_u32", "v10", HI, "v9")
    WRD = ("v9", "v10")
    ONES = 12
    for i in range(4):
        a.valu("v_mov_b32", V(ONES + i), "0x3f803f80")
    a.raw("    s_waitcnt lgkmcnt(0)")
    make_srd(a, 32, 22, PQF_OFF, 2 << 20)
    make_srd(a, 40, 22, KVF_OFF, 34816)
    make_srd(a, 44, 20, 0, 256)
    a.salu("s_mov_b32", "s52", "0xffff0000")
    EZ = 216
    a.salu("s_lshl_b32", "s63", "s7", 5)
    for r in range(4):
        a.valu("v_mov_b32", V(EZ + r), 0)
    a.valu("v_mov_b32", V(EZ + 4), "s63")
    a.valu("v_mov_b32", V(EZ + 5), 1)
    a.valu("v_mov_b32", V(EZ + 6), 1)
    a.valu("v_lshlrev_b32", V(EZ + 7), 4, "v1")
    a.valu("v_mov_b32", V(EZ + 8), K1_SEEN)
    a.salu("s_mov_b32", "s62", 99)
    a.scmp("s_cmp_lg_u32", "s3", 0)
    a.branch("s_cbranch_scc1", "K1_EL0")
    a.salu("s_mov_b32", "s62", 0)
    a.salu("s_mov_b64", "exec", 1)
    a.batomic_add_ret(V(EZ + 5), V(EZ + 4), S(44, 4))
    a.salu("s_mov_b64", "exec", -1)
    a.label("K1_EL0")
    a.vmq = []
    if not os.environ.get("NOPF0"):
        make_srd(a, 24, 16, 0, 2048 * 512 * 2)
        make_srd(a, 28, 18, 0, 512 * 1536 * 2)
        PD = 228
        a.salu("s_and_b32", "s9", "s8", 7)
        a.salu("s_mul_i32", "s9", "s9", 8 * 3072)
        a.salu("s_lshl_b32", "s10", "s7", 7)
        a.salu("s_add_u32", "s9", "s9", "s10")
        a.valu("v_lshrrev_b32", V(PD + 6), 3, "v1")
        a.valu("v_and_b32", V(PD + 5), 7, "v1")
        a.valu("v_mul_u32_u24", V(PD + 4), 3072, V(PD + 6))
        a.valu("v_lshl_add_u32", V(PD + 4), V(PD + 5), 4, V(PD + 4))
        a.scmp("s_cmp_ge_u32", "s3", 2)
        a.branch("s_cbranch_scc1", "K1_PFX")
        a.salu("s_lshl_b32", "s10", "s3", 10)
        a.salu("s_add_u32", "s10", "s10", "s9")
        for st in range(2, 8):
            a.salu("s_add_u32", "s11", "s10", 1024 + st * 64 * 3072)
            a.bload(4, V(PD, 4), V(PD + 4), S(28, 4), "s11", 0)
        a.branch("s_branch", "K1_PFQ")
        a.label("K1_PFX")
        a.valu("v_lshlrev_b32", V(PD + 6), 10, V(PD + 6))
        a.valu("v_lshl_add_u32", V(PD + 5), V(PD + 5), 4, V(PD + 6))
        a.salu("s_lshl_b32", "s10", "s6", 6)
        a.salu("s_lshr_b32", "s11", "s8", 3)
        a.salu("s_lshl_b32", "s11", "s11", 4)
        a.salu("s_add_u32", "s10", "s10", "s11")
        a.salu("s_lshl_b32", "s11", "s3", 3)
        a.salu("s_add_u32", "s10", "s10", "s11")
        a.salu("s_sub_u32", "s10", "s10", 16)
        a.salu("s_lshl_b32", "s10", "s10", 10)
        for st in range(2, 8):
            a.bload(4, V(PD, 4), V(PD + 5), S(24, 4), "s10", st * 128)
        a.label("K1_PFQ")
        a.salu("s_mul_i32", "s10", "s3", 128 * 3072)
        a.salu("s_add_u32", "s10", "s10", "s9")
        a.bload(4, V(PD, 4), V(PD + 4), S(28, 4), "s10", 0)
        a.salu("s_add_u32", "s10", "s10", 64 * 3072)
        a.bload(4, V(PD, 4), V(PD + 4), S(28, 4), "s10", 0)
        a.vmq = []

    def pf_next():
        pass
    def zero_stores():
        a.salu("s_lshl_b32", "s61", "s7", 12)
        for u in range(4):
            a.bstore(4, V(EZ, 4), V(EZ + 7), S(40, 4), "s61", u * 1024, flags="sc1")
        a.salu("s_lshl_b32", "s61", "s7", 8)
        a.salu("s_add_u32", "s61", "s61", 32768)
        a.salu("s_mov_b64", "exec", "0xffff")
        a.bstore(4, V(EZ, 4), V(EZ + 7), S(40, 4), "s61", 0, flags="sc1")
        a.salu("s_mov_b64", "exec", -1)

    def flag_store():
        a.wait_vm0()
        a.salu("s_mov_b64", "exec", 1)
        a.bstore(1, V(EZ + 6), V(EZ + 4), S(44, 4), 0, 4, flags="sc1")
        a.salu("s_mov_b64", "exec", -1)
        a.salu("s_mov_b32", "s62", 99)

    def checkpoint(c):
        if c >= 2:
            a.scmp("s_cmp_lg_u32", "s62", c - 1)
            a.branch("s_cbranch_scc1", f"K1_CPA{c}")
            flag_store()
            a.label(f"K1_CPA{c}")
        a.scmp("s_cmp_lg_u32", "s62", 0)
        a.branch("s_cbranch_scc1", f"K1_CPB{c}")
        a.rfl("s61", V(EZ + 5))
        a.scmp("s_cmp_lg_u32", "s61", 0)
        a.branch("s_cbranch_scc1", f"K1_CPB{c}")
        zero_stores()
        a.salu("s_mov_b32", "s62", c + 1)
        a.label(f"K1_CPB{c}")
        a.vmq = []

    FB = 16
    ACK = 72
    ACV = 88
    CSK = 104
    CSV = 108
    RS = 112
    GR = 116
    ACQ = 120
    CSQ = 136
    T = 140

    def fr(buf, idx):
        return FB + (buf * 7 + idx) * 4

    def reads1(ks):
        buf = ks & 1
        s, sub = ks >> 1, ks & 1
        ar = "v5" if sub == 0 else "v6"
        xr = "v7" if sub == 0 else "v8"
        sl = (s % 5) * 16384
        L = []
        for part in range(2):
            for hh in range(2):
                r, o = lref(WRD, sl + part * 8192 + sub * 4096 + hh * 2048)
                L.append(lambda part=part, hh=hh, r=r, o=o: a.ds_read(
                    "ds_read_b64_tr_b16", V(fr(buf, 5 + part) + 2 * hh, 2), r, o, tag=("R", ks)))
        for m in range(4):
            L.append(lambda m=m: a.ds_read("ds_read_b128", V(fr(buf, m), 4), ar, s * 8192 + m * 2048, tag=("R", ks)))
        L.append(lambda: a.ds_read("ds_read_b128", V(fr(buf, 4), 4), xr, s * 8192, tag=("R", ks)))
        return L

    a.stamp()
    a.barrier()
    a.stamp()
    for f in reads1(0):
        f()
    for ks in range(16):
        buf = ks & 1
        a.wait_lg(("R", ks))
        if ks + 1 < 16 and (ks + 1) % 2 == 0:
            a.barrier()
        K, Vv = V(fr(buf, 5), 4), V(fr(buf, 6), 4)
        XA = V(fr(buf, 4), 4)
        M = []
        for m in range(4):
            M.append(lambda m=m: a.mfma(V(ACK + 4 * m, 4), V(fr(buf, m), 4), K, V(ACK + 4 * m, 4) if ks else 0))
            M.append(lambda m=m: a.mfma(V(ACV + 4 * m, 4), V(fr(buf, m), 4), Vv, V(ACV + 4 * m, 4) if ks else 0))
        M.append(lambda: a.mfma(V(CSK, 4), V(ONES, 4), K, V(CSK, 4) if ks else 0))
        M.append(lambda: a.mfma(V(CSV, 4), V(ONES, 4), Vv, V(CSV, 4) if ks else 0))
        M.append(lambda: a.mfma(V(RS, 4), XA, V(ONES, 4), V(RS, 4) if ks else 0))
        M.append(lambda: a.mfma(V(GR, 4), XA, XA, V(GR, 4) if ks else 0))
        interleave(M, reads1(ks + 1) if ks + 1 < 16 else [])
        if ks % 2 == 0 and ks < 14:
            checkpoint(ks // 2)
        if ks % int(os.environ.get("PFP1", "3")) == 0:
            pf_next()
    a.stamp()
    a.valu("v_and_b32", V(T), 3, "v2")
    a.cmp("v_cmp_eq_u32", S(54, 2), 1, V(T))
    a.cmp("v_cmp_eq_u32", S(56, 2), 2, V(T))
    a.cmp("v_cmp_eq_u32", S(58, 2), 3, V(T))
    a.valu("v_lshrrev_b32", V(T + 1), 2, "v2")
    a.cmp("v_cmp_eq_u32", S(60, 2), V(T + 1), "v3")
    for base in (RS, GR):
        a.cndmask(V(base), V(base), V(base + 1), S(54, 2))
        a.cndmask(V(base), V(base), V(base + 2), S(56, 2))
        a.cndmask(V(base), V(base), V(base + 3), S(58, 2))
    a.valu("v_mov_b32", V(RS + 1), V(GR))
    ln_scalars(a, V(RS), V(RS + 1), V(T + 2), V(T + 3))
    a.trans("v_rcp_f32", V(RS + 1), V(RS + 1))
    a.salu("s_lshl_b32", "s9", "s3", 6)
    a.salu("s_add_u32", "s9", "s9", K1_AUX)
    a.valu("v_lshl_add_u32", V(T + 4), "v2", 2, "s9")
    a.salu("s_lshl_b32", "s9", "s3", 7)
    a.salu("s_add_u32", "s9", "s9", K1_AUX + 512)
    a.valu("v_lshl_add_u32", V(T + 5), "v2", 3, "s9")
    a.salu("s_mov_b64", "exec", S(60, 2))
    a.ds_write("ds_write_b32", V(T + 4), V(RS), 0, tag="W")
    a.ds_write("ds_write_b32", V(T + 4), V(RS + 1), 256, tag="W")
    a.ds_write("ds_write_b64", V(T + 5), V(RS, 2), 0, tag="W")
    a.salu("s_mov_b64", "exec", -1)
    a.wait_lg0()
    a.scmp("s_cmp_lg_u32", "s3", 0)
    a.branch("s_cbranch_scc1", "K1_RES2")
    a.scmp("s_cmp_eq_u32", "s62", 0)
    a.branch("s_cbranch_scc1", "K1_RES1")
    a.scmp("s_cmp_eq_u32", "s62", 99)
    a.branch("s_cbranch_scc1", "K1_RES2")
    flag_store()
    a.branch("s_branch", "K1_RES2")
    a.label("K1_RES1")
    a.rfl("s61", V(EZ + 5))
    a.scmp("s_cmp_lg_u32", "s61", 0)
    a.branch("s_cbranch_scc1", "K1_RES3")
    zero_stores()
    flag_store()
    a.branch("s_branch", "K1_RES2")
    a.label("K1_RES3")
    a.ds_read("ds_read_b32", V(EZ + 9), V(EZ + 8), 0)
    a.wait_lg0()
    a.rfl("s61", V(EZ + 9))
    a.scmp("s_cmp_eq_u32", "s61", 0)
    a.branch("s_cbranch_scc1", "K1_RES1")
    a.label("K1_RES2")
    a.vmq = []
    a.barrier()
    if not os.environ.get("NOWARM"):
        a.valu("v_lshlrev_b32", V(232), 7, "v1")
        a.scmp("s_cmp_lt_u32", "s3", 2)
        a.branch("s_cbranch_scc1", "K1_WM9")
        a.salu("s_lshl_b32", "s66", "s2", 13)
        a.scmp("s_cmp_ge_u32", "s2", 224)
        a.branch("s_cbranch_scc1", "K1_WM1")
        a.scmp("s_cmp_eq_u32", "s3", 2)
        a.salu("s_cselect_b32", "s64", "s50", "s64")
        a.salu("s_cselect_b32", "s65", "s51", "s65")
        make_srd(a, 24, 64, 0, 512 * 1792 * 2)
        a.bload(1, V(233), V(232), S(24, 4), "s66", 0)
        a.branch("s_branch", "K1_WM9")
        a.label("K1_WM1")
        make_srd(a, 24, 48, 0, 512 * 512 * 2)
        a.salu("s_sub_u32", "s66", "s2", 224)
        a.salu("s_lshl_b32", "s66", "s66", 1)
        a.salu("s_add_u32", "s66", "s66", "s3")
        a.salu("s_sub_u32", "s66", "s66", 2)
        a.salu("s_lshl_b32", "s66", "s66", 13)
        a.bload(1, V(233), V(232), S(24, 4), "s66", 0)
        a.label("K1_WM9")
        a.vmq = []

    MN = T + 8
    RD = T + 24
    PR = T + 40
    a.salu("s_mov_b32", "s9", K1_AUX)
    a.valu("v_lshl_add_u32", V(T + 4), "v3", 4, "s9")
    a.valu("v_lshl_add_u32", V(T + 5), "v2", 3, "s9")
    for m in range(4):
        a.ds_read("ds_read_b128", V(MN + 4 * m, 4), V(T + 4), m * 64, tag="S1")
        a.ds_read("ds_read_b128", V(RD + 4 * m, 4), V(T + 4), 256 + m * 64, tag="S1")
    for m in range(4):
        a.ds_read("ds_read_b64", V(PR + 2 * m, 2), V(T + 5), 512 + m * 128, tag="S2")

    def reads2(ks):
        buf = ks & 1
        s, sub = ks >> 1, ks & 1
        ar = "v5" if sub == 0 else "v6"
        sl = ((8 + (ks >> 2)) % 5) * 16384
        L = []
        for hh in range(2):
            r, o = lref(WRD, sl + ((ks >> 1) & 1) * 8192 + sub * 4096 + hh * 2048)
            L.append(lambda hh=hh, r=r, o=o: a.ds_read(
                "ds_read_b64_tr_b16", V(fr(buf, 5) + 2 * hh, 2), r, o, tag=("R2", ks)))
        for m in range(4):
            L.append(lambda m=m: a.ds_read("ds_read_b128", V(fr(buf, m), 4), ar, s * 8192 + m * 2048, tag=("R2", ks)))
        return L

    EPSP = T + 48
    L2P = T + 50
    a.valu("v_mov_b32", V(EPSP), f32bits(1e-6))
    a.valu("v_mov_b32", V(EPSP + 1), f32bits(1e-6))
    a.valu("v_mov_b32", V(L2P), f32bits(LOG2E))
    a.valu("v_mov_b32", V(L2P + 1), f32bits(LOG2E))
    a.salu("s_mov_b32", "s53", f32bits(1e-6))
    U = T + 52
    PKO = T + 56
    KVD = T + 72

    def phi4(x, out):
        for h in range(2):
            a.pk("v_pk_mul_f32", V(U + 2 * h, 2), V(x + 2 * h, 2), V(L2P, 2))
        for r in range(4):
            a.valu("v_min_f32", V(U + r), 0, V(U + r))
        for r in range(4):
            a.trans("v_exp_f32", V(U + r), V(U + r))
        for r in range(4):
            a.valu("v_max_f32", V(x + r), "s53", V(x + r))
        for h in range(2):
            a.pk("v_pk_add_f32", V(x + 2 * h, 2), V(x + 2 * h, 2), V(U + 2 * h, 2))
        for h in range(2):
            a.valu("v_cvt_pk_bf16_f32", V(out + h), V(x + 2 * h), V(x + 2 * h + 1))

    a.wait_lg("S1")
    for m in range(4):
        x = ACK + 4 * m
        for h in range(2):
            a.pk("v_pk_fma_f32", V(x + 2 * h, 2), V(MN + 4 * m + 2 * h, 2), V(CSK, 2), V(x + 2 * h, 2),
                 neglo=[1, 0, 0], neghi=[1, 0, 0])
        for h in range(2):
            a.pk("v_pk_fma_f32", V(x + 2 * h, 2), V(x + 2 * h, 2), V(RD + 4 * m + 2 * h, 2), V(EPSP, 2))
        phi4(x, PKO + 2 * m)
        x = ACV + 4 * m
        for h in range(2):
            a.pk("v_pk_fma_f32", V(x + 2 * h, 2), V(MN + 4 * m + 2 * h, 2), V(CSV, 2), V(x + 2 * h, 2),
                 neglo=[1, 0, 0], neghi=[1, 0, 0])
        for h in range(2):
            a.pk("v_pk_mul_f32", V(x + 2 * h, 2), V(x + 2 * h, 2), V(RD + 4 * m + 2 * h, 2))
        for h in range(2):
            a.valu("v_cvt_pk_bf16_f32", V(PKO + 8 + 2 * m + h), V(x + 2 * h), V(x + 2 * h + 1))
    for f in reads2(0):
        f()
    a.mfma(V(KVD, 4), V(PKO, 4), V(PKO + 8, 4), 0)
    a.mfma(V(KVD + 4, 4), V(PKO, 4), V(ONES, 4), 0)
    a.mfma(V(KVD, 4), V(PKO + 4, 4), V(PKO + 12, 4), V(KVD, 4))
    a.mfma(V(KVD + 4, 4), V(PKO + 4, 4), V(ONES, 4), V(KVD + 4, 4))
    a.salu("s_lshl_b32", "s10", "s7", 2)
    a.salu("s_add_u32", "s10", "s10", "s3")
    a.salu("s_lshl_b32", "s12", "s10", 10)
    a.salu("s_lshl_b32", "s13", "s10", 6)
    a.salu("s_add_u32", "s13", "s13", 32768)
    LN16 = T + 6
    G16 = T + 7
    a.valu("v_lshlrev_b32", V(T + 4), 2, "v1")
    a.valu("v_lshlrev_b32", V(G16), 4, "v3")
    a.valu("v_lshl_add_u32", V(G16), "v2", 2, V(G16))
    a.valu("v_lshlrev_b32", V(LN16), 4, "v1")
    a.cmp("v_cmp_gt_u32", S(14, 2), 4, "v2")
    for r in range(4):
        a.batomic_f32(V(KVD + r), V(T + 4), S(40, 4), "s12", r * 256)
    zb = KVD + 4
    a.cndmask(V(zb), V(zb), V(zb + 1), S(54, 2))
    a.cndmask(V(zb), V(zb), V(zb + 2), S(56, 2))
    a.cndmask(V(zb), V(zb), V(zb + 3), S(58, 2))
    a.salu("s_mov_b64", "exec", S(14, 2))
    a.batomic_f32(V(zb), V(G16), S(40, 4), "s13", 0)
    a.salu("s_mov_b64", "exec", -1)
    pf_next()
    a.stamp()
    for ks in range(16):
        buf = ks & 1
        a.wait_lg(("R2", ks))
        Q = V(fr(buf, 5), 4)
        M = []
        for m in range(4):
            M.append(lambda m=m: a.mfma(V(ACQ + 4 * m, 4), Q, V(fr(buf, m), 4), V(ACQ + 4 * m, 4) if ks else 0))
        M.append(lambda: a.mfma(V(CSQ, 4), Q, V(ONES, 4), V(CSQ, 4) if ks else 0))
        interleave(M, reads2(ks + 1) if ks + 1 < 16 else [])
        if ks in (4, 9):
            pf_next()
    a.stamp()
    a.wait_lg0()
    a.salu("s_and_b32", "s13", "s3", 1)
    a.salu("s_lshl_b32", "s13", "s13", 3)
    a.valu("v_add_u32", V(T + 5), "s13", V(LN16))
    a.salu("s_lshl_b32", "s13", "s6", 4)
    a.salu("s_lshr_b32", "s14", "s10", 1)
    a.salu("s_add_u32", "s13", "s13", "s14")
    a.salu("s_lshl_b32", "s13", "s13", 12)
    QO = PKO
    for m in range(4):
        x = ACQ + 4 * m
        for h in range(2):
            a.pk("v_pk_fma_f32", V(x + 2 * h, 2), V(PR + 2 * m, 2), V(CSQ + 2 * h, 2), V(x + 2 * h, 2),
                 sel=[0, 0, 0], selhi=[0, 1, 1], neglo=[1, 0, 0], neghi=[1, 0, 0])
        for h in range(2):
            a.pk("v_pk_fma_f32", V(x + 2 * h, 2), V(x + 2 * h, 2), V(PR + 2 * m, 2), V(EPSP, 2),
                 sel=[0, 1, 0], selhi=[1, 1, 1])
        phi4(x, QO + 2 * m)
        a.bstore(2, V(QO + 2 * m, 2), V(T + 5), S(32, 4), "s13", m * 1024)
    a.stamp()
    a.dump_stamps(22, 0)
    a.raw("    s_endpgm")
    nv = 236

    b = sub_asm(a)
    b.label("K1_LOADER")
    b.salu("s_sub_u32", "s9", "s3", 4)
    b.valu("v_lshrrev_b32", "v4", 3, "v1")
    b.valu("v_and_b32", "v5", 7, "v1")
    b.valu("v_xor_b32", "v5", "v5", "v4")
    b.valu("v_lshlrev_b32", "v4", 10, "v4")
    b.valu("v_lshl_add_u32", "v4", "v5", 4, "v4")
    w128_dma_voff(b, "v5", "v6", "v7", 3072, True)
    b.raw("    s_waitcnt lgkmcnt(0)")
    make_srd(b, 24, 16, 0, 2048 * 512 * 2)
    make_srd(b, 28, 18, 0, 512 * 1536 * 2)
    make_srd(b, 32, 48, 0, 512 * 512 * 2)
    b.salu("s_lshl_b32", "s10", "s6", 6)
    b.salu("s_lshl_b32", "s11", "s9", 4)
    b.salu("s_add_u32", "s10", "s10", "s11")
    b.salu("s_lshl_b32", "s10", "s10", 10)
    b.salu("s_lshl_b32", "s11", "s9", 11)
    b.salu("s_and_b32", "s12", "s9", 1)
    b.salu("s_mul_i32", "s12", "s12", 32 * 3072)
    b.salu("s_lshl_b32", "s15", "s7", 7)
    b.salu("s_add_u32", "s12", "s12", "s15")
    b.salu("s_lshr_b32", "s15", "s9", 1)
    b.salu("s_mul_i32", "s13", "s15", 64 * 3072)
    b.salu("s_add_u32", "s13", "s13", "s12")
    b.salu("s_lshl_b32", "s15", "s15", 10)
    b.salu("s_add_u32", "s12", "s12", "s15")
    b.salu("s_add_u32", "s12", "s12", 1024)
    b.salu("s_lshl_b32", "s14", "s9", 12)
    b.salu("s_add_u32", "s14", "s14", K1_WB)

    def issue(t):
        sl = (t % 5) * 16384
        if t < 8:
            for u in range(2):
                b.salu("s_add_u32", "s15", "s10", u * 8192 + t * 128)
                b.salu("s_add_u32", "m0", "s11", t * 8192 + u * 1024)
                b.dma("v4", S(24, 4), "s15", tag=("L", t))
        for u in range(4):
            k0 = 16 * (u & 1) + 4 * (u >> 1)
            if t < 8:
                b.salu("s_add_u32", "s15", "s12", (64 * t + k0) * 3072)
            else:
                b.salu("s_add_u32", "s15", "s13", (128 * (t - 8) + k0) * 3072)
            b.salu("s_add_u32", "m0", "s14", sl + u * 1024)
            b.dma("v5", S(28, 4), "s15", tag=("L", t))

    D1 = int(os.environ.get("D1", "3"))
    make_srd(b, 44, 20, 0, 256)
    b.salu("s_lshl_b32", "s63", "s7", 5)
    b.valu("v_mov_b32", "v10", "s63")
    b.valu("v_lshlrev_b32", "v8", 4, "v1")
    b.valu("v_mov_b32", "v12", K1_SEEN)
    b.valu("v_mov_b32", "v13", 0)
    b.ds_write("ds_write_b32", "v12", "v13", 0)
    b.stamp()
    nxt = 0
    for t in range(int(os.environ.get("INIT1", "2"))):
        issue(t)
        nxt += 1
    b.stamp()
    b.wait_lg0()
    for s_ in range(8):
        b.wait_vm(("L", s_))
        b.barrier()
        while nxt <= min(s_ + D1, s_ + 4, 11):
            issue(nxt)
            nxt += 1
    while nxt < 12:
        issue(nxt)
        nxt += 1
    b.label("K1_POLL")
    b.bload(1, "v11", "v10", S(44, 4), 0, 4, flags="sc1")
    b.wait_vm0()
    b.rfl("s15", "v11")
    b.scmp("s_cmp_eq_u32", "s15", 0)
    b.branch("s_cbranch_scc1", "K1_POLL")
    b.ds_write("ds_write_b32", "v12", "v11", 0)
    b.wait_lg0()
    b.barrier()
    b.stamp()
    make_srd(b, 24, 50, 0, 512 * 1792 * 2)
    make_srd(b, 28, 22, SY_OFF, 32768)
    for r in range(4):
        b.valu("v_mov_b32", V(12 + r), 0)
    b.salu("s_lshl_b32", "s10", "s2", 7)
    b.salu("s_lshl_b32", "s11", "s9", 5)
    b.salu("s_add_u32", "s10", "s10", "s11")
    b.salu("s_mov_b64", "exec", 3)
    b.bstore(4, V(12, 4), "v8", S(28, 4), "s10", 0)
    b.salu("s_mov_b64", "exec", -1)
    make_srd(b, 36, 22, HF_OFF, (ST_OFF - HF_OFF) + (256 << 10))
    b.valu("v_lshlrev_b32", "v6", 7, "v1")
    b.salu("s_lshl_b32", "s10", "s8", 13)
    b.scmp("s_cmp_ge_u32", "s9", 2)
    b.branch("s_cbranch_scc1", "K1_TP1")
    b.salu("s_lshl_b32", "s11", "s9", 18)
    b.salu("s_add_u32", "s11", "s11", "s10")
    b.bload(1, "v16", "v6", S(32, 4), "s11", 0)
    b.label("K1_TP1")
    b.scmp("s_cmp_lg_u32", "s9", 2)
    b.branch("s_cbranch_scc1", "K1_TP2")
    b.raw("    s_getreg_b32 s12, hwreg(HW_REG_XCC_ID, 0, 3)")
    b.salu("s_lshl_b32", "s11", "s12", 18)
    b.salu("s_add_u32", "s11", "s11", "s10")
    b.bload(1, "v16", "v6", S(36, 4), "s11", 0)
    b.salu("s_lshl_b32", "s12", "s12", 15)
    b.salu("s_lshr_b32", "s11", "s10", 3)
    b.salu("s_add_u32", "s11", "s11", "s12")
    b.salu("s_add_u32", "s11", "s11", ST_OFF - HF_OFF)
    b.salu("s_mov_b64", "exec", "0xff")
    b.bload(1, "v17", "v6", S(36, 4), "s11", 0)
    b.salu("s_mov_b64", "exec", -1)
    b.label("K1_TP2")
    NW1 = int(os.environ.get("NW1", "2"))
    for u in range(NW1):
        b.scmp("s_cmp_lg_u32", "s9", (3 - u) % 4)
        b.branch("s_cbranch_scc1", f"K1_TW{u}")
        b.salu("s_add_u32", "s11", "s10", u * 32 * 8192)
        b.bload(1, V(18 + u), "v6", S(24, 4), "s11", 0)
        b.label(f"K1_TW{u}")
    b.wait_vm0()
    b.stamp()
    b.dump_stamps(22, 0)
    b.label("K1_END")
    b.raw("    s_endpgm")
    return a.text() + b.text() + kernel_desc(name, nv), name, K1_LDS, 256, 512


SY_OFF = 15 << 20
OWN = 16384
SLOT = 17408
KF_LDS = 163840
A_KV = 65536
A_RED = 65536
AUX = 19 * 8192
DEC = KF_LDS - 64
RA = [0, 1, 2, 5, 6, 7, 10, 3]
RW = [11, 12, 15, 8, 9, 13, 14, 4]
GC = 40960


def b_aslot(ks):
    return RA[ks % 8] * 8192


def b_wslot(ks):
    return (16 + ks if ks < 3 else RW[(ks - 3) % 8]) * 8192


def lref3(regs, off):
    return regs[off >> 16], off & 65535


def gen_kf():
    a = Asm()
    name = "k2_fused_kernel"
    kernel_header(a, name)
    a.scmp("s_cmp_ge_u32", "s2", 256)
    a.raw("    s_cbranch_scc1 KF_END")
    a.raw("    s_load_dwordx16 s[16:31], s[0:1], 0")
    a.raw("    s_load_dwordx4 s[32:35], s[0:1], 64")
    a.raw("    s_load_dwordx2 s[36:37], s[0:1], 80")
    a.valu("v_lshrrev_b32", "v4", 6, "v0")
    a.valu("v_and_b32", "v1", 63, "v0")
    a.rfl("s3", "v4")
    a.valu("v_and_b32", "v2", 15, "v1")
    a.valu("v_lshrrev_b32", "v3", 4, "v1")
    a.valu("v_lshlrev_b32", "v4", 4, "v1")
    if os.environ.get("FAKESB"):
        a.salu("s_mov_b32", "s4", int(os.environ["FAKESB"]))
    else:
        a.raw("    s_getreg_b32 s4, hwreg(HW_REG_XCC_ID, 0, 3)")
    if os.environ.get("FAKEK"):
        a.salu("s_lshr_b32", "s5", "s2", 4)
    else:
        a.salu("s_lshr_b32", "s5", "s2", 3)
    a.salu("s_mov_b32", "s10", 1)
    a.salu("s_mov_b32", "s63", "0xffff0000")
    a.scmp("s_cmp_ge_u32", "s3", 8)
    a.branch("s_cbranch_scc1", "KF_LOADER")
    SM = "s63"

    def tile64(x):
        x.salu("s_and_b32", "s6", "s5", 3)
        x.salu("s_lshl_b32", "s9", "s4", 2)
        x.salu("s_add_u32", "s6", "s6", "s9")
        x.salu("s_lshr_b32", "s7", "s5", 2)

    def tile128(x):
        x.salu("s_and_b32", "s6", "s5", 1)
        x.salu("s_lshl_b32", "s9", "s4", 1)
        x.salu("s_add_u32", "s6", "s6", "s9")
        x.salu("s_lshr_b32", "s7", "s5", 1)

    def decode_action(x, pfx):
        x.valu("v_mov_b32", "v5", DEC)
        x.ds_read("ds_read_b32", "v5", "v5", 4)
        x.wait_lg0()
        x.barrier()
        x.rfl("s9", "v5")
        x.salu("s_bfe_u32", "s5", "s9", "0x80008")
        x.salu("s_bfe_u32", "s4", "s9", "0x80010")
        x.salu("s_and_b32", "s9", "s9", 255)
        x.scmp("s_cmp_eq_u32", "s9", 0)
        x.branch("s_cbranch_scc1", pfx + "A_ENTRY")
        x.scmp("s_cmp_eq_u32", "s9", 1)
        x.branch("s_cbranch_scc1", pfx + "B_ENTRY")
        x.scmp("s_cmp_eq_u32", "s9", 2)
        x.branch("s_cbranch_scc1", pfx + "C_ENTRY")

    a.raw("    s_waitcnt lgkmcnt(0)")
    a.label("CA_ENTRY")
    tile64(a)
    a.salu("s_and_b32", "s11", "s3", 3)
    a.salu("s_lshr_b32", "s12", "s3", 2)
    make_srd(a, 44, 36, KVF_OFF, 34816)
    a.scmp("s_cmp_ge_u32", "s3", 2)
    a.branch("s_cbranch_scc1", "CA_NOZ")
    a.salu("s_lshl_b32", "s15", "s3", 10)
    a.salu("s_add_u32", "s9", "s15", 32768)
    a.salu("s_add_u32", "m0", "s15", A_KV + 32768)
    a.dma("v4", S(44, 4), "s9")
    a.label("CA_NOZ")
    a.vmq = []
    a.salu("s_lshl_b32", "s15", "s3", 12)
    for u in range(4):
        a.salu("s_add_u32", "s9", "s15", u * 1024)
        a.salu("s_add_u32", "m0", "s15", A_KV + u * 1024)
        a.dma("v4", S(44, 4), "s9", tag="KV")
    make_srd(a, 40, 36, PQF_OFF, 2 << 20)
    KV = 16
    PQ = 48
    XR = 80
    WF = 84
    ACC = 116
    ND = 116
    KT = 84
    TM = 148
    a.salu("s_lshl_b32", "s15", "s6", 4)
    a.salu("s_lshl_b32", "s9", "s11", 2)
    a.salu("s_add_u32", "s15", "s15", "s9")
    a.salu("s_lshl_b32", "s15", "s15", 2)
    a.salu("s_lshl_b32", "s9", "s12", 1)
    a.salu("s_add_u32", "s15", "s15", "s9")
    a.salu("s_lshl_b32", "s15", "s15", 10)
    for p in range(4):
        a.salu("s_add_u32", "s9", "s15", p * 4096)
        for mm in range(2):
            a.bload(4, V(PQ + (2 * p + mm) * 4, 4), "v4", S(40, 4), "s9", mm * 1024, tag=("Q", p))
    make_srd(a, 44, 16, 0, 2048 * 512 * 2)
    w128_tr_base(a, "v8", "v6", "v7")
    a.salu("s_lshl_b32", "s9", "s11", 14)
    a.valu("v_add_u32", "v8", "s9", "v8")
    for t in range(1, 4):
        a.valu("v_xor_b32", V(8 + t), t << 5, "v8")
    a.salu("s_lshr_b32", "s38", "s3", 1)
    a.salu("s_lshl_b32", "s38", "s38", 4)
    a.salu("s_lshl_b32", "s13", "s6", 6)
    a.salu("s_add_u32", "s38", "s38", "s13")
    a.valu("v_add_u32", "v12", "s38", "v2")
    a.valu("v_lshlrev_b32", "v13", 10, "v12")
    a.valu("v_lshl_add_u32", "v13", "v3", 3, "v13")
    a.salu("s_and_b32", "s13", "s3", 1)
    a.salu("s_lshl_b32", "s14", "s7", 1)
    a.salu("s_add_u32", "s13", "s13", "s14")
    a.salu("s_lshl_b32", "s14", "s13", 6)
    for t in range(2):
        a.bload(2, V(XR + 2 * t, 2), "v13", S(44, 4), "s14", t * 32, tag="X")
    make_srd(a, 48, 36, HF_OFF, 2 << 20)
    make_srd(a, 52, 36, ST_OFF, 256 << 10)
    make_srd(a, 56, 36, SY_OFF, 32768)
    a.salu("s_lshl_b32", "s9", "s11", 13)
    a.salu("s_add_u32", "s9", "s9", A_KV)
    a.valu("v_lshl_add_u32", V(TM), "v1", 2, "s9")
    a.salu("s_lshl_b32", "s9", "s11", 9)
    a.salu("s_add_u32", "s9", "s9", A_KV + 32768)
    a.valu("v_lshl_add_u32", V(TM + 1), "v3", 4, "s9")
    a.stamp()
    a.wait_vm("KV")
    a.barrier()
    a.stamp()
    for hd in range(8):
        a.ds_read2st64(V(KT + 8 * hd, 2), V(TM), 4 * hd, 4 * hd + 1, tag=("KVR", hd >> 2))
        a.ds_read2st64(V(KT + 8 * hd + 2, 2), V(TM), 4 * hd + 2, 4 * hd + 3, tag=("KVR", hd >> 2))
        a.ds_read("ds_read_b128", V(KT + 8 * hd + 4, 4), V(TM + 1), hd * 64, tag=("KVR", hd >> 2))
    for hd in range(8):
        if hd % 4 == 0:
            a.wait_lg(("KVR", hd >> 2))
        for j in range(4):
            a.valu("v_cvt_pk_bf16_f32", V(KV + 4 * hd + j), V(KT + 8 * hd + 2 * j), V(KT + 8 * hd + 2 * j + 1))
    a.salu("s_mov_b32", "s39", f32bits(1e-6))
    units = [(p, mm) for p in range(4) for mm in range(2)]

    def o_mfma(u):
        p, mm = units[u]
        if mm == 0:
            a.wait_vm(("Q", p))
        q = PQ + (2 * p + mm) * 4
        nd = ND + 16 * (u & 1)
        for hd in range(2):
            kv = KV + 4 * (2 * p + hd)
            a.mfma16(V(nd + 8 * hd + 4, 4), V(kv + 2, 2), V(q + 2 * hd, 2), 0)
            a.mfma16(V(nd + 8 * hd, 4), V(kv, 2), V(q + 2 * hd, 2), 0)

    def o_valu(u):
        p, mm = units[u]
        nd = ND + 16 * (u & 1)
        for hd in range(2):
            den = V(nd + 8 * hd + 4)
            a.valu("v_add_f32", den, "s39", den)
            a.trans("v_rcp_f32", den, den)
        for hd in range(2):
            den = V(nd + 8 * hd + 4)
            for r in range(4):
                a.valu("v_mul_f32", V(nd + 8 * hd + r), V(nd + 8 * hd + r), den)
            o = PQ + (2 * p + mm) * 4 + 2 * hd
            a.valu("v_cvt_pk_bf16_f32", V(o), V(nd + 8 * hd), V(nd + 8 * hd + 1))
            a.valu("v_cvt_pk_bf16_f32", V(o + 1), V(nd + 8 * hd + 2), V(nd + 8 * hd + 3))

    o_mfma(0)
    for u in range(8):
        if u + 1 < 8:
            o_mfma(u + 1)
        o_valu(u)
    a.stamp()
    a.barrier()

    def wreads(p):
        for t in range(4):
            for hh in range(2):
                a.ds_read("ds_read_b64_tr_b16", V(WF + ((p & 1) * 4 + t) * 4 + 2 * hh, 2), V(8 + t),
                          p * 4096 + hh * 2048, tag=("R", p))
    wreads(0)
    for p in range(4):
        if p < 3:
            wreads(p + 1)
        a.wait_lg(("R", p))
        for t in range(4):
            for mm in range(2):
                d = V(ACC + (mm * 4 + t) * 4, 4)
                a.mfma(d, V(WF + ((p & 1) * 4 + t) * 4, 4), V(PQ + (2 * p + mm) * 4, 4), d if p else 0)
    a.stamp()
    a.salu("s_lshl_b32", "s9", "s11", 14)
    a.salu("s_lshl_b32", "s15", "s12", 13)
    a.salu("s_add_u32", "s9", "s9", "s15")
    a.salu("s_add_u32", "s9", "s9", A_RED)
    a.valu("v_add_u32", V(TM), "s9", "v4")
    for mm in range(2):
        for t in range(4):
            a.ds_write("ds_write_b128", V(TM), V(ACC + (mm * 4 + t) * 4, 4), (mm * 4 + t) * 1024, tag="W")
    a.salu("s_lshl_b32", "s9", "s3", 11)
    a.salu("s_add_u32", "s9", "s9", A_RED)
    a.valu("v_add_u32", V(TM), "s9", "v4")
    a.valu("v_mov_b32", V(TM + 4), DEC)
    a.salu("s_lshl_b32", "s15", "s4", 11)
    a.salu("s_and_b32", "s9", "s5", 3)
    a.salu("s_lshl_b32", "s9", "s9", 8)
    a.salu("s_add_u32", "s15", "s15", "s9")
    a.salu("s_lshl_b32", "s9", "s7", 5)
    a.salu("s_add_u32", "s15", "s15", "s9")
    a.salu("s_lshl_b32", "s9", "s3", 2)
    a.salu("s_add_u32", "s15", "s15", "s9")
    a.wait_lg0()
    a.barrier()
    RB = 16
    a.ds_read("ds_read_b32", V(TM + 4), V(TM + 4), 0, tag=("X", 0))
    for hg in range(4):
        for t in range(2):
            a.ds_read("ds_read_b128", V(RB + hg * 8 + 4 * t, 4), V(TM), hg * 16384 + t * 1024, tag=("X", hg >> 1))
    a.wait_lg(("X", 0))
    a.rfl("s11", V(TM + 4))
    for j in range(8):
        a.valu("v_add_f32", V(RB + j), V(RB + j), V(RB + 8 + j))
    a.wait_lg(("X", 1))
    for j in range(8):
        a.valu("v_add_f32", V(RB + 16 + j), V(RB + 16 + j), V(RB + 24 + j))
    for j in range(8):
        a.valu("v_add_f32", V(RB + j), V(RB + j), V(RB + 16 + j))
    a.wait_vm("X")
    a.scmp("s_cmp_eq_u32", "s11", 0)
    a.branch("s_cbranch_scc1", "CA_SKIP")
    XS = RB + 8
    for j in range(4):
        bf16_round_pair(a, V(RB + 2 * j), V(RB + 2 * j + 1), V(TM + 1), SM)
    for j in range(4):
        unpack2(a, V(XS + 2 * j), V(XS + 2 * j + 1), V(XR + j), SM)
    for j in range(8):
        a.valu("v_add_f32", V(RB + j), V(RB + j), V(XS + j))
    HO = RB + 16
    for j in range(4):
        a.valu("v_cvt_pk_bf16_f32", V(HO + j), V(RB + 2 * j), V(RB + 2 * j + 1))
    a.salu("s_add_u32", "s9", "s38", "s13")
    a.salu("s_lshl_b32", "s9", "s9", 10)
    a.bstore(4, V(HO, 4), "v4", S(48, 4), "s9", 0)
    for j in range(4):
        unpack2(a, V(RB + 2 * j), V(RB + 2 * j + 1), V(HO + j), SM)
    S1, S2 = RB + 24, RB + 25
    a.valu("v_add_f32", V(S1), V(RB), V(RB + 1))
    a.valu("v_mul_f32", V(S2), V(RB), V(RB))
    a.valu("v_fmac_f32", V(S2), V(RB + 1), V(RB + 1))
    for j in range(2, 8):
        a.valu("v_add_f32", V(S1), V(S1), V(RB + j))
        a.valu("v_fmac_f32", V(S2), V(RB + j), V(RB + j))
    gsum(a, V(S1), V(TM + 1))
    gsum(a, V(S2), V(TM + 2))
    a.valu("v_lshlrev_b32", V(TM + 3), 7, "v12")
    a.valu("v_mov_b32", V(TM + 5), 1)
    a.valu("v_mov_b32", V(TM + 6), 0)
    a.salu("s_lshl_b32", "s9", "s13", 3)
    a.salu("s_mov_b64", "exec", "0xffff")
    a.bstore(2, V(S1, 2), V(TM + 3), S(52, 4), "s9", 0)
    a.salu("s_mov_b64", "exec", 1)
    a.wait_vm0()
    a.bstore(1, V(TM + 5), V(TM + 6), S(56, 4), "s15", 0)
    a.salu("s_mov_b64", "exec", -1)
    a.label("CA_SKIP")
    a.vmq = []
    a.stamp()
    a.scmp("s_cmp_eq_u32", "s11", 1)
    a.branch("s_cbranch_scc1", "CA_FAST")
    a.salu("s_mov_b32", "s10", 0)
    a.branch("s_branch", "C_DISP")
    a.label("CA_FAST")
    a.scmp("s_cmp_ge_u32", "s5", 28)
    a.branch("s_cbranch_scc1", "C_PF28")

    a.label("CB_ENTRY")
    tile128(a)
    a.salu("s_and_b32", "s11", "s3", 1)
    a.salu("s_lshr_b32", "s12", "s3", 1)
    make_srd(a, 44, 26, 0, 1792 * 2)
    FB = 24
    ACC = 72
    CS = 104
    STT = 112
    B1R = 120
    T = 124
    a.valu("v_lshlrev_b32", V(T), 3, "v3")
    a.salu("s_lshl_b32", "s13", "s7", 8)
    a.salu("s_lshl_b32", "s9", "s12", 6)
    a.salu("s_add_u32", "s13", "s13", "s9")
    for t in range(2):
        a.bload(2, V(B1R + 2 * t, 2), V(T), S(44, 4), "s13", t * 32, tag="B1")
    a.salu("s_lshl_b32", "s9", "s11", 12)
    a.valu("v_add_u32", "v5", "s9", "v4")
    a.valu("v_add_u32", "v6", HI, "v5")
    a.valu("v_add_u32", "v7", 2 * HI, "v5")
    ARD = ("v5", "v6", "v7")
    a.valu("v_lshrrev_b32", "v8", 2, "v2")
    a.valu("v_lshl_add_u32", "v8", "v3", 2, "v8")
    a.valu("v_and_b32", "v9", 7, "v8")
    a.valu("v_lshlrev_b32", "v8", 8, "v8")
    a.valu("v_lshl_add_u32", "v8", "v9", 5, "v8")
    a.valu("v_and_b32", "v9", 3, "v1")
    a.valu("v_lshl_add_u32", "v8", "v9", 3, "v8")
    a.salu("s_lshl_b32", "s9", "s12", 6)
    a.valu("v_xor_b32", "v8", "s9", "v8")
    a.valu("v_add_u32", "v9", HI, "v8")
    a.valu("v_add_u32", "v10", 2 * HI, "v8")
    a.valu("v_xor_b32", "v11", 32, "v8")
    a.valu("v_add_u32", "v12", HI, "v11")
    a.valu("v_add_u32", "v13", 2 * HI, "v11")
    WRD = [("v8", "v9", "v10"), ("v11", "v12", "v13")]
    ONES = 16
    for i in range(4):
        a.valu("v_mov_b32", V(ONES + i), "0x3f803f80")
    a.salu("s_lshl_b32", "s38", "s6", 7)
    a.salu("s_lshl_b32", "s9", "s11", 6)
    a.salu("s_add_u32", "s38", "s38", "s9")
    make_srd(a, 40, 36, H1F_OFF, 7 << 20)
    a.salu("s_lshr_b32", "s13", "s38", 4)
    a.salu("s_mul_i32", "s13", "s13", 56)
    a.salu("s_lshl_b32", "s9", "s7", 2)
    a.salu("s_add_u32", "s13", "s13", "s9")
    a.salu("s_add_u32", "s13", "s13", "s12")
    a.salu("s_lshl_b32", "s13", "s13", 10)
    a.valu("v_lshrrev_b32", V(T + 2), 3, "v1")
    a.valu("v_mul_u32_u24", V(T + 2), 56 * 1024, V(T + 2))
    a.valu("v_and_b32", V(T + 3), 7, "v1")
    a.valu("v_lshl_add_u32", V(T + 2), V(T + 3), 7, V(T + 2))
    if os.environ.get("PTH1"):
        a.salu("s_mov_b32", "exec_hi", 0)
        a.bload(1, V(T + 3), V(T + 2), S(40, 4), "s13", 0)
        a.salu("s_mov_b64", "exec", -1)
    a.salu("s_lshl_b32", "s9", "s11", 9)
    a.salu("s_add_u32", "s9", "s9", AUX)
    a.valu("v_lshl_add_u32", V(T + 1), "v2", 3, "s9")
    make_srd(a, 52, 28, 0, 1792 * 512 * 2)
    a.salu("s_mul_i32", "s14", "s3", 28)
    a.salu("s_add_u32", "s14", "s14", "s5")
    a.salu("s_lshl_b32", "s14", "s14", 13)
    a.valu("v_lshlrev_b32", V(T + 4), 7, "v1")

    def fr(buf, idx):
        return FB + (buf * 6 + idx) * 4

    def reads(ks):
        buf = ks & 1
        L = []
        for t in range(2):
            for hh in range(2):
                r, o = lref3(WRD[t], b_wslot(ks) + hh * 4096)
                L.append(lambda t=t, hh=hh, r=r, o=o: a.ds_read(
                    "ds_read_b64_tr_b16", V(fr(buf, 4 + t) + 2 * hh, 2), r, o, tag=("R", ks)))
        for m in range(4):
            r, o = lref3(ARD, b_aslot(ks) + m * 1024)
            L.append(lambda m=m, r=r, o=o: a.ds_read("ds_read_b128", V(fr(buf, m), 4), r, o, tag=("R", ks)))
        return L

    a.stamp()
    a.barrier()
    a.stamp()
    for f in reads(0):
        f()
    for ks in range(16):
        buf = ks & 1
        a.wait_lg(("R", ks))
        if ks + 1 < 16:
            a.barrier()
        M = []
        for t in range(2):
            W = V(fr(buf, 4 + t), 4)
            for m in range(4):
                d = V(ACC + (m * 2 + t) * 4, 4)
                M.append(lambda d=d, W=W, m=m: a.mfma(d, W, V(fr(buf, m), 4), d if ks else 0))
            M.append(lambda t=t, W=W: a.mfma(V(CS + 4 * t, 4), W, V(ONES, 4), V(CS + 4 * t, 4) if ks else 0))
        interleave(M, reads(ks + 1) if ks + 1 < 16 else [])
        PFW = int(os.environ.get("PFW", "1"))
        PF0 = int(os.environ.get("PF0", "99"))
        if ks >= PF0 and (ks - PF0) % PFW == 0 and (ks - PF0) // PFW < 8:
            a.scmp("s_cmp_lg_u32", "s3", (ks - PF0) // PFW)
            a.raw(f"    s_cbranch_scc1 CB_PF{ks}")
            a.bload(1, V(T + 5), V(T + 4), S(52, 4), "s14", 0)
            a.raw(f"CB_PF{ks}:")
        if ks == 10:
            for m in range(4):
                a.ds_read("ds_read_b64", V(STT + 2 * m, 2), V(T + 1), m * 128, tag="SR")
    a.stamp()
    C0 = 2.0 * math.sqrt(2.0 / math.pi) * LOG2E
    C1 = C0 * 0.044715
    a.salu("s_mov_b32", "s39", f32bits(-C1))
    BB = T
    NC0 = T + 8
    E = T + 12
    O = T + 16
    a.valu("v_mov_b32", V(NC0), f32bits(-C0))
    a.valu("v_mov_b32", V(NC0 + 1), f32bits(-C1))
    a.valu("v_mov_b32", V(NC0 + 2), 1.0)
    a.valu("v_mov_b32", V(NC0 + 3), 1.0)
    a.wait_vm0()
    for t in range(2):
        unpack2(a, V(BB + 4 * t), V(BB + 4 * t + 1), V(B1R + 2 * t), SM)
        unpack2(a, V(BB + 4 * t + 2), V(BB + 4 * t + 3), V(B1R + 2 * t + 1), SM)
    a.salu("s_lshl_b32", "s15", "s4", 11)
    a.salu("s_and_b32", "s9", "s5", 1)
    a.salu("s_lshl_b32", "s9", "s9", 9)
    a.salu("s_add_u32", "s15", "s15", "s9")
    a.salu("s_lshl_b32", "s9", "s7", 5)
    a.salu("s_add_u32", "s15", "s15", "s9")
    a.salu("s_lshl_b32", "s9", "s3", 2)
    a.salu("s_add_u32", "s15", "s15", "s9")
    a.valu("v_mov_b32", "v14", 1)
    a.valu("v_mov_b32", "v15", 0)
    for m in range(4):
        M1, SC = V(STT + 2 * m), V(STT + 2 * m + 1)
        o = O + 4 * (m & 1)
        for t in range(2):
            x = ACC + (m * 2 + t) * 4
            if os.environ.get("NOPKB"):
                for r in range(4):
                    a.valu("v_fma_f32", V(x + r), "-" + M1, V(CS + 4 * t + r), V(x + r))
                for r in range(4):
                    a.valu("v_fma_f32", V(x + r), V(x + r), SC, V(BB + 4 * t + r))
                for r in range(4):
                    a.valu("v_mul_f32", V(E + r), V(x + r), V(x + r))
                for r in range(4):
                    a.valu("v_fma_f32", V(E + r), V(E + r), "s39", V(NC0))
                for r in range(4):
                    a.valu("v_mul_f32", V(E + r), V(E + r), V(x + r))
                for r in range(4):
                    a.trans("v_exp_f32", V(E + r), V(E + r))
                for r in range(4):
                    a.valu("v_add_f32", V(E + r), 1.0, V(E + r))
                for r in range(4):
                    a.trans("v_rcp_f32", V(E + r), V(E + r))
                for r in range(4):
                    a.valu("v_mul_f32", V(x + r), V(x + r), V(E + r))
            else:
                PS = V(STT + 2 * m, 2)
                for h in range(2):
                    a.pk("v_pk_fma_f32", V(x + 2 * h, 2), PS, V(CS + 4 * t + 2 * h, 2), V(x + 2 * h, 2),
                         sel=[0, 0, 0], selhi=[0, 1, 1], neglo=[1, 0, 0], neghi=[1, 0, 0])
                for h in range(2):
                    a.pk("v_pk_fma_f32", V(x + 2 * h, 2), V(x + 2 * h, 2), PS, V(BB + 4 * t + 2 * h, 2),
                         sel=[0, 1, 0], selhi=[1, 1, 1])
                for h in range(2):
                    a.pk("v_pk_mul_f32", V(E + 2 * h, 2), V(x + 2 * h, 2), V(x + 2 * h, 2))
                for h in range(2):
                    a.pk("v_pk_fma_f32", V(E + 2 * h, 2), V(E + 2 * h, 2), V(NC0, 2), V(NC0, 2),
                         sel=[0, 1, 0], selhi=[1, 1, 0])
                for h in range(2):
                    a.pk("v_pk_mul_f32", V(E + 2 * h, 2), V(E + 2 * h, 2), V(x + 2 * h, 2))
                for r in range(4):
                    a.trans("v_exp_f32", V(E + r), V(E + r))
                for h in range(2):
                    a.pk("v_pk_add_f32", V(E + 2 * h, 2), V(E + 2 * h, 2), V(NC0 + 2, 2))
                for r in range(4):
                    a.trans("v_rcp_f32", V(E + r), V(E + r))
                for h in range(2):
                    a.pk("v_pk_mul_f32", V(x + 2 * h, 2), V(x + 2 * h, 2), V(E + 2 * h, 2))
            a.valu("v_cvt_pk_bf16_f32", V(o + 2 * t), V(x), V(x + 1))
            a.valu("v_cvt_pk_bf16_f32", V(o + 2 * t + 1), V(x + 2), V(x + 3))
        a.bstore(4, V(o, 4), "v4", S(40, 4), "s13", 0, flags="" if os.environ.get("PTH1") else "sc1")
        if m < 3:
            a.salu("s_add_u32", "s13", "s13", 56 * 1024)
    a.salu("s_mov_b64", "exec", 1)
    a.wait_vm0()
    a.bstore(1, "v14", "v15", S(56, 4), "s15", 1024)
    a.salu("s_mov_b64", "exec", -1)
    a.stamp()
    a.scmp("s_cmp_eq_u32", "s10", 0)
    a.branch("s_cbranch_scc1", "C_DISP")

    a.label("CC_ENTRY")
    a.vmq = []
    tile64(a)
    a.salu("s_and_b32", "s9", "s3", 3)
    a.salu("s_mul_i32", "s11", "s9", GC)
    a.salu("s_lshr_b32", "s12", "s3", 2)
    a.salu("s_lshr_b32", "s38", "s3", 1)
    a.salu("s_lshl_b32", "s38", "s38", 4)
    a.salu("s_lshl_b32", "s13", "s6", 6)
    a.salu("s_add_u32", "s38", "s38", "s13")
    a.valu("v_add_u32", "v12", "s38", "v2")
    a.valu("v_lshlrev_b32", "v13", 10, "v12")
    a.valu("v_lshl_add_u32", "v13", "v3", 3, "v13")
    a.valu("v_lshlrev_b32", "v14", 3, "v3")
    a.salu("s_and_b32", "s13", "s3", 1)
    a.salu("s_lshl_b32", "s14", "s7", 1)
    a.salu("s_add_u32", "s13", "s13", "s14")
    a.salu("s_lshl_b32", "s14", "s13", 6)
    make_srd(a, 44, 30, 0, 512 * 2)
    make_srd(a, 40, 32, 0, 2048 * 512 * 2)
    HR = 16
    B2R = 20
    a.salu("s_add_u32", "s15", "s38", "s13")
    a.salu("s_lshl_b32", "s15", "s15", 10)
    for t in range(2):
        a.bload(2, V(B2R + 2 * t, 2), "v14", S(44, 4), "s14", t * 32, tag="E")
    a.valu("v_add_u32", "v5", "s11", "v4")
    w128_tr_base(a, "v8", "v6", "v7")
    a.valu("v_add_u32", "v8", "s11", "v8")
    a.salu("s_lshl_b32", "s9", "s12", 6)
    a.valu("v_xor_b32", "v8", "s9", "v8")
    a.valu("v_xor_b32", "v9", 32, "v8")
    FR = 24
    ACC = 72
    TM = 104

    def creads(n):
        bb = n & 1
        L = []
        for t in range(2):
            for hh in range(2):
                L.append(lambda t=t, hh=hh: a.ds_read(
                    "ds_read_b64_tr_b16", V(FR + (bb * 6 + 4 + t) * 4 + 2 * hh, 2), V(8 + t),
                    (n % 6) * 4096 + hh * 2048, tag=("R", n)))
        for m in range(4):
            L.append(lambda m=m: a.ds_read("ds_read_b128", V(FR + (bb * 6 + m) * 4, 4), "v5",
                                           (6 + n % 4) * 4096 + m * 1024, tag=("R", n)))
        return L

    a.stamp()
    a.barrier()
    a.stamp()
    a.bload(4, V(HR, 4), "v4", S(48, 4), "s15", 0, tag="E", flags="sc1")
    for f in creads(0):
        f()
    for n in range(14):
        bb = n & 1
        a.wait_lg(("R", n))
        if n + 1 < 14:
            a.barrier()
        M = []
        for t in range(2):
            for m in range(4):
                d = V(ACC + (m * 2 + t) * 4, 4)
                M.append(lambda d=d, t=t, m=m: a.mfma(d, V(FR + (bb * 6 + 4 + t) * 4, 4), V(FR + (bb * 6 + m) * 4, 4), d if n else 0))
        interleave(M, creads(n + 1) if n + 1 < 14 else [])
    a.stamp()
    a.salu("s_lshl_b32", "s9", "s12", 11)
    a.valu("v_add_u32", "v5", "s9", "v5")
    for m in range(4):
        for t in range(2):
            a.ds_write("ds_write_b128", "v5", V(ACC + (m * 2 + t) * 4, 4), 8192 + (m * 4 + t) * 1024, tag="W")
    RB = 24
    a.salu("s_lshl_b32", "s9", "s3", 11)
    a.salu("s_add_u32", "s9", "s9", 8192)
    a.valu("v_add_u32", V(TM), "s9", "v4")
    a.valu("v_add_u32", V(TM + 1), 2 * GC, V(TM))
    a.valu("v_mov_b32", V(TM + 4), DEC)
    a.wait_lg0()
    a.barrier()
    a.ds_read("ds_read_b32", V(TM + 4), V(TM + 4), 8, tag=("X", 0))
    for w in range(4):
        for t in range(2):
            a.ds_read("ds_read_b128", V(RB + w * 8 + 4 * t, 4), V(TM + (w >> 1)), (w & 1) * GC + t * 1024, tag=("X", w >> 1))
    a.wait_vm0()
    BS = RB + 32
    XS = RB + 40
    for j in range(4):
        unpack2(a, V(BS + 2 * j), V(BS + 2 * j + 1), V(B2R + j), SM)
        unpack2(a, V(XS + 2 * j), V(XS + 2 * j + 1), V(HR + j), SM)
    a.wait_lg(("X", 0))
    a.rfl("s11", V(TM + 4))
    for j in range(8):
        a.valu("v_add_f32", V(RB + j), V(RB + j), V(RB + 8 + j))
    a.wait_lg(("X", 1))
    for j in range(8):
        a.valu("v_add_f32", V(RB + 16 + j), V(RB + 16 + j), V(RB + 24 + j))
    for j in range(8):
        a.valu("v_add_f32", V(RB + j), V(RB + j), V(RB + 16 + j))
    for j in range(4):
        bf16_round_pair(a, V(RB + 2 * j), V(RB + 2 * j + 1), V(TM + 2), SM)
    for j in range(8):
        a.valu("v_add_f32", V(RB + j), V(RB + j), V(BS + j))
    for j in range(4):
        bf16_round_pair(a, V(RB + 2 * j), V(RB + 2 * j + 1), V(TM + 2), SM)
    for j in range(8):
        a.valu("v_add_f32", V(RB + j), V(RB + j), V(XS + j))
    for j in range(4):
        a.valu("v_cvt_pk_bf16_f32", V(HR + j), V(RB + 2 * j), V(RB + 2 * j + 1))
    for t in range(2):
        a.bstore(2, V(HR + 2 * t, 2), "v13", S(40, 4), "s14", t * 32)
    a.stamp()
    a.scmp("s_cmp_eq_u32", "s11", 0)
    a.branch("s_cbranch_scc1", "C_DISP0")
    a.dump_stamps(36, 1)
    a.raw("    s_endpgm")
    a.label("C_DISP0")
    a.salu("s_mov_b32", "s10", 0)
    a.label("C_DISP")
    a.wait_vm0()
    a.barrier()
    decode_action(a, "C")
    a.raw("    s_endpgm")

    a.label("C_PF28")
    a.barrier()
    make_srd(a, 44, 28, 0, 1792 * 512 * 2)
    a.salu("s_sub_u32", "s9", "s5", 28)
    a.salu("s_lshl_b32", "s9", "s9", 3)
    a.salu("s_add_u32", "s9", "s9", "s3")
    a.salu("s_lshl_b32", "s9", "s9", 13)
    a.valu("v_lshlrev_b32", "v5", 7, "v1")
    for n in range(int(os.environ.get("NPF2", "7"))):
        a.salu("s_add_u32", "s11", "s9", n * 32 * 8192)
        a.bload(1, V(24 + n), "v5", S(44, 4), "s11", 0)
    a.wait_vm0()
    a.nstamp = min(a.nstamp, 6)
    for _ in range(4):
        a.stamp()
    a.branch("s_branch", "CC_ENTRY")

    b = sub_asm(a)
    b.label("KF_LOADER")
    b.salu("s_sub_u32", "s62", "s3", 8)
    b.raw("    s_getreg_b32 s8, hwreg(HW_REG_XCC_ID, 0, 4)")
    b.salu("s_add_u32", "s8", "s8", 1)
    w128_dma_voff(b, "v5", "v6", "v7", 1024, False)
    b.valu("v_mul_u32_u24", "v8", 3584, "v3")
    b.valu("v_and_b32", "v6", 1, "v1")
    b.valu("v_lshl_add_u32", "v8", "v6", 4, "v8")
    b.valu("v_bfe_u32", "v6", "v1", 1, 3)
    b.valu("v_xor_b32", "v6", "v6", "v3")
    b.valu("v_xor_b32", "v7", 4, "v6")
    b.valu("v_lshl_add_u32", "v6", "v6", 5, "v8")
    b.valu("v_lshl_add_u32", "v7", "v7", 5, "v8")
    b.valu("v_lshlrev_b32", "v9", 3, "v1")
    b.valu("v_mov_b32", "v10", DEC)
    b.valu("v_mov_b32", "v11", 0)
    b.salu("s_mov_b32", "s64", 0)
    b.salu("s_mov_b32", "s65", 0)
    b.salu("s_mov_b32", "s66", 0)
    b.salu("s_mov_b32", "s67", 0)
    b.raw("    s_waitcnt lgkmcnt(0)")
    make_srd(b, 56, 36, SY_OFF, 32768)
    b.label("LA_ENTRY")
    tile64(b)
    make_srd(b, 44, 20, 0, 512 * 512 * 2)
    b.salu("s_lshl_b32", "s11", "s62", 14)
    b.salu("s_lshl_b32", "s12", "s62", 17)
    b.salu("s_lshl_b32", "s9", "s7", 7)
    b.salu("s_add_u32", "s12", "s12", "s9")

    def wo_dma(lo=0, hi=16):
        for u in range(lo, hi):
            b.salu("s_add_u32", "s15", "s12", u * 8192)
            b.salu("s_add_u32", "m0", "s11", u * 1024)
            b.dma("v5", S(44, 4), "s15", tag="B")

    make_srd(b, 40, 36, KVF_OFF, 34816)
    b.scmp("s_cmp_eq_u32", "s62", 0)
    b.branch("s_cbranch_scc1", "LA_HELPER")
    b.stamp()
    WO1 = int(os.environ.get("WO1", "4"))
    wo_dma(0, WO1)
    b.stamp()
    b.barrier()
    wo_dma(WO1, 16)
    b.wait_vm0()
    b.barrier()
    b.branch("s_branch", "LA_JOIN")

    b.label("LA_HELPER")
    b.nstamp = 1 if Asm.stamps else 0
    b.salu("s_lshl_b32", "s13", "s4", 7)
    b.salu("s_add_u32", "s13", "s13", OWN)
    b.salu("s_lshl_b32", "s14", "s8", 7)
    b.salu("s_lshl_b32", "s9", "s4", 2)
    b.salu("s_add_u32", "s14", "s14", "s9")
    b.salu("s_add_u32", "s14", "s14", SLOT - 128)
    b.salu("s_lshl_b32", "s9", 1, "s5")
    b.valu("v_mov_b32", "v20", "s8")
    b.valu("v_mov_b32", "v21", 0)
    b.valu("v_mov_b32", "v22", "s9")
    b.stamp()
    b.salu("s_mov_b64", "exec", 1)
    b.ins("buffer_atomic_cmpswap v[20:21], v11, s[56:59], s13 offen sc0",
          Ins("vmem", ["v20"], ["v20", "v21", "v11", "s13", "s56", "s57", "s58", "s59"]))
    b.ins("buffer_atomic_or v22, v11, s[56:59], s14 offen sc0",
          Ins("vmem", ["v22"], ["v22", "v11", "s14", "s56", "s57", "s58", "s59"]))
    b.salu("s_mov_b64", "exec", "0xffff")
    b.valu("v_lshlrev_b32", "v24", 7, "v1")
    b.salu("s_lshl_b32", "s9", "s4", 11)
    b.bload(1, "v25", "v24", S(56, 4), "s9", 0)
    b.salu("s_mov_b64", "exec", -1)
    wo_dma(0, 4)
    b.stamp()
    b.barrier()
    wo_dma(4, 16)
    b.bload(1, "v23", "v11", S(56, 4), "s14", 0, flags="sc1")
    b.wait_vm0()
    b.barrier()
    b.rfl("s11", "v20")
    b.rfl("s12", "v22")
    b.rfl("s13", "v23")
    b.salu("s_mov_b32", "s15", 0)
    b.salu("s_mov_b32", "s66", 3)
    b.scmp("s_cmp_eq_u32", "s11", 0)
    b.branch("s_cbranch_scc1", "LA_H1")
    b.scmp("s_cmp_lg_u32", "s11", "s8")
    b.branch("s_cbranch_scc1", "LA_H9")
    b.label("LA_H1")
    b.salu("s_mov_b32", "s66", 0)
    b.scmp("s_bitcmp1_b32", "s12", "s5")
    b.branch("s_cbranch_scc1", "LA_H9")
    b.salu("s_bitset1_b32", "s64", "s5")
    b.salu("s_mov_b32", "s15", 2)
    b.scmp("s_cmp_eq_u32", "s10", 0)
    b.branch("s_cbranch_scc1", "LA_H9")
    b.salu("s_mov_b32", "s9", int(os.environ.get("NMASK", "3")))
    b.label("LA_H2")
    b.scmp("s_cmp_eq_u32", "s13", -1)
    b.branch("s_cbranch_scc1", "LA_H3")
    b.scmp("s_cmp_eq_u32", "s9", 0)
    b.branch("s_cbranch_scc1", "LA_H9")
    b.salu("s_sub_u32", "s9", "s9", 1)
    b.bload(1, "v23", "v11", S(56, 4), "s14", 0, flags="sc1")
    b.wait_vm0()
    b.rfl("s13", "v23")
    b.branch("s_branch", "LA_H2")
    b.label("LA_H3")
    b.salu("s_mov_b32", "s15", 1)
    b.label("LA_H9")
    b.valu("v_mov_b32", "v20", "s15")
    b.ds_write("ds_write_b32", "v10", "v20", 0)
    b.label("LA_JOIN")
    b.vmq = []
    b.stamp()

    def b_setup():
        tile128(b)
        make_srd(b, 40, 36, HF_OFF, 2 << 20)
        make_srd(b, 44, 24, 0, 512 * 1792 * 2)
        b.salu("s_lshl_b32", "s13", "s6", 3)
        b.salu("s_lshl_b32", "s11", "s62", 1)
        b.salu("s_add_u32", "s13", "s13", "s11")
        b.salu("s_lshl_b32", "s13", "s13", 14)
        b.salu("s_lshl_b32", "s11", "s62", 11)
        b.salu("s_mul_i32", "s12", "s62", 8 * 3584)
        b.salu("s_lshl_b32", "s9", "s7", 8)
        b.salu("s_add_u32", "s12", "s12", "s9")

    def b_w(ks):
        for u in range(2):
            b.salu("s_add_u32", "s15", "s12", (32 * ks + 4 * u) * 3584)
            b.salu("s_add_u32", "m0", "s11", b_wslot(ks) + u * 1024)
            b.dma("v6" if u % 2 == 0 else "v7", S(44, 4), "s15", tag=("L", ks))

    def b_a(ks):
        for mm in range(2):
            b.salu("s_add_u32", "s15", "s13", mm * 16384 + ks * 1024)
            b.salu("s_add_u32", "m0", "s11", b_aslot(ks) + mm * 1024)
            b.dma("v4", S(40, 4), "s15", tag=("L", ks), flags=os.environ.get("ACTF", "sc1"))

    b.scmp("s_cmp_eq_u32", "s10", 0)
    b.branch("s_cbranch_scc1", "LA_NOPRE")
    b.scmp("s_cmp_ge_u32", "s5", 28)
    b.branch("s_cbranch_scc1", "LA_NOPB")
    b_setup()
    for ks in range(3):
        b_w(ks)
    b.label("LA_NOPB")
    NW1 = int(os.environ.get("NW1", "2"))
    NA1 = int(os.environ.get("NA1", "3"))
    if NA1:
        make_srd(b, 48, 24, 0, 512 * 1792 * 2)
        b.valu("v_lshlrev_b32", "v14", 7, "v1")
        b.salu("s_add_u32", "s9", "s62", NW1 - 1)
        b.salu("s_lshl_b32", "s9", "s9", 5)
        b.salu("s_add_u32", "s9", "s9", "s5")
        b.salu("s_lshl_b32", "s9", "s9", 13)
        b.scmp("s_cmp_eq_u32", "s62", 0)
        b.branch("s_cbranch_scc1", "LA_NOPRE")
        b.scmp("s_cmp_gt_u32", "s62", NA1)
        b.branch("s_cbranch_scc1", "LA_NOPRE")
        b.bload(1, "v24", "v14", S(48, 4), "s9", 0)
    b.label("LA_NOPRE")
    b.vmq = []
    b.wait_lg0()
    b.barrier()
    b.ds_read("ds_read_b32", "v20", "v10", 0)
    b.wait_lg0()
    b.rfl("s9", "v20")
    b.scmp("s_cmp_eq_u32", "s9", 1)
    b.branch("s_cbranch_scc1", "LA_FAST")
    b.salu("s_mov_b32", "s10", 0)
    b.branch("s_branch", "L_DISP")
    b.label("LA_FAST")
    b.scmp("s_cmp_lt_u32", "s5", 28)
    b.branch("s_cbranch_scc1", "LB_MAIN")
    b.barrier()
    b.branch("s_branch", "LC_ENTRY")

    def poll(lbl, soff, nl):
        b.salu("s_mov_b32", "s60", -1)
        b.salu("s_mov_b32", "s61", (1 << (nl - 32)) - 1 if nl < 64 else -1)
        b.salu("s_mov_b64", "exec", S(60, 2))
        b.salu("s_mov_b32", "s9", 1 << 22)
        b.label(lbl)
        b.bload(2, V(20, 2), "v9", S(56, 4), soff, 0, flags="sc1")
        b.salu("s_sub_u32", "s9", "s9", 1)
        b.scmp("s_cmp_eq_u32", "s9", 0)
        b.branch("s_cbranch_scc1", lbl + "X")
        b.wait_vm0()
        b.valu("v_and_b32", "v20", "v20", "v21")
        b.cmp("v_cmp_ne_u32", "vcc", 0, "v20")
        b.scmp("s_cmp_eq_u64", "vcc", S(60, 2))
        b.branch("s_cbranch_scc0", lbl)
        b.label(lbl + "X")
        b.salu("s_mov_b64", "exec", -1)
        b.vmq = []

    b.label("LB_ENTRY")
    b_setup()
    for ks in range(3):
        b_w(ks)
    b.label("LB_MAIN")
    b.vmq = []
    make_srd(b, 48, 36, ST_OFF, 256 << 10)
    b.valu("v_lshlrev_b32", "v12", 7, "v2")
    b.valu("v_lshl_add_u32", "v12", "v3", 5, "v12")
    b.salu("s_lshl_b32", "s38", "s6", 7)
    b.salu("s_lshl_b32", "s9", "s62", 5)
    b.salu("s_add_u32", "s38", "s38", "s9")
    b.salu("s_lshl_b32", "s38", "s38", 7)
    b.salu("s_lshl_b32", "s9", "s62", 8)
    b.salu("s_add_u32", "s9", "s9", AUX)
    b.valu("v_lshl_add_u32", "v13", "v2", 3, "s9")
    b.salu("s_lshl_b32", "s14", "s4", 11)
    b.salu("s_and_b32", "s9", "s5", 1)
    b.salu("s_lshl_b32", "s9", "s9", 9)
    b.salu("s_add_u32", "s14", "s14", "s9")
    poll("LB_POLL", "s14", 64)
    b.stamp()
    D3 = int(os.environ.get("D3", "5"))
    na, nw = 0, 3
    for ks in range(int(os.environ.get("I3", "2"))):
        b_a(ks)
        na += 1
    STL = 24
    for mm in range(2):
        for h in range(2):
            b.bload(4, V(STL + 8 * mm + 4 * h, 4), "v12", S(48, 4), "s38", mm * 2048 + h * 16, tag="ST", flags="sc1")
    b.stamp()

    def stats_chain(b0, off):
        for j in (2, 4, 6):
            b.valu("v_add_f32", V(b0), V(b0), V(b0 + j))
            b.valu("v_add_f32", V(b0 + 1), V(b0 + 1), V(b0 + j + 1))
        gsum(b, V(b0), V(b0 + 2))
        gsum(b, V(b0 + 1), V(b0 + 3))
        m1, s1 = V(b0), V(b0 + 1)
        mean, var, t0, t1 = V(b0 + 2), V(b0 + 3), V(b0 + 4), V(b0 + 5)
        ln_scalars(b, m1, s1, mean, var)
        b.trans("v_rcp_f32", t0, s1)
        b.valu("v_sub_f32", mean, mean, m1)
        b.valu("v_mul_f32", mean, mean, t0)
        b.valu("v_mul_f32", var, var, t0)
        b.valu("v_mul_f32", var, var, t0)
        b.valu("v_cvt_pk_bf16_f32", t1, mean, var)
        b.valu("v_and_b32", var, "0xffff0000", t1)
        b.valu("v_lshlrev_b32", mean, 16, t1)
        b.valu("v_add_f32", var, f32bits(1e-5), var)
        bf16_round1(b, var, t1)
        b.trans("v_sqrt_f32", var, var)
        bf16_round1(b, var, t1)
        b.valu("v_fma_f32", m1, mean, s1, m1)
        b.trans("v_rcp_f32", var, var)
        b.valu("v_mul_f32", s1, t0, var)
        b.ds_write("ds_write_b64", "v13", V(b0, 2), off)

    for ks in range(16):
        b.wait_vm(("L", ks))
        if ks == 7:
            b.wait_lg0()
        b.barrier()
        while na <= min(ks + D3, 15) or nw <= min(ks + D3, 15):
            if na <= nw and na <= 15:
                b_a(na)
                na += 1
            else:
                b_w(nw)
                nw += 1
        if ks in (3, 4):
            b.wait_vm("ST")
            stats_chain(STL + 8 * (ks - 3), 128 * (ks - 3))
    b.stamp()
    b.scmp("s_cmp_eq_u32", "s10", 0)
    b.branch("s_cbranch_scc1", "L_DISP")

    b.label("LC_ENTRY")
    b.nstamp = min(b.nstamp, 7)
    tile64(b)
    make_srd(b, 40, 36, H1F_OFF, 7 << 20)
    make_srd(b, 44, 28, 0, 1792 * 512 * 2)
    b.salu("s_mul_i32", "s11", "s62", GC)
    b.salu("s_mul_i32", "s13", "s6", 4 * 56)
    b.salu("s_mov_b32", "s9", "s62")
    b.salu("s_add_u32", "s13", "s13", "s9")
    b.salu("s_lshl_b32", "s13", "s13", 10)
    b.salu("s_lshl_b32", "s12", "s9", 15)
    b.salu("s_lshl_b32", "s9", "s7", 7)
    b.salu("s_add_u32", "s12", "s12", "s9")

    def c_w(n):
        for u in range(4):
            b.salu("s_add_u32", "s15", "s12", (128 * n + 8 * u) * 1024)
            b.salu("s_add_u32", "m0", "s11", (n % 6) * 4096 + u * 1024)
            b.dma("v5", S(44, 4), "s15", tag=("L", n))

    def c_a(n):
        for m in range(4):
            b.salu("s_add_u32", "s15", "s13", (m * 56 + 4 * n) * 1024)
            b.salu("s_add_u32", "m0", "s11", (6 + n % 4) * 4096 + m * 1024)
            b.dma("v4", S(40, 4), "s15", tag=("L", n), flags=os.environ.get("ACTF", "sc1"))

    for n in range(6):
        c_w(n)
    b.salu("s_lshl_b32", "s14", "s4", 11)
    b.salu("s_bfe_u32", "s9", "s5", "0x10001")
    b.salu("s_lshl_b32", "s9", "s9", 9)
    b.salu("s_add_u32", "s14", "s14", "s9")
    b.salu("s_add_u32", "s14", "s14", 1024)
    b.stamp()
    poll("LC_POLL", "s14", 56)
    b.stamp()
    for n in range(4):
        c_a(n)
    b.valu("v_lshlrev_b32", "v12", 7, "v1")
    for n in range(14):
        b.wait_vm(("L", n))
        b.barrier()
        if n >= 1 and n + 3 < 14 and not os.environ.get("NOCA"):
            c_a(n + 3)
        if n >= 1 and n + 5 < 14 and not os.environ.get("NOCW"):
            c_w(n + 5)
        if n == 9:
            b.salu("s_mov_b64", "exec", "0xff")
            b.salu("s_mov_b32", "s9", OWN)
            b.bload(1, "v20", "v12", S(56, 4), "s9", 0, tag="OW", flags="sc1")
            b.salu("s_mov_b64", "exec", -1)
    b.stamp()
    b.wait_vm0()
    b.salu("s_mov_b64", "exec", "0xff")
    b.cmp("v_cmp_eq_u32", "vcc", 0, "v20")
    b.cmp("v_cmp_eq_u32", S(60, 2), "s8", "v20")
    b.salu("s_mov_b64", "exec", -1)
    b.salu("s_or_b32", "s9", "vcc_lo", "s60")
    b.salu("s_bitset0_b32", "s9", "s4")
    b.salu("s_andn2_b32", "s9", "s9", "s65")
    b.scmp("s_cmp_eq_u32", "s9", 0)
    b.salu("s_cselect_b32", "s9", "s10", 0)
    b.valu("v_mov_b32", "v20", "s9")
    b.scmp("s_cmp_lg_u32", "s62", 0)
    b.branch("s_cbranch_scc1", "LC_ND")
    b.ds_write("ds_write_b32", "v10", "v20", 8)
    b.scmp("s_cmp_eq_u32", "s10", 0)
    b.branch("s_cbranch_scc1", "LC_ND")
    b.salu("s_mov_b32", "s66", 3)
    b.label("LC_ND")
    b.wait_lg0()
    b.barrier()
    b.ds_read("ds_read_b32", "v20", "v10", 8)
    b.wait_lg0()
    b.rfl("s9", "v20")
    b.scmp("s_cmp_eq_u32", "s9", 0)
    b.branch("s_cbranch_scc1", "L_DISP0")
    b.dump_stamps(36, 1)
    b.raw("    s_endpgm")
    b.label("L_DISP0")
    b.salu("s_mov_b32", "s10", 0)

    b.label("L_DISP")
    b.wait_vm0()
    b.scmp("s_cmp_lg_u32", "s62", 0)
    b.branch("s_cbranch_scc1", "H_BAR")
    b.label("H_S0")
    b.scmp("s_cmp_lg_u32", "s66", 0)
    b.branch("s_cbranch_scc1", "H_S1")
    b.salu("s_lshl_b32", "s14", "s8", 7)
    b.salu("s_lshl_b32", "s9", "s4", 2)
    b.salu("s_add_u32", "s14", "s14", "s9")
    b.salu("s_add_u32", "s14", "s14", SLOT - 128)
    b.bload(1, "v23", "v11", S(56, 4), "s14", 0, flags="sc1")
    b.wait_vm0()
    b.rfl("s13", "v23")
    b.salu("s_mov_b32", "s15", 0)
    b.salu("s_ff0_i32_b32", "s5", "s13")
    b.scmp("s_cmp_lg_u32", "s13", -1)
    b.branch("s_cbranch_scc1", "H_WR")
    b.salu("s_mov_b32", "s66", 1)
    b.salu("s_and_b32", "s67", "s64", "0x0fffffff")
    b.label("H_S1")
    b.scmp("s_cmp_lg_u32", "s66", 1)
    b.branch("s_cbranch_scc1", "H_S2")
    b.salu("s_mov_b32", "s15", 1)
    b.scmp("s_cmp_lg_u32", "s67", 0)
    b.branch("s_cbranch_scc1", "H_TAKE")
    b.salu("s_mov_b32", "s66", 2)
    b.salu("s_mov_b32", "s67", "s64")
    b.label("H_S2")
    b.scmp("s_cmp_lg_u32", "s66", 2)
    b.branch("s_cbranch_scc1", "H_S3")
    b.salu("s_mov_b32", "s15", 2)
    b.scmp("s_cmp_lg_u32", "s67", 0)
    b.branch("s_cbranch_scc1", "H_TAKE")
    b.label("H_S3")
    b.salu("s_bitset1_b32", "s65", "s4")
    b.valu("v_lshlrev_b32", "v12", 7, "v1")
    b.salu("s_mov_b64", "exec", "0xff")
    b.salu("s_mov_b32", "s9", OWN)
    b.bload(1, "v20", "v12", S(56, 4), "s9", 0, flags="sc1")
    b.wait_vm0()
    b.cmp("v_cmp_eq_u32", "vcc", 0, "v20")
    b.cmp("v_cmp_eq_u32", S(60, 2), "s8", "v20")
    b.salu("s_mov_b64", "exec", -1)
    b.salu("s_or_b32", "s9", "vcc_lo", "s60")
    b.salu("s_andn2_b32", "s9", "s9", "s65")
    b.salu("s_mov_b32", "s15", 3)
    b.salu("s_mov_b32", "s5", 0)
    b.scmp("s_cmp_eq_u32", "s9", 0)
    b.branch("s_cbranch_scc1", "H_WR")
    b.salu("s_ff1_i32_b32", "s4", "s9")
    b.salu("s_mov_b32", "s64", 0)
    b.salu("s_mov_b32", "s66", 0)
    b.branch("s_branch", "H_S0")
    b.label("H_TAKE")
    b.salu("s_ff1_i32_b32", "s5", "s67")
    b.salu("s_bitset0_b32", "s67", "s5")
    b.label("H_WR")
    b.salu("s_lshl_b32", "s9", "s5", 8)
    b.salu("s_or_b32", "s15", "s15", "s9")
    b.salu("s_lshl_b32", "s9", "s4", 16)
    b.salu("s_or_b32", "s15", "s15", "s9")
    b.valu("v_mov_b32", "v20", "s15")
    b.ds_write("ds_write_b32", "v10", "v20", 4)
    b.wait_lg0()
    b.label("H_BAR")
    b.barrier()
    b.ds_read("ds_read_b32", "v20", "v10", 4)
    b.wait_lg0()
    b.barrier()
    b.rfl("s9", "v20")
    b.salu("s_bfe_u32", "s5", "s9", "0x80008")
    b.salu("s_bfe_u32", "s4", "s9", "0x80010")
    b.salu("s_and_b32", "s9", "s9", 255)
    b.scmp("s_cmp_eq_u32", "s9", 0)
    b.branch("s_cbranch_scc1", "LA_ENTRY")
    b.scmp("s_cmp_eq_u32", "s9", 1)
    b.branch("s_cbranch_scc1", "LB_ENTRY")
    b.scmp("s_cmp_eq_u32", "s9", 2)
    b.branch("s_cbranch_scc1", "LC_ENTRY")
    b.label("KF_END")
    b.raw("    s_endpgm")
    return a.text() + b.text() + kernel_desc(name, 168), name, KF_LDS, 256, 768


HEADER = """; Kernarg layout for this problem (88 bytes, ptrs only, base s[0:1]):
"""


def main():
    ks = [gen_k1(), gen_kf()]
    out = HEADER
    for (_, name, lds, grid, blk) in ks:
        out += f"; @launch kernel={name} grid=({grid},1,1) block=({blk},1,1) lds={lds}\n"
    out += '.amdgcn_target "amdgcn-amd-amdhsa--gfx950"\n.text\n'
    for k in ks:
        out += k[0]
    path = sys.argv[1] if len(sys.argv) > 1 else f"cdna_kernels/{NAME}.s"
    open(path, "w").write(out)
    print("wrote", path, len(out), "bytes")


if __name__ == "__main__":
    main()
```

```python
import sys
src=open(sys.argv[1]).read()
K=int(sys.argv[3])
A=sys.argv[4].split(','); B=sys.argv[5].split(',')
NW=int(sys.argv[6]) if len(sys.argv)>6 else 256
t=[]
t.append('''
.globl k3_probe_kernel
.p2align 8
.type k3_probe_kernel,@function
k3_probe_kernel:
    s_cmp_ge_u32 s2, 1
    s_cbranch_scc1 K3_END
    s_memrealtime s[20:21]
    s_load_dwordx2 s[4:5], s[0:1], 80
    s_waitcnt lgkmcnt(0)
    s_add_u32 s8, s4, 0x1000000
    s_addc_u32 s9, s5, 0
    s_and_b32 s9, s9, 0xffff
    s_mov_b32 s10, 0x200000
    s_mov_b32 s11, 0x20000
    v_lshlrev_b32 v1, 11, v0
''')
def red(spec, dst, vb):
    if spec[0]=='now':
        t.append(f"    s_mov_b32 s{dst}, s20\n"); return
    k,w,i,op=int(spec[0]),int(spec[1]),int(spec[2]),spec[3]
    n=(NW+63)//64
    for j in range(n):
        t.append(f"    s_mov_b32 s12, {k*(1<<20)+j*64*2048+w*128+i*4}\n")
        t.append(f"    buffer_load_dword v{vb+j}, v1, s[8:11], s12 offen\n")
    t.append("    s_waitcnt vmcnt(0)\n")
    for j in range(n):
        t.append(f"    v_subrev_u32 v{vb+j}, s20, v{vb+j}\n")
    t.append(f"    v_readlane_b32 s{dst}, v{vb}, 0\n")
    if op=='avg':
        t.append(f"    s_mov_b32 s{dst}, 0\n")
    for j in range(n):
        for l in range(64):
            if j*64+l>=NW: continue
            t.append(f"    v_readlane_b32 s13, v{vb+j}, {l}\n")
            t.append(f"    s_{'add' if op=='avg' else op}_i32 s{dst}, s{dst}, s13\n")
    if op=='avg':
        t.append(f"    v_cvt_f32_i32 v20, s{dst}\n    v_mul_f32 v20, {1.0/NW}, v20\n    v_cvt_i32_f32 v20, v20\n    s_nop 4\n    v_readfirstlane_b32 s{dst}, v20\n")
    t.append(f"    s_add_u32 s{dst}, s{dst}, s20\n")
red(A,14,2); red(B,15,8)
t.append(f'''    s_sub_u32 s14, s14, s15
    s_max_i32 s14, s14, 0
    s_min_i32 s14, s14, 20000
    s_mul_i32 s14, s14, {K}
    s_memrealtime s[22:23]
    s_waitcnt lgkmcnt(0)
    s_add_u32 s14, s14, s22
K3_SPIN:
    s_memrealtime s[22:23]
    s_waitcnt lgkmcnt(0)
    s_sub_u32 s13, s22, s14
    s_cmp_lt_i32 s13, 0
    s_cbranch_scc1 K3_SPIN
K3_END:
    s_endpgm
.section .rodata,"a"
.p2align 6
.amdhsa_kernel k3_probe_kernel
  .amdhsa_next_free_vgpr 24
  .amdhsa_next_free_sgpr 32
  .amdhsa_accum_offset 24
  .amdhsa_group_segment_fixed_size 0
  .amdhsa_kernarg_size 88
  .amdhsa_user_sgpr_count 2
  .amdhsa_user_sgpr_kernarg_segment_ptr 1
  .amdhsa_system_sgpr_workgroup_id_x 1
.end_amdhsa_kernel
.text
''')
lines=src.split('\n')
last=max(i for i,l in enumerate(lines) if l.startswith('; @launch'))
lines.insert(last+1,"; @launch kernel=k3_probe_kernel grid=(1,1,1) block=(64,1,1) lds=0")
open(sys.argv[2],'w').write('\n'.join(lines)+''.join(t))
```

```python
import sys
src=open(sys.argv[1]).read()
MUL=int(sys.argv[3]); SH=int(sys.argv[4])
k,w,ia,ib=[int(x) for x in sys.argv[5].split(',')]
NW=int(sys.argv[6]) if len(sys.argv)>6 else 224
t=[]
t.append('''
.globl k3_probe_kernel
.p2align 8
.type k3_probe_kernel,@function
k3_probe_kernel:
    s_cmp_ge_u32 s2, 1
    s_cbranch_scc1 K3_END
    s_load_dwordx2 s[4:5], s[0:1], 80
    s_waitcnt lgkmcnt(0)
    s_add_u32 s8, s4, 0x1000000
    s_addc_u32 s9, s5, 0
    s_and_b32 s9, s9, 0xffff
    s_mov_b32 s10, 0x200000
    s_mov_b32 s11, 0x20000
    v_lshlrev_b32 v1, 11, v0
''')
n=4
for j in range(n):
    t.append(f"    s_mov_b32 s12, {k*(1<<20)+j*64*2048+w*128}\n")
    t.append(f"    buffer_load_dword v{2+j}, v1, s[8:11], s12 offen offset:{ia*4}\n")
    t.append(f"    buffer_load_dword v{8+j}, v1, s[8:11], s12 offen offset:{ib*4}\n")
t.append("    s_waitcnt vmcnt(0)\n")
for j in range(n):
    t.append(f"    v_sub_u32 v{2+j}, v{2+j}, v{8+j}\n")
t.append("    s_mov_b32 s14, 0\n")
for j in range(n):
    for l in range(64):
        if j*64+l>=NW: continue
        t.append(f"    v_readlane_b32 s13, v{2+j}, {l}\n")
        t.append(f"    s_add_i32 s14, s14, s13\n")
t.append(f"    v_cvt_f32_i32 v20, s14\n    v_mul_f32 v20, {1.0/NW}, v20\n    v_cvt_i32_f32 v20, v20\n    s_nop 4\n    v_readfirstlane_b32 s14, v20\n")
t.append(f'''    s_max_i32 s14, s14, 0
    s_min_i32 s14, s14, 100000
    s_mul_i32 s14, s14, {MUL}
    s_lshr_b32 s14, s14, {SH}
    s_memrealtime s[22:23]
    s_waitcnt lgkmcnt(0)
    s_add_u32 s14, s14, s22
K3_SPIN:
    s_memrealtime s[22:23]
    s_waitcnt lgkmcnt(0)
    s_sub_u32 s13, s22, s14
    s_cmp_lt_i32 s13, 0
    s_cbranch_scc1 K3_SPIN
K3_END:
    s_endpgm
.section .rodata,"a"
.p2align 6
.amdhsa_kernel k3_probe_kernel
  .amdhsa_next_free_vgpr 24
  .amdhsa_next_free_sgpr 32
  .amdhsa_accum_offset 24
  .amdhsa_group_segment_fixed_size 0
  .amdhsa_kernarg_size 88
  .amdhsa_user_sgpr_count 2
  .amdhsa_user_sgpr_kernarg_segment_ptr 1
  .amdhsa_system_sgpr_workgroup_id_x 1
.end_amdhsa_kernel
.text
''')
lines=src.split('\n')
last=max(i for i,l in enumerate(lines) if l.startswith('; @launch'))
lines.insert(last+1,"; @launch kernel=k3_probe_kernel grid=(1,1,1) block=(64,1,1) lds=0")
open(sys.argv[2],'w').write('\n'.join(lines)+''.join(t))
```
